```python
import torch

def _softmax(x, axis=-1):
    return torch.softmax(x, dim=axis)
def _gelu(x):
    return torch.nn.functional.gelu(x, approximate="tanh")
def _silu(x):
    return torch.nn.functional.silu(x)
def _sigmoid(x):
    return torch.sigmoid(x)
def _layernorm(x, axis=-1, eps=1e-5):
    m = x.mean(dim=axis, keepdim=True)
    v = x.var(dim=axis, keepdim=True, unbiased=False)
    return (x - m) / torch.sqrt(v + eps)
def _scatter_add(tgt, idx, src, axis=0):
    return tgt.clone().index_add_(axis, idx, src)
def _segment_sum(src, seg, n):
    out = torch.zeros((n,) + src.shape[1:], dtype=src.dtype)
    return out.index_add_(0, seg, src)
def _pad(x, pw):
    flat = tuple(v for pair in reversed(pw) for v in pair)
    return torch.nn.functional.pad(x, flat)

kernel_name = 'recurrent_scan__ssm_conv_s4__dense_activation_mish__prompt'

def setup_inputs():

    _w = (lambda a: (lambda t: t.to(torch.bfloat16) if t.is_floating_point() else t)(torch.as_tensor(a)))
    def _A_setup():
        B, L, D, N = 1, 2048, 640, 192
        A_re = -(lambda _x: torch.exp(torch.as_tensor(_x)))((lambda *s: torch.randn(*s, dtype=torch.bfloat16) * 3.2)(D, N))
        A_im = torch.pi * (lambda *s: torch.randn(*s, dtype=torch.bfloat16) * 0.2)(D, N)
        B_re = (lambda *s: torch.randn(*s, dtype=torch.bfloat16) * 0.2)(D, N)
        B_im = (lambda *s: torch.randn(*s, dtype=torch.bfloat16) * 0.2)(D, N)
        C_re = (lambda *s: torch.randn(*s, dtype=torch.bfloat16) * 0.2)(D, N)
        C_im = (lambda *s: torch.randn(*s, dtype=torch.bfloat16) * 0.2)(D, N)
        log_dt = (lambda *s: torch.randn(*s, dtype=torch.bfloat16) * 0.2)(D) * 0.5 - 4.0
        Dskip = (lambda *s: torch.randn(*s, dtype=torch.bfloat16) * 0.2)(D)
        return {
            "u": _w((lambda *s: torch.randn(*s, dtype=torch.bfloat16) * 0.05)(B, L, D)),
            "A_re": _w(A_re),
            "A_im": _w(A_im),
            "B_re": _w(B_re),
            "B_im": _w(B_im),
            "C_re": _w(C_re),
            "C_im": _w(C_im),
            "log_dt": _w(log_dt),
            "Dskip": _w(Dskip),
        }
    _A_in = _A_setup()

    def _B_setup():
        B, S, D, F = 1, 2048, 640, 1536
        return {
            "x": _w((lambda *s: torch.randn(*s, dtype=torch.bfloat16) * 0.05)(B, S, D)),
            "w1": _w((lambda *s: torch.randn(*s, dtype=torch.bfloat16) * 0.8)(D, F) * (D ** -0.5)),
            "b1": _w((lambda *s: torch.randn(*s, dtype=torch.bfloat16) * 0.1)(F)),
            "w2": _w((lambda *s: torch.randn(*s, dtype=torch.bfloat16) * 0.1)(F, D) * (F ** -0.5)),
        }
    _B_in = _B_setup()

    return {
        "A_u": _A_in["u"],
        "A_A_re": _A_in["A_re"],
        "A_A_im": _A_in["A_im"],
        "A_B_re": _A_in["B_re"],
        "A_B_im": _A_in["B_im"],
        "A_C_re": _A_in["C_re"],
        "A_C_im": _A_in["C_im"],
        "A_log_dt": _A_in["log_dt"],
        "A_Dskip": _A_in["Dskip"],
        "B_x": _B_in["x"],
        "B_w1": _B_in["w1"],
        "B_b1": _B_in["b1"],
        "B_w2": _B_in["w2"],
    }

def reference(A_u, A_A_re, A_A_im, A_B_re, A_B_im, A_C_re, A_C_im, A_log_dt, A_Dskip, B_x, B_w1, B_b1, B_w2):
    def _A_ref(u, A_re, A_im, B_re, B_im, C_re, C_im, log_dt, Dskip):
        Bsz, L, D = u.shape
        dt = torch.exp(log_dt)[:, None]
        A = A_re + 1j * A_im
        Bc = B_re + 1j * B_im
        Cc = C_re + 1j * C_im
        logdA = dt * A
        dB = dt * Bc
        l = (lambda x, dt: x.to(dt))(torch.arange(L), A_re.dtype)
        P = torch.exp(logdA[:, :, None] * l[None, None, :])
        K = torch.einsum("dn,dnl,dn->dl", Cc, P, dB).real
        L2 = 2 * L
        Kp = _pad(K, ((0, 0), (0, L)))
        up = (lambda x, *d: x.permute(*d))(u, 0, 2, 1)
        up = _pad(up, ((0, 0), (0, 0), (0, L)))
        Kf = (lambda x, axes=(-2,-1): torch.fft.rfft2(x.float(), dim=axes))(Kp[:, None, :], axes=(-2, -1))
        Uf = (lambda x, axes=(-2,-1): torch.fft.rfft2(x.float(), dim=axes))(up[:, :, None, :], axes=(-2, -1))
        Yf = Uf * Kf[None, :, :, :]
        y = (lambda x, s, axes=(-2,-1): torch.fft.irfft2(x, s=s, dim=axes).to(torch.bfloat16))(Yf, (1, L2), axes=(-2, -1))[:, :, 0, :L]
        y = (lambda x, *d: x.permute(*d))(y, 0, 2, 1) + u * Dskip[None, None, :]
        return y

    def _B_ref(x, w1, b1, w2):
        h = torch.einsum("bsd,df->bsf", x, w1) + b1
        sp = torch.log1p(torch.exp(-torch.abs(h))) + torch.where(h > 0, h, torch.zeros_like(h))
        act = h * torch.tanh(sp)
        return torch.einsum("bsf,fd->bsd", act, w2)

    x = A_u
    xn = _layernorm(x, axis=-1)
    s = _A_ref(xn, A_A_re, A_A_im, A_B_re, A_B_im, A_C_re, A_C_im, A_log_dt, A_Dskip)
    g = _silu(_B_ref(xn, B_w1, B_b1, B_w2))
    return x + s * g
```

```python
import struct

def f2u(x):
    return struct.unpack("<I", struct.pack("<f", x))[0]

def fhex(x):
    return "0x%08x" % f2u(x)

def v(i, n=1):
    return "v%d" % i if n == 1 else "v[%d:%d]" % (i, i + n - 1)

def s(i, n=1):
    return "s%d" % i if n == 1 else "s[%d:%d]" % (i, i + n - 1)

class Asm:
    def __init__(self):
        self.lines = []
        self.vm = []
        self.lg = []
        self.nlabel = 0
    def __call__(self, txt):
        self.lines.append("    " + txt)
    def c(self, txt):
        self.lines.append("    ; " + txt)
    def label(self, name):
        self.lines.append(name + ":")
    def raw(self, txt):
        self.lines.append(txt)
    def newlabel(self, base="L"):
        self.nlabel += 1
        return "%s_%d" % (base, self.nlabel)
    def text(self):
        return "\n".join(self.lines) + "\n"
    def vmem(self, txt, tag=None):
        self(txt)
        self.vm.append(tag)
    def lds(self, txt, tag=None):
        self(txt)
        self.lg.append(tag)
    def _n_after(self, lst, tags):
        last = -1
        for i, t in enumerate(lst):
            if t in tags:
                last = i
        if last < 0:
            return None
        return len(lst) - 1 - last, last
    def wait(self, vm=None, lg=None):
        parts = []
        if vm is not None:
            if vm == "all":
                parts.append("vmcnt(0)"); self.vm = []
            else:
                if not isinstance(vm, (list, tuple, set)): vm = [vm]
                r = self._n_after(self.vm, set(vm))
                if r is not None:
                    n, last = r
                    if n <= 63:
                        parts.append("vmcnt(%d)" % n)
                        self.vm = self.vm[last + 1:]
                    else:
                        raise Exception("vmcnt overflow")
        if lg is not None:
            if lg == "all":
                parts.append("lgkmcnt(0)"); self.lg = []
            else:
                if not isinstance(lg, (list, tuple, set)): lg = [lg]
                r = self._n_after(self.lg, set(lg))
                if r is not None:
                    n, last = r
                    n2 = min(n, 15)
                    parts.append("lgkmcnt(%d)" % n2)
                    self.lg = self.lg[len(self.lg) - n2:] if n2 > 0 else []
        if parts:
            self("s_waitcnt " + " ".join(parts))
    PROF = False
    STAMP_S = 80
    def stamp(self, i):
        if not self.PROF: return
        self("s_memrealtime s[%d:%d]" % (self.STAMP_S + 2*i, self.STAMP_S + 2*i + 1))
        self("s_waitcnt lgkmcnt(0)")
        self.lg = []
    def stamp_dump(self, n, vtid_wave_sgpr, vtmp, ws_off=200 << 20):
        if not self.PROF: return
        self("s_load_dwordx2 s[96:97], s[0:1], 120")
        self("s_waitcnt lgkmcnt(0)")
        self("s_add_u32 s96, s96, 0x%x" % ws_off)
        self("s_addc_u32 s97, s97, 0")
        self("s_lshl_b32 s98, s2, 2")
        self("s_add_u32 s98, s98, s%d" % vtid_wave_sgpr)
        self("s_lshl_b32 s98, s98, 5")
        self("s_mov_b64 exec, 1")
        self("v_mov_b32 v%d, s98" % (vtmp + 8))
        for i in range(8):
            self("v_mov_b32 v%d, s%d" % (vtmp + i, self.STAMP_S + 2*min(i, n-1)))
        self("global_store_dwordx4 v%d, v[%d:%d], s[96:97]" % (vtmp + 8, vtmp, vtmp + 3))
        self("global_store_dwordx4 v%d, v[%d:%d], s[96:97] offset:16" % (vtmp + 8, vtmp + 4, vtmp + 7))
    def nop(self, n):
        while n > 0:
            k = min(n, 16)
            self("s_nop %d" % (k - 1))
            n -= k
    def srd(self, d, base, nbytes):
        self("s_mov_b32 s%d, s%d" % (d, base))
        self("s_and_b32 s%d, s%d, 0xffff" % (d + 1, base + 1))
        self("s_mov_b32 s%d, 0x%x" % (d + 2, nbytes))
        self("s_mov_b32 s%d, 0x00020000" % (d + 3))
    def srd_off(self, d, base, off, nbytes):
        self("s_add_u32 s%d, s%d, 0x%x" % (d, base, off))
        self("s_addc_u32 s%d, s%d, 0" % (d + 1, base + 1))
        self("s_and_b32 s%d, s%d, 0xffff" % (d + 1, d + 1))
        self("s_mov_b32 s%d, 0x%x" % (d + 2, nbytes))
        self("s_mov_b32 s%d, 0x00020000" % (d + 3))

def kernel_begin(a, name):
    a.raw(".globl %s" % name)
    a.raw(".p2align 8")
    a.raw(".type %s,@function" % name)
    a.raw("%s:" % name)

def kernel_desc(name, vgpr, sgpr, accum=None):
    if accum is None:
        accum = (vgpr + 3) // 4 * 4
    return """.amdhsa_kernel %s
  .amdhsa_next_free_vgpr %d
  .amdhsa_next_free_sgpr %d
  .amdhsa_accum_offset %d
  .amdhsa_group_segment_fixed_size 0
  .amdhsa_kernarg_size 128
  .amdhsa_user_sgpr_count 2
  .amdhsa_user_sgpr_kernarg_segment_ptr 1
  .amdhsa_system_sgpr_workgroup_id_x 1
.end_amdhsa_kernel
""" % (name, vgpr, sgpr, accum)
```

```python
from asmlib import *
from common import *

ONES_BF = 0x3f803f80

def emit_rowstats(a, sx, sq, mb, rs, t0, t1):
    a("v_mul_f32 v%d, %s, v%d" % (t0, fhex(1.0/640), sx))
    a("v_mul_f32 v%d, %s, v%d" % (t1, fhex(1.0/640), sq))
    a("v_fma_f32 v%d, -v%d, v%d, v%d" % (t1, t0, t0, t1))
    a("v_max_f32 v%d, 0, v%d" % (t1, t1))
    a("v_cvt_pk_bf16_f32 v%d, v%d, v%d" % (t0, t0, t1))
    a("v_lshlrev_b32 v%d, 16, v%d" % (mb, t0))
    a("v_and_b32 v%d, 0xffff0000, v%d" % (t1, t0))
    a("v_add_f32 v%d, %s, v%d" % (t1, fhex(1e-5), t1))
    a("v_cvt_pk_bf16_f32 v%d, v%d, v%d" % (t1, t1, t1))
    a("v_and_b32 v%d, 0xffff0000, v%d" % (t1, t1))
    a("v_sqrt_f32 v%d, v%d" % (t1, t1))
    a("s_nop 0")
    a("v_cvt_pk_bf16_f32 v%d, v%d, v%d" % (t1, t1, t1))
    a("v_and_b32 v%d, 0xffff0000, v%d" % (t1, t1))
    a("v_rcp_f32 v%d, v%d" % (rs, t1))
    a("s_nop 0")

LNT_RS = 1312
def emit_lnt(a, s_idx):
    vT0, vT1, vOff, vWr, vRd, vSt = 1, 2, 3, 4, 5, 6
    vX = 8
    vS = 48
    vMb, vRs = 52, 56
    vU = 60
    vO = 76
    sX, sWs, sWave, sT, sOne = 8, 10, 12, 13, 14
    sSrd = 16
    a.c("================ role: LN + transpose ================")
    a("s_load_dwordx2 s[%d:%d], s[0:1], %d" % (sX, sX+1, KA_X))
    a("s_load_dwordx2 s[%d:%d], s[0:1], %d" % (sWs, sWs+1, KA_WS))
    a("v_lshrrev_b32 v%d, 6, v0" % vT0)
    a("v_and_b32 v0, 63, v0")
    a("v_readfirstlane_b32 s%d, v%d" % (sWave, vT0))
    a("v_lshrrev_b32 v%d, 4, v0" % vT0)
    a("v_and_b32 v%d, 15, v0" % vT1)
    a("v_mul_u32_u24 v%d, 1280, v%d" % (vOff, vT0))
    a("v_lshl_add_u32 v%d, v%d, 4, v%d" % (vOff, vT1, vOff))
    a("s_lshl_b32 s%d, s%d, 2" % (sT, s_idx))
    a("s_add_u32 s%d, s%d, s%d" % (sT, sT, sWave))
    a("s_mul_i32 s%d, s%d, %d" % (sT, sT, 8*1280))
    a("v_add_u32 v%d, s%d, v%d" % (vOff, sT, vOff))
    a("v_add_u32 v%d, %d, v%d" % (vSt, 4*1280, vOff))
    a("s_waitcnt lgkmcnt(0)")
    for j in range(2):
        for c in range(5):
            a.vmem("global_load_dwordx4 %s, v%d, s[%d:%d] offset:%d" % (v(vX+(j*5+c)*4,4), (vOff, vSt)[j], sX, sX+1, c*256), "x%d" % j)
    a.srd_off(sSrd, sWs, WS_XNT, XNT_BYTES)
    a("s_mov_b32 s%d, 0x%x" % (sOne, ONES_BF))
    a("v_mul_u32_u24 v%d, %d, v%d" % (vWr, LNT_RS, vT0))
    a("v_lshl_add_u32 v%d, v%d, 4, v%d" % (vWr, vT1, vWr))
    a("s_mul_i32 s%d, s%d, %d" % (sT, sWave, 8*LNT_RS + 128))
    a("v_add_u32 v%d, s%d, v%d" % (vWr, sT, vWr))
    a("v_mul_u32_u24 v%d, %d, v%d" % (vRd, 8*LNT_RS + 128, vT0))
    a("v_lshrrev_b32 v%d, 2, v%d" % (vU, vT1))
    a("v_mul_u32_u24 v%d, %d, v%d" % (vU, LNT_RS, vU))
    a("v_add_u32 v%d, v%d, v%d" % (vRd, vRd, vU))
    a("v_and_b32 v%d, 3, v0" % vU)
    a("v_lshl_add_u32 v%d, v%d, 3, v%d" % (vRd, vU, vRd))
    a("s_mul_i32 s%d, s%d, 320" % (sT, sWave))
    a("v_add_u32 v%d, s%d, v%d" % (vRd, sT, vRd))
    a("v_lshlrev_b32 v%d, 12, v%d" % (vSt, vT1))
    a("v_lshl_add_u32 v%d, v%d, 4, v%d" % (vSt, vT0, vSt))
    a("s_mul_i32 s%d, s%d, %d" % (sT, sWave, 160*4096))
    a("v_add_u32 v%d, s%d, v%d" % (vSt, sT, vSt))
    a("s_lshl_b32 s%d, s%d, 6" % (sT, s_idx))
    a("v_add_u32 v%d, s%d, v%d" % (vSt, sT, vSt))
    for i in range(4): a("v_mov_b32 v%d, 0" % (vS+i))
    for j in range(2):
        a.wait(vm="x%d" % j)
        for k in range(20):
            r = vX + j*20 + k
            a("v_dot2_f32_bf16 v%d, v%d, s%d, v%d" % (vS+2*j, r, sOne, vS+2*j))
            a("v_dot2_f32_bf16 v%d, v%d, v%d, v%d" % (vS+2*j+1, r, r, vS+2*j+1))
    a.nop(3)
    for sh in (8, 4, 2, 1):
        for i in range(4):
            a("v_add_f32_dpp v%d, v%d, v%d row_ror:%d row_mask:0xf bank_mask:0xf" % (vS+i, vS+i, vS+i, sh))
    for j in range(2):
        emit_rowstats(a, vS+2*j, vS+2*j+1, vMb+2*j, vRs+2*j, vT0, vT1)
    for j in range(2):
        for c in range(5):
            b = vX + (j*5+c)*4
            for k in range(4):
                a("v_lshlrev_b32 v%d, 16, v%d" % (vU+2*k, b+k))
                a("v_and_b32 v%d, 0xffff0000, v%d" % (vU+2*k+1, b+k))
            for k in range(4):
                a("v_pk_add_f32 %s, %s, %s op_sel_hi:[1,0] neg_lo:[0,1] neg_hi:[0,1]" % (v(vU+2*k,2), v(vU+2*k,2), v(vMb+2*j,2)))
            for k in range(4):
                a("v_cvt_pk_bf16_f32 v%d, v%d, v%d" % (b+k, vU+2*k, vU+2*k+1))
            for k in range(4):
                a("v_lshlrev_b32 v%d, 16, v%d" % (vU+8+2*k, b+k))
                a("v_and_b32 v%d, 0xffff0000, v%d" % (vU+8+2*k+1, b+k))
            for k in range(4):
                a("v_pk_mul_f32 %s, %s, %s op_sel_hi:[1,0]" % (v(vU+8+2*k,2), v(vU+8+2*k,2), v(vRs+2*j,2)))
            for k in range(4):
                a("v_cvt_pk_bf16_f32 v%d, v%d, v%d" % (b+k, vU+8+2*k, vU+8+2*k+1))
            a.lds("ds_write_b128 v%d, %s offset:%d" % (vWr, v(b,4), j*4*LNT_RS + c*256), "w")
    a.wait(lg="all")
    a("s_barrier")
    for db in range(10):
        for q in range(2):
            a.lds("ds_read_b64_tr_b16 %s, v%d offset:%d" % (v(vO+4*db+2*q,2), vRd, q*4*LNT_RS + db*32), "r%d" % db)
    a("s_mov_b32 s%d, 0" % sT)
    for db in range(10):
        a.wait(lg="r%d" % db)
        a.vmem("buffer_store_dwordx4 %s, v%d, s[%d:%d], s%d offen" % (v(vO+4*db,4), vSt, sSrd, sSrd+3, sT), "st")
        if db < 9: a("s_add_u32 s%d, s%d, %d" % (sT, sT, 16*4096))
    a("s_endpgm")
    a.vm = []; a.lg = []

def emit_w2f(a, s_idx):
    vT0, vT1, vRd, vSt = 1, 2, 3, 4
    vSrc = 8
    vO = 20
    sW2, sWs, sWave, sT, sB, sL = 8, 10, 12, 13, 14, 15
    sSrc, sDst = 16, 20
    a.c("================ role: w2 relayout ================")
    a("s_load_dwordx2 s[%d:%d], s[0:1], %d" % (sW2, sW2+1, KA_W2))
    a("s_load_dwordx2 s[%d:%d], s[0:1], %d" % (sWs, sWs+1, KA_WS))
    a("v_lshrrev_b32 v%d, 6, v0" % vT0)
    a("v_and_b32 v0, 63, v0")
    a("v_readfirstlane_b32 s%d, v%d" % (sWave, vT0))
    for i in range(10):
        a("v_add_u32 v%d, %d, v0" % (vT0, 64*i))
        a("v_mul_u32_u24 v%d, 3277, v%d" % (vT1, vT0))
        a("v_lshrrev_b32 v%d, 16, v%d" % (vT1, vT1))
        a("v_mul_u32_u24 v%d, %d, v%d" % (vSrc+i, 1280-320, vT1))
        a("v_lshl_add_u32 v%d, v%d, 4, v%d" % (vSrc+i, vT0, vSrc+i))
    a("s_waitcnt lgkmcnt(0)")
    a.srd(sSrc, sW2, W2F_BYTES)
    a.srd_off(sDst, sWs, WS_W2F, W2F_BYTES)
    a("s_mul_i32 s%d, s%d, %d" % (sB, s_idx, 64*1280))
    a("s_mul_i32 s%d, s%d, 320" % (sT, sWave))
    a("s_add_u32 s%d, s%d, s%d" % (sB, sB, sT))
    a("s_mul_i32 s%d, s%d, 20480" % (sL, sWave))
    for p in range(2):
        for i in range(10):
            a("s_add_u32 m0, s%d, %d" % (sL, p*10240 + i*1024))
            a("s_nop 0")
            a.vmem("buffer_load_dwordx4 v%d, s[%d:%d], s%d offen lds" % (vSrc+i, sSrc, sSrc+3, sB), "d%d" % p)
        if p == 0: a("s_add_u32 s%d, s%d, %d" % (sB, sB, 32*1280))
    a("v_lshrrev_b32 v%d, 5, v0" % vT0)
    a("v_lshlrev_b32 v%d, 4, v%d" % (vRd, vT0))
    a("v_bfe_u32 v%d, v0, 4, 1" % vT0)
    a("v_lshl_add_u32 v%d, v%d, 2, v%d" % (vRd, vT0, vRd))
    a("v_bfe_u32 v%d, v0, 2, 2" % vT0)
    a("v_add_u32 v%d, v%d, v%d" % (vRd, vRd, vT0))
    a("v_mul_u32_u24 v%d, 320, v%d" % (vRd, vRd))
    a("v_and_b32 v%d, 3, v0" % vT0)
    a("v_lshl_add_u32 v%d, v%d, 3, v%d" % (vRd, vT0, vRd))
    a("v_add_u32 v%d, s%d, v%d" % (vRd, sL, vRd))
    a("v_lshlrev_b32 v%d, 4, v0" % vSt)
    a("s_mul_i32 s%d, s%d, %d" % (sT, sWave, 10*48*1024))
    a("s_lshl_b32 s%d, s%d, 11" % (sB, s_idx))
    a("s_add_u32 s%d, s%d, s%d" % (sT, sT, sB))
    for p in range(2):
        a.wait(vm="d%d" % p)
        for k in range(10):
            for q in range(2):
                a.lds("ds_read_b64_tr_b16 %s, v%d offset:%d" % (v(vO+40*p+4*k+2*q,2), vRd, p*10240 + q*8*320 + k*32), "r%d_%d" % (p, k))
    for p in range(2):
        for k in range(10):
            a.wait(lg="r%d_%d" % (p, k))
            a("s_add_u32 s%d, s%d, %d" % (sB, sT, k*48*1024 + p*1024))
            a.vmem("buffer_store_dwordx4 %s, v%d, s[%d:%d], s%d offen" % (v(vO+40*p+4*k,4), vSt, sDst, sDst+3, sB), "st")
    a("s_endpgm")
    a.vm = []; a.lg = []
```

```python
import math
KA_X, KA_ARE, KA_AIM, KA_BRE, KA_BIM, KA_CRE, KA_CIM, KA_LOGDT, KA_DSKIP, KA_BX, KA_W1, KA_B1, KA_W2, KA_OUT, KA_DBG, KA_WS = [8*i for i in range(16)]
L, D, N, F = 2048, 640, 192, 1536
WS_ACT = 0
WS_W2F = 8 << 20
WS_XNT = 12 << 20
WS_KR  = 16 << 20
WS_ST  = 24 << 20
ACT_BYTES = 2048*1536*2
W2F_BYTES = 1536*640*2
XNT_BYTES = 640*2048*2
KR_STRIDE = 8320
RO_OFF = 4160
KR_BYTES = 640*KR_STRIDE
ST_BYTES = 640*2048*2
LOG2E = 1.4426950408889634
INV2PI = 1.0/(2*math.pi)
```

```python
from asmlib import *
from common import *

CV_REGION = 13824
CV_UB = 9216 + 512

def emit_conv(a, s_idx, signal=None):
    vT0, vT1, vL16, vB = 1, 2, 3, 4
    vA = 8
    vZ = 12
    vAcc = 16
    vFr = 48
    vO = 176
    sWs, sWave, sD, sT, sL, sK, sU, sCnt = 8, 10, 11, 12, 13, 14, 15, 28
    sKR, sXN, sST = 16, 20, 24
    a.c("================ role: conv ================")
    a.stamp(0)
    a("s_load_dwordx2 s[%d:%d], s[0:1], %d" % (sWs, sWs+1, KA_WS))
    a("v_lshrrev_b32 v%d, 6, v0" % vT0)
    a("v_and_b32 v0, 63, v0")
    a("v_readfirstlane_b32 s%d, v%d" % (sWave, vT0))
    a("v_lshlrev_b32 v%d, 4, v0" % vL16)
    a("s_lshl_b32 s%d, s%d, 2" % (sD, s_idx))
    a("s_add_u32 s%d, s%d, s%d" % (sD, sD, sWave))
    a("s_mul_i32 s%d, s%d, %d" % (sL, sWave, CV_REGION))
    a("s_mul_i32 s%d, s%d, %d" % (sK, sD, KR_STRIDE))
    a("s_lshl_b32 s%d, s%d, 12" % (sU, sD))
    a("s_waitcnt lgkmcnt(0)")
    a.srd_off(sKR, sWs, WS_KR, KR_BYTES)
    a.srd_off(sXN, sWs, WS_XNT, XNT_BYTES)
    a("s_add_u32 m0, s%d, %d" % (sL, CV_UB))
    a("s_nop 0")
    for i in range(4):
        a.vmem("buffer_load_dwordx4 v%d, s[%d:%d], s%d offen offset:%d lds" % (vL16, sXN, sXN+3, sU, i*1024), "ld")
    for blk in range(3):
        a("s_add_u32 m0, s%d, %d" % (sL, blk*4096))
        if blk: a("s_add_u32 s%d, s%d, 4096" % (sK, sK))
        else: a("s_nop 0")
        for i in range(4 if blk < 2 else 1):
            a.vmem("buffer_load_dwordx4 v%d, s[%d:%d], s%d offen offset:%d lds" % (vL16, sKR, sKR+3, sK, i*1024), "ld")
    a.srd_off(sST, sWs, WS_ST, ST_BYTES)
    for i in range(4): a("v_mov_b32 v%d, 0" % (vZ+i))
    a("v_and_b32 v%d, 0x1f0, v%d" % (vT0, vL16))
    a("v_add_u32 v%d, s%d, v%d" % (vT0, sL, vT0))
    a.lds("ds_write_b128 v%d, %s offset:9216" % (vT0, v(vZ,4)), "z")
    a("v_and_b32 v%d, 15, v0" % vT0)
    a("v_lshrrev_b32 v%d, 4, v0" % vT1)
    a("v_lshlrev_b32 v%d, 3, v%d" % (vA, vT1))
    a("v_sub_u32 v%d, v%d, v%d" % (vA, vA, vT0))
    a("v_lshlrev_b32 v%d, 1, v%d" % (vA, vA))
    a("v_and_b32 v%d, 1, v0" % (vA+1))
    a("v_xor_b32 v%d, 1, v%d" % (vA+1, vA+1))
    a("v_mul_u32_u24 v%d, %d, v%d" % (vA+1, RO_OFF + 2, vA+1))
    a("v_add3_u32 v%d, v%d, v%d, s%d" % (vA, vA, vA+1, sL))
    for j in (3, 2, 1, 0):
        a("v_add_u32 v%d, %d, v%d" % (vA+j, 4062 - 1024*j - 512 - 64, vA))
    a("v_lshlrev_b32 v%d, 5, v%d" % (vB, vT0))
    a("v_lshl_add_u32 v%d, v%d, 4, v%d" % (vB, vT1, vB))
    a("v_add_u32 v%d, s%d, v%d" % (vB, sL, vB))
    a("v_add_u32 v%d, %d, v%d" % (vB, CV_UB - 32 - 64, vB))
    for i in range(32): a("v_mov_b32 v%d, 0" % (vAcc+i))
    def frA(buf, k1): return vFr + buf*64 + 4*k1
    def frB(buf, mu): return vFr + buf*64 + 32 + 4*mu
    def reads(buf, par):
        out = []
        ex = 64 if par == 0 else 0
        for i in range(8):
            k1 = i; mu = i
            j = k1 // 2
            o = (128 if k1 % 2 == 0 else 0) + ex//4
            out.append(("A%d" % k1, "ds_read2_b32 %s, v%d offset0:%d offset1:%d" % (v(frA(buf,k1),2), vA+j, o, o+1)))
            out.append(("A%d" % k1, "ds_read2_b32 %s, v%d offset0:%d offset1:%d" % (v(frA(buf,k1)+2,2), vA+j, o+2, o+3)))
            out.append(("B%d" % mu, "ds_read_b128 %s, v%d offset:%d" % (v(frB(buf,mu),4), vB, 512*mu + ex)))
        return out
    def mfmas(buf):
        out = []
        for sm in range(8):
            for k1 in range(sm+1):
                for mu in range(sm+1):
                    if max(k1, mu) == sm and k1 + mu <= 7:
                        c = k1 + mu
                        out.append((sm, "v_mfma_f32_16x16x32_bf16 %s, %s, %s, %s" % (v(vAcc+4*c,4), v(frA(buf,k1),4), v(frB(buf,mu),4), v(vAcc+4*c,4))))
        return out
    a.wait(vm="all", lg="all")
    a.stamp(1)
    for t, ins in reads(0, 0): a(ins)
    a("s_mov_b32 s%d, 0" % sCnt)
    lp = a.newlabel("L_conv")
    a.label(lp)
    for buf in (0, 1):
        a("s_waitcnt lgkmcnt(0)")
        if buf == 1:
            for j in range(4): a("v_subrev_u32 v%d, 128, v%d" % (vA+j, vA+j))
            a("v_subrev_u32 v%d, 128, v%d" % (vB, vB))
        rd = reads(1-buf, 1 if buf == 0 else 0)
        mf = mfmas(buf)
        ri = 0
        for i, (sm, m) in enumerate(mf):
            a(m)
            if ri < len(rd):
                a(rd[ri][1]); ri += 1
        assert ri == len(rd)
    a("s_add_u32 s%d, s%d, 1" % (sCnt, sCnt))
    a("s_cmp_lt_u32 s%d, 4" % sCnt)
    a("s_cbranch_scc1 %s" % lp)
    a("s_waitcnt lgkmcnt(0)")
    a.stamp(2)
    a.nop(8)
    for c in range(8):
        a("v_cvt_pk_bf16_f32 v%d, v%d, v%d" % (vO+2*c, vAcc+4*c, vAcc+4*c+1))
        a("v_cvt_pk_bf16_f32 v%d, v%d, v%d" % (vO+2*c+1, vAcc+4*c+2, vAcc+4*c+3))
        if c & 1:
            p = c >> 1
            a.vmem("buffer_store_dwordx4 %s, v%d, s[%d:%d], s%d offen offset:%d%s" % (v(vO+4*p,4), vL16, sST, sST+3, sU, p*1024, " sc1" if signal else ""), "st")
    if signal:
        signal(a)
    if a.PROF:
        a("s_waitcnt vmcnt(0)")
    a.stamp(3)
    a.stamp_dump(4, sWave, 200, (201 << 20))
    a("s_endpgm")
    a.vm = []; a.lg = []
```

```python
from asmlib import *
from common import *
from aux import emit_rowstats, ONES_BF

G1_SLOT = 12288
G1_NS = 5
G1_XB = G1_SLOT*G1_NS
G1_CS = G1_XB + 16384
G1_CB = G1_CS + 1536

def emit_gemm1(a, s_idx):
    vT0, vT1, vT2 = 1, 2, 3
    vXg = 4
    vWg = 8
    vXw = 11
    vXr = 13
    vWr = 17
    vSx, vSq = 21, 22
    vCs = 23
    vB1 = 26
    vSt, vCw, vCr, vBw, vBr = 29, 30, 31, 32, 33
    vMb, vRs = 34, 36
    vAcc = 40
    vW = 88
    vXL = 112
    sWave, sRb, sCb, sT, sT2, sOne, sXo, sWo, sM, sAo = 14, 15, 16, 17, 18, 19, 20, 21, 22, 23
    sXs, sW1, sAct = 24, 28, 32
    a.c("================ role: gemm1 ================")
    a.stamp(0)
    a("s_load_dwordx2 s[8:9], s[0:1], %d" % KA_X)
    a("s_load_dwordx4 s[4:7], s[0:1], %d" % KA_W1)
    a("s_load_dwordx2 s[12:13], s[0:1], %d" % KA_WS)
    a("v_lshrrev_b32 v%d, 6, v0" % vT0)
    a("v_and_b32 v0, 63, v0")
    a("v_readfirstlane_b32 s%d, v%d" % (sWave, vT0))
    a("s_bfe_u32 s%d, s%d, 0x20001" % (sRb, s_idx))
    a("s_lshl_b32 s%d, s%d, 2" % (sRb, sRb))
    a("s_lshr_b32 s%d, s%d, 6" % (sT, s_idx))
    a("s_add_u32 s%d, s%d, s%d" % (sRb, sRb, sT))
    a("s_and_b32 s%d, s%d, 1" % (sCb, s_idx))
    a("s_lshl_b32 s%d, s%d, 3" % (sCb, sCb))
    a("s_bfe_u32 s%d, s%d, 0x30003" % (sT, s_idx))
    a("s_add_u32 s%d, s%d, s%d" % (sCb, sCb, sT))
    a("v_lshrrev_b32 v%d, 3, v0" % vT0)
    a("v_and_b32 v%d, 7, v0" % vT1)
    a("v_mul_u32_u24 v%d, 1280, v%d" % (vXg, vT0))
    a("v_lshl_add_u32 v%d, v%d, 4, v%d" % (vXg, vT1, vXg))
    for i in range(1, 4): a("v_add_u32 v%d, %d, v%d" % (vXg+i, i*8*1280, vXg))
    a("s_lshl2_add_u32 s%d, s%d, s%d" % (sT, sRb, sWave))
    a("s_mul_i32 s%d, s%d, %d" % (sXo, sT, 32*1280))
    a("s_mul_i32 s%d, s%d, 192" % (sT, sWave))
    for z in range(3):
        a("v_add_u32 v%d, s%d, v0" % (vT2, sT)) if z == 0 else a("v_add_u32 v%d, 64, v%d" % (vT2, vT2))
        a("v_mul_u32_u24 v%d, 5462, v%d" % (vWg+z, vT2))
        a("v_lshrrev_b32 v%d, 16, v%d" % (vWg+z, vWg+z))
        a("v_mul_u32_u24 v%d, %d, v%d" % (vWg+z, 3072-192, vWg+z))
        a("v_lshl_add_u32 v%d, v%d, 4, v%d" % (vWg+z, vT2, vWg+z))
    a("s_mul_i32 s%d, s%d, 192" % (sWo, sCb))
    a("s_mul_i32 s%d, s%d, 3072" % (sM, sWave))
    a("s_waitcnt lgkmcnt(0)")
    a.srd(sXs, 8, 2048*640*2)
    a.srd(sW1, 4, 640*1536*2)
    def xl(st): return vXL + (st % 8)*16
    def xloads(st):
        for i in range(4):
            a.vmem("buffer_load_dwordx4 %s, v%d, s[%d:%d], s%d offen offset:%d" % (v(xl(st)+4*i,4), vXg+i, sXs, sXs+3, sXo, st*128), "x%d" % st)
    def wdma(st):
        for z in range(3):
            a("s_add_u32 m0, s%d, %d" % (sM, (st % G1_NS)*G1_SLOT + z*1024))
            if z == 0 and st > 0: a("s_add_u32 s%d, s%d, %d" % (sWo, sWo, 64*3072))
            else: a("s_nop 0")
            a.vmem("buffer_load_dwordx4 v%d, s[%d:%d], s%d offen lds" % (vWg+z, sW1, sW1+3, sWo), "w%d" % st)
    for st in range(5):
        xloads(st); wdma(st)
    for st in range(5, 8): xloads(st)
    for p in range(3): a("v_mov_b32 v%d, 0" % (vB1+p))
    a("v_and_b32 v%d, 31, v0" % vT2)
    a("v_lshlrev_b32 v%d, 1, v%d" % (vT2, vT2))
    a("s_mul_i32 s%d, s%d, 192" % (sT, sCb))
    a("v_add_u32 v%d, s%d, v%d" % (vT2, sT, vT2))
    for p in range(3):
        a.vmem("global_load_short_d16_hi v%d, v%d, s[6:7] offset:%d" % (vB1+p, vT2, 64*p), "b1")
    a.srd_off(sAct, 12, WS_ACT, ACT_BYTES)
    a("s_mov_b32 s%d, 0x%x" % (sOne, ONES_BF))
    a("s_lshl_b32 s%d, s%d, 12" % (sT, sWave))
    a("s_add_u32 s%d, s%d, %d" % (sT, sT, G1_XB))
    a("v_lshrrev_b32 v%d, 4, v0" % vT2)
    for p in range(2):
        a("v_xor_b32 v%d, v%d, v%d" % (vXw+p, vT1, vT2))
        if p: a("v_xor_b32 v%d, 4, v%d" % (vXw+p, vXw+p))
        a("v_lshlrev_b32 v%d, 4, v%d" % (vXw+p, vXw+p))
        a("v_lshl_add_u32 v%d, v%d, 7, v%d" % (vXw+p, vT0, vXw+p))
        a("v_add_u32 v%d, s%d, v%d" % (vXw+p, sT, vXw+p))
    a("v_and_b32 v%d, 31, v0" % vT0)
    a("v_lshrrev_b32 v%d, 5, v0" % vT1)
    a("v_bfe_u32 v%d, v0, 1, 3" % vT2)
    a("v_xor_b32 v%d, v%d, v%d" % (vT2, vT2, vT1))
    for jl in range(4):
        a("s_add_u32 s%d, s%d, %d" % (sT2, sWave, jl))
        a("s_and_b32 s%d, s%d, 3" % (sT2, sT2))
        a("s_lshl_b32 s%d, s%d, 1" % (sT2, sT2))
        a("v_xor_b32 v%d, s%d, v%d" % (vXr+jl, sT2, vT2))
        a("v_lshlrev_b32 v%d, 4, v%d" % (vXr+jl, vXr+jl))
        a("v_lshl_add_u32 v%d, v%d, 7, v%d" % (vXr+jl, vT0, vXr+jl))
        a("v_add_u32 v%d, s%d, v%d" % (vXr+jl, sT, vXr+jl))
    a("v_lshlrev_b32 v%d, 2, v%d" % (vBw, vT0))
    a("v_add_u32 v%d, s%d, v%d" % (vBw, sT, vBw))
    a("v_lshlrev_b32 v%d, 4, v%d" % (vBr, vT1))
    a("v_add_u32 v%d, s%d, v%d" % (vBr, sT, vBr))
    a("v_lshlrev_b32 v%d, 2, v%d" % (vCr, vT0))
    a("v_add_u32 v%d, %d, v%d" % (vCr, G1_CS, vCr))
    a("s_mul_i32 s%d, s%d, 384" % (sT2, sWave))
    a("v_add_u32 v%d, s%d, v%d" % (vCw, sT2, vCr))
    a("v_bfe_u32 v%d, v0, 4, 1" % vSt)
    a("v_mul_u32_u24 v%d, %d, v%d" % (vSt, 48*64, vSt))
    a("v_and_b32 v%d, 15, v0" % vT2)
    a("v_add_u32 v%d, v%d, v%d" % (vSt, vSt, vT2))
    a("v_lshl_add_u32 v%d, v%d, 4, v%d" % (vSt, vT1, vSt))
    a("v_lshlrev_b32 v%d, 4, v%d" % (vSt, vSt))
    a("s_lshl2_add_u32 s%d, s%d, s%d" % (sT2, sRb, sWave))
    a("s_mul_i32 s%d, s%d, 96" % (sT2, sT2))
    a("s_mul_i32 s%d, s%d, 3" % (sAo, sCb))
    a("s_add_u32 s%d, s%d, s%d" % (sAo, sAo, sT2))
    a("s_lshl_b32 s%d, s%d, 10" % (sAo, sAo))
    a("v_bfe_u32 v%d, v0, 2, 2" % vT2)
    a("v_lshl_add_u32 v%d, v%d, 3, v%d" % (vT2, vT1, vT2))
    a("v_mul_u32_u24 v%d, 192, v%d" % (vT2, vT2))
    a("v_bfe_u32 v%d, v0, 4, 1" % vT0)
    a("v_lshl_add_u32 v%d, v%d, 5, v%d" % (vT2, vT0, vT2))
    a("v_and_b32 v%d, 3, v0" % vT0)
    a("v_lshl_add_u32 v%d, v%d, 3, v%d" % (vT2, vT0, vT2))
    for jl in range(4):
        a("s_add_u32 s%d, s%d, %d" % (sT2, sWave, jl))
        a("s_and_b32 s%d, s%d, 3" % (sT2, sT2))
        a("s_mul_i32 s%d, s%d, %d" % (sT2, sT2, 16*192))
        a("v_add_u32 v%d, s%d, v%d" % (vWr+jl, sT2, vT2))
    for r in (vSx, vSq, vCs, vCs+1, vCs+2): a("v_mov_b32 v%d, 0" % r)

    def xtrans(st):
        out = []
        for i in range(4):
            out.append(("xw", "ds_write_b128 v%d, %s offset:%d" % (vXw+(i&1), v(xl(st)+4*i,4), i*1024)))
        for jl in range(4):
            out.append(("xf%d" % st, "ds_read_b128 %s, v%d" % (v(xl(st)+4*jl,4), vXr+jl)))
        return out
    def wreads(st, jl):
        out = []
        buf = vW + 12*(jl & 1)
        for p in range(3):
            for q in range(2):
                out.append(("wf%d_%d" % (st, jl), "ds_read_b64_tr_b16 %s, v%d offset:%d" % (v(buf+4*p+2*q,2), vWr+jl, (st % G1_NS)*G1_SLOT + q*4*192 + p*64)))
        return out
    def step(st, jl, side):
        buf = vW + 12*(jl & 1)
        xf = xl(st) + 4*jl
        val = []
        for r in range(4):
            val.append("v_dot2_f32_bf16 v%d, v%d, s%d, v%d" % (vSx, xf+r, sOne, vSx))
            val.append("v_dot2_f32_bf16 v%d, v%d, v%d, v%d" % (vSq, xf+r, xf+r, vSq))
        if jl == 0:
            for r in range(4):
                for p in range(3):
                    val.append("v_dot2_f32_bf16 v%d, v%d, s%d, v%d" % (vCs+p, buf+4*p+r, sOne, vCs+p))
        a.wait(lg=["wf%d_%d" % (st, jl), "xf%d" % st])
        nside = (len(side) + 2)//3
        nval = (len(val) + 2)//3
        for p in range(3):
            acc = vAcc + 16*p
            cin = "0" if (st == 0 and jl == 0) else v(acc,16)
            a("v_mfma_f32_32x32x16_bf16 %s, %s, %s, %s" % (v(acc,16), v(buf+4*p,4), v(xf,4), cin))
            for tag, ins in side[p*nside:(p+1)*nside]: a.lds(ins, tag)
            for ins in val[p*nval:(p+1)*nval]: a(ins)
    a.wait(vm="x0")
    a.stamp(1)
    for tag, ins in xtrans(0): a.lds(ins, tag)
    a.wait(vm="w0")
    a("s_barrier")
    a.stamp(2)
    for tag, ins in wreads(0, 0): a.lds(ins, tag)
    for st in range(10):
        step(st, 0, wreads(st, 1))
        if st == 9:
            a.nop(3)
            for p in range(3): a("v_mov_b32 v%d, v%d" % (vT0+p, vCs+p))
            a.nop(2)
            for p in range(3): a("v_permlane32_swap_b32 v%d, v%d" % (vCs+p, vT0+p))
            for p in range(3): a("v_add_f32 v%d, v%d, v%d" % (vCs+p, vCs+p, vT0+p))
            for p in range(3): a.lds("ds_write_b32 v%d, v%d offset:%d" % (vCw, vCs+p, p*128), "cw")
        side = wreads(st, 2)
        if st < 9:
            a.wait(vm="x%d" % (st+1))
            side = side + xtrans(st+1)
        step(st, 1, side)
        if st == 9:
            a.wait(lg="cw")
            a("s_barrier")
            vP = xl(2)
            for w in range(4):
                for p in range(3):
                    a.lds("ds_read_b32 v%d, v%d offset:%d" % (vP+w*3+p, vCr, w*384 + p*128), "cr")
        step(st, 2, wreads(st, 3))
        if st < 9:
            a.wait(vm="w%d" % (st+1), lg="wf%d_3" % st)
            a("s_barrier")
            side = wreads(st+1, 0)
            for tag, ins in side: a.lds(ins, tag)
            if st >= 1 and st + 4 < 10: wdma(st + 4)
            step(st, 3, [])
            if st + 8 < 10: xloads(st + 8)
        else:
            a.wait(lg="cr", vm="b1")
            for p in range(3):
                a("v_add_f32 v%d, v%d, v%d" % (vP+p, vP+p, vP+3+p))
                a("v_add_f32 v%d, v%d, v%d" % (vP+6+p, vP+6+p, vP+9+p))
            for p in range(3):
                a("v_add_f32 v%d, v%d, v%d" % (vP+p, vP+p, vP+6+p))
            side = []
            for p in range(3):
                side.append(("bw", "ds_write_b32 v%d, v%d offset:%d" % (vBw, vP+p, p*128)))
                side.append(("bw", "ds_write_b32 v%d, v%d offset:%d" % (vBw, vB1+p, 512 + p*128)))
            step(st, 3, side)
    a.stamp(3)
    vC = xl(2)
    vB = xl(5)
    for p in range(3):
        for q in range(4):
            a.lds("ds_read_b128 %s, v%d offset:%d" % (v(vC+16*p+4*q,4), vBr, p*128 + q*32), "br%d" % p)
            a.lds("ds_read_b128 %s, v%d offset:%d" % (v(vB+16*p+4*q,4), vBr, 512 + p*128 + q*32), "br%d" % p)
    a("v_mov_b32 v%d, v%d" % (vT0, vSx))
    a("v_mov_b32 v%d, v%d" % (vT1, vSq))
    a.nop(2)
    a("v_permlane32_swap_b32 v%d, v%d" % (vSx, vT0))
    a("v_permlane32_swap_b32 v%d, v%d" % (vSq, vT1))
    a("v_add_f32 v%d, v%d, v%d" % (vSx, vSx, vT0))
    a("v_add_f32 v%d, v%d, v%d" % (vSq, vSq, vT1))
    emit_rowstats(a, vSx, vSq, vMb, vRs, vT0, vT1)
    a("v_mul_f32 v%d, v%d, v%d" % (vMb, vMb, vRs))
    vE = vW
    sL2 = 36
    a("s_mov_b32 s36, %s" % fhex(LOG2E)); a("s_mov_b32 s37, %s" % fhex(LOG2E))
    a("s_mov_b32 s38, 2.0"); a("s_mov_b32 s39, 2.0")
    a("s_mov_b32 s40, -2.0"); a("s_mov_b32 s41, -2.0")
    for p in range(3):
        a.wait(lg="br%d" % p)
        for j in range(2):
            A = vAcc + 16*p + 8*j; C = vC + 16*p + 8*j; B = vB + 16*p + 8*j
            for k in range(4):
                a("v_pk_fma_f32 %s, %s, %s, %s op_sel_hi:[1,0,1] neg_lo:[0,1,0] neg_hi:[0,1,0]" % (v(B+2*k,2), v(C+2*k,2), v(vMb,2), v(B+2*k,2)))
            for k in range(4):
                a("v_pk_fma_f32 %s, %s, %s, %s op_sel_hi:[1,0,1]" % (v(A+2*k,2), v(A+2*k,2), v(vRs,2), v(B+2*k,2)))
            for k in range(4):
                a("v_pk_mul_f32 %s, %s, s[36:37]" % (v(vE+2*k,2), v(A+2*k,2)))
            for k in range(8): a("v_exp_f32 v%d, v%d" % (vE+k, vE+k))
            a("s_nop 0")
            for k in range(4):
                a("v_pk_add_f32 %s, %s, s[38:39]" % (v(vE+8+2*k,2), v(vE+2*k,2)))
            for k in range(4):
                a("v_pk_fma_f32 %s, %s, %s, s[38:39]" % (v(vE+2*k,2), v(vE+2*k,2), v(vE+8+2*k,2)))
            for k in range(8): a("v_rcp_f32 v%d, v%d" % (vE+k, vE+k))
            a("s_nop 0")
            for k in range(4):
                a("v_pk_mul_f32 %s, %s, %s" % (v(vE+2*k,2), v(vE+2*k,2), v(A+2*k,2)))
            for k in range(4):
                a("v_pk_fma_f32 %s, %s, s[40:41], %s" % (v(A+2*k,2), v(vE+2*k,2), v(A+2*k,2)))
            for k in range(4):
                a("v_cvt_pk_bf16_f32 v%d, v%d, v%d" % (C+k, A+2*k, A+2*k+1))
            a.vmem("buffer_store_dwordx4 %s, v%d, s[%d:%d], s%d offen offset:%d" % (v(C,4), vSt, sAct, sAct+3, sAo, p*1024 + j*512), "st")
    a.stamp(4)
    if a.PROF:
        a("s_waitcnt vmcnt(0)")
    a.stamp(5)
    a.stamp_dump(6, sWave, 240, (203 << 20))
    a("s_endpgm")
    a.vm = []; a.lg = []
```

```python
from asmlib import *
from common import *

G2_RED = 0
G2_P = 61440
G2_PW = 3328
G2_PRS = 40

def emit_gemm2(a, s_idx, waitflags=None):
    DEPTH = 4
    vT0, vT1, vT2 = 1, 2, 3
    vOff = 4
    vRW = 8
    vRR, vPW, vPR, vXO, vSO = 11, 12, 13, 14, 15
    vAcc = 16
    vBuf = 96
    vX = 240
    sP = 8
    sWave, sRb, sCb, sT, sT2 = 14, 15, 16, 17, 18
    sA = 20
    sB = 24
    sAct, sW2, sXs, sOut, sST = 32, 36, 40, 44, 48
    a.c("================ role: gemm2 + final ================")
    a.stamp(0)
    a("s_load_dwordx2 s[8:9], s[0:1], %d" % KA_X)
    a("s_load_dwordx2 s[10:11], s[0:1], %d" % KA_OUT)
    a("s_load_dwordx2 s[12:13], s[0:1], %d" % KA_WS)
    a("v_lshrrev_b32 v%d, 6, v0" % vT0)
    a("v_and_b32 v0, 63, v0")
    a("v_readfirstlane_b32 s%d, v%d" % (sWave, vT0))
    a("v_lshlrev_b32 v%d, 4, v0" % vOff)
    a("v_add_u32 v%d, 4096, v%d" % (vOff+1, vOff))
    a("v_add_u32 v%d, 8192, v%d" % (vOff+2, vOff))
    a("s_bfe_u32 s%d, s%d, 0x20001" % (sRb, s_idx))
    a("s_lshl_b32 s%d, s%d, 3" % (sRb, sRb))
    a("s_lshr_b32 s%d, s%d, 5" % (sT, s_idx))
    a("s_add_u32 s%d, s%d, s%d" % (sRb, sRb, sT))
    a("s_and_b32 s%d, s%d, 1" % (sCb, s_idx))
    a("s_lshl_b32 s%d, s%d, 2" % (sCb, sCb))
    a("s_bfe_u32 s%d, s%d, 0x20003" % (sT, s_idx))
    a("s_add_u32 s%d, s%d, s%d" % (sCb, sCb, sT))
    a("s_mul_i32 s%d, s%d, %d" % (sT2, sWave, 12*1024))
    for i in range(4):
        a("s_add_u32 s%d, s%d, %d" % (sT, sWave, i))
        a("s_and_b32 s%d, s%d, 3" % (sT, sT))
        a("s_lshl2_add_u32 s%d, s%d, s%d" % (sT, sRb, sT))
        a("s_mul_i32 s%d, s%d, %d" % (sT, sT, 48*1024))
        a("s_add_u32 s%d, s%d, s%d" % (sA+i, sT, sT2))
    a("s_mul_i32 s%d, s%d, %d" % (sT, sCb, 5*48*1024))
    a("s_add_u32 s%d, s%d, s%d" % (sB, sT, sT2))
    for n in range(1, 5):
        a("s_add_u32 s%d, s%d, %d" % (sB+n, sB, n*48*1024))
    a("s_waitcnt lgkmcnt(0)")
    a.srd_off(sAct, 12, WS_ACT, ACT_BYTES)
    a.srd_off(sW2, 12, WS_W2F, W2F_BYTES)
    def fA(st, i): return vBuf + (st % DEPTH)*36 + 4*i
    def fB(st, n): return vBuf + (st % DEPTH)*36 + 16 + 4*n
    def loads(st):
        out = []
        order = [("A",0),("B",0),("B",1),("A",1),("B",2),("B",3),("A",2),("B",4),("A",3)]
        for kind, i in order:
            if kind == "A":
                out.append("buffer_load_dwordx4 %s, v%d, s[%d:%d], s%d offen offset:%d" % (v(fA(st,i),4), vOff + st//4, sAct, sAct+3, sA+i, (st%4)*1024))
            else:
                out.append("buffer_load_dwordx4 %s, v%d, s[%d:%d], s%d offen offset:%d" % (v(fB(st,i),4), vOff + st//4, sW2, sW2+3, sB+i, (st%4)*1024))
        return out
    for st in range(DEPTH):
        for ins in loads(st): a.vmem(ins, "s%d" % st)
    a.srd(sXs, 8, 2048*640*2)
    a.srd(sOut, 10, 2048*640*2)
    a.srd_off(sST, 12, WS_ST, ST_BYTES)
    a("v_and_b32 v%d, 15, v0" % vT0)
    a("v_lshrrev_b32 v%d, 4, v0" % vT1)
    a("s_lshl2_add_u32 s%d, s%d, s%d" % (sT, sRb, sWave))
    a("s_mul_i32 s%d, s%d, %d" % (sT2, sT, 16*1280))
    a("v_mul_u32_u24 v%d, 1280, v%d" % (vXO, vT0))
    a("v_lshl_add_u32 v%d, v%d, 4, v%d" % (vXO, vT1, vXO))
    a("v_add_u32 v%d, s%d, v%d" % (vXO, sT2, vXO))
    a("s_mul_i32 s%d, s%d, 160" % (sT2, sCb))
    a("v_add_u32 v%d, s%d, v%d" % (vXO, sT2, vXO))
    a("v_lshlrev_b32 v%d, 12, v%d" % (vSO, vT0))
    a("v_lshl_add_u32 v%d, v%d, 8, v%d" % (vSO, vT1, vSO))
    a("s_mul_i32 s%d, s%d, %d" % (sT2, sCb, 80*4096))
    a("v_add_u32 v%d, s%d, v%d" % (vSO, sT2, vSO))
    a("s_lshr_b32 s%d, s%d, 5" % (sT2, sT))
    a("s_lshl_b32 s%d, s%d, 10" % (sT2, sT2))
    a("v_add_u32 v%d, s%d, v%d" % (vSO, sT2, vSO))
    a("s_and_b32 s%d, s%d, 15" % (sT2, sT))
    a("s_lshl_b32 s%d, s%d, 4" % (sT2, sT2))
    a("v_add_u32 v%d, s%d, v%d" % (vSO, sT2, vSO))
    a("s_bfe_u32 s%d, s%d, 0x10004" % (sT2, sT))
    a("s_lshl_b32 s%d, s%d, 3" % (sT2, sT2))
    a("v_add_u32 v%d, s%d, v%d" % (vSO, sT2, vSO))
    for i in range(1, 4):
        a("s_add_u32 s%d, s%d, %d" % (sT, sWave, i))
        a("s_and_b32 s%d, s%d, 3" % (sT, sT))
        a("s_mul_i32 s%d, s%d, 15360" % (sT, sT))
        a("s_add_u32 s%d, s%d, %d" % (sT, sT, G2_RED + (i-1)*5120))
        a("v_add_u32 v%d, s%d, v%d" % (vRW+i-1, sT, vOff))
    a("s_mul_i32 s%d, s%d, 15360" % (sT, sWave))
    a("v_add_u32 v%d, s%d, v%d" % (vRR, sT, vOff))
    a("s_mul_i32 s%d, s%d, %d" % (sT, sWave, G2_PW))
    a("s_add_u32 s%d, s%d, %d" % (sT, sT, G2_P))
    a("v_mul_u32_u24 v%d, %d, v%d" % (vPW, G2_PRS, vT0))
    a("v_lshl_add_u32 v%d, v%d, 3, v%d" % (vPW, vT1, vPW))
    a("v_add_u32 v%d, s%d, v%d" % (vPW, sT, vPW))
    a("v_lshrrev_b32 v%d, 2, v%d" % (vT2, vT0))
    a("v_lshl_add_u32 v%d, v%d, 3, v%d" % (vT2, vT1, vT2))
    a("v_mul_u32_u24 v%d, %d, v%d" % (vPR, G2_PRS, vT2))
    a("v_and_b32 v%d, 3, v0" % vT2)
    a("v_lshl_add_u32 v%d, v%d, 3, v%d" % (vPR, vT2, vPR))
    a("v_add_u32 v%d, s%d, v%d" % (vPR, sT, vPR))
    for st in range(12):
        a.wait(vm="s%d" % st)
        if st == 0: a.stamp(1)
        mf = []
        for i in range(4):
            for n in range(5):
                acc = vAcc + (i*5+n)*4
                mf.append("v_mfma_f32_16x16x32_bf16 %s, %s, %s, %s" % (v(acc,4), v(fA(st,i),4), v(fB(st,n),4), "0" if st == 0 else v(acc,4)))
        for m in mf: a(m)
        if st + DEPTH < 12:
            for ins in loads(st + DEPTH): a.vmem(ins, "s%d" % (st + DEPTH))
        if st == 12 - DEPTH:
            for k in range(3):
                a.vmem("buffer_load_dwordx4 %s, v%d, s[%d:%d], 0 offen offset:%d" % (v(vX+4*k,4), vXO, sXs, sXs+3, 64*k), "x")
    a.stamp(2)
    a.nop(8)
    for i in range(1, 4):
        for n in range(5):
            a.lds("ds_write_b128 v%d, %s offset:%d" % (vRW+i-1, v(vAcc+(i*5+n)*4,4), n*1024), "rw")
    if waitflags:
        waitflags(a)
    vS = vBuf + 64
    for n in range(5):
        a("s_mov_b32 s%d, %d" % (sT, n*16*4096))
        a.vmem("buffer_load_dwordx2 %s, v%d, s[%d:%d], s%d offen%s" % (v(vS+2*n,2), vSO, sST, sST+3, sT, " sc1" if waitflags else ""), "s")
    a.wait(lg="all")
    a("s_barrier")
    vR = vBuf
    for n in range(5):
        for sl in range(3):
            a.lds("ds_read_b128 %s, v%d offset:%d" % (v(vR+(n*3+sl)*4,4), vRR, G2_RED + sl*5120 + n*1024), "rr%d" % n)
    vE = vBuf + 80
    for n in range(5):
        a.wait(lg="rr%d" % n)
        acc = vAcc + n*4
        for h in range(2):
            a("v_pk_add_f32 %s, %s, %s" % (v(vR+(n*3)*4+2*h,2), v(vR+(n*3)*4+2*h,2), v(vR+(n*3+1)*4+2*h,2)))
            a("v_pk_add_f32 %s, %s, %s" % (v(acc+2*h,2), v(acc+2*h,2), v(vR+(n*3+2)*4+2*h,2)))
        for h in range(2):
            a("v_pk_add_f32 %s, %s, %s" % (v(acc+2*h,2), v(acc+2*h,2), v(vR+(n*3)*4+2*h,2)))
        for r in range(4): a("v_mul_f32 v%d, %s, v%d" % (vE+4*n+r, fhex(-LOG2E), acc+r))
        for r in range(4): a("v_exp_f32 v%d, v%d" % (vE+4*n+r, vE+4*n+r))
        a("s_nop 0")
        for r in range(4): a("v_add_f32 v%d, 1.0, v%d" % (vE+4*n+r, vE+4*n+r))
        for r in range(4): a("v_rcp_f32 v%d, v%d" % (vE+4*n+r, vE+4*n+r))
        a("s_nop 0")
        for r in range(4): a("v_mul_f32 v%d, v%d, v%d" % (acc+r, acc+r, vE+4*n+r))
    a.wait(vm="s")
    a.stamp(3)
    for n in range(5):
        acc = vAcc + n*4
        a("v_lshlrev_b32 v%d, 16, v%d" % (vE+0, vS+2*n))
        a("v_and_b32 v%d, 0xffff0000, v%d" % (vE+1, vS+2*n))
        a("v_lshlrev_b32 v%d, 16, v%d" % (vE+2, vS+2*n+1))
        a("v_and_b32 v%d, 0xffff0000, v%d" % (vE+3, vS+2*n+1))
        for r in range(4): a("v_mul_f32 v%d, v%d, v%d" % (acc+r, acc+r, vE+r))
        a("v_cvt_pk_bf16_f32 v%d, v%d, v%d" % (vE+4+2*n, acc, acc+1))
        a("v_cvt_pk_bf16_f32 v%d, v%d, v%d" % (vE+5+2*n, acc+2, acc+3))
        a.lds("ds_write_b64 v%d, %s offset:%d" % (vPW, v(vE+4+2*n,2), n*16*G2_PRS), "pw")
    vPq = vBuf
    for k in range(3):
        for q in range(2):
            a.lds("ds_read_b64_tr_b16 %s, v%d offset:%d" % (v(vPq+4*k+2*q,2), vPR, (32*k + 4*q)*G2_PRS), "pr%d" % k)
    a.wait(vm="x")
    for k in range(3):
        a.wait(lg="pr%d" % k)
        for j in range(4):
            p, x = vPq+4*k+j, vX+4*k+j
            a("v_lshlrev_b32 v%d, 16, v%d" % (vE+0, p))
            a("v_and_b32 v%d, 0xffff0000, v%d" % (vE+1, p))
            a("v_lshlrev_b32 v%d, 16, v%d" % (vE+2, x))
            a("v_and_b32 v%d, 0xffff0000, v%d" % (vE+3, x))
            a("v_add_f32 v%d, v%d, v%d" % (vE+0, vE+0, vE+2))
            a("v_add_f32 v%d, v%d, v%d" % (vE+1, vE+1, vE+3))
            a("v_cvt_pk_bf16_f32 v%d, v%d, v%d" % (x, vE+0, vE+1))
        if k == 2:
            a("s_mov_b32 exec_hi, 0")
        a.vmem("buffer_store_dwordx4 %s, v%d, s[%d:%d], 0 offen offset:%d" % (v(vX+4*k,4), vXO, sOut, sOut+3, 64*k), "st")
    if a.PROF:
        a("s_waitcnt vmcnt(0)")
    a.stamp(4)
    a.stamp_dump(5, sWave, 200, (202 << 20))
    a("s_endpgm")
    a.vm = []; a.lg = []
```

```python
from asmlib import *
from common import *
import numpy as np

ROWB = 272
KG_LDS_PER_WAVE = 64*ROWB

def cmul(out, dst, a, b, tmp):
    i1 = "v_pk_mul_f32 %s, %s, %s op_sel:[0,0] op_sel_hi:[0,1]" % (v(tmp,2), v(a,2), v(b,2))
    i2 = "v_pk_fma_f32 %s, %s, %s, %s op_sel:[1,1,0] op_sel_hi:[1,0,1] neg_lo:[0,1,0]" % (v(dst,2), v(a,2), v(b,2), v(tmp,2))
    return i1, i2

def emit_kgen(a, s_idx):
    vLane, vT0, vT1, vOff = 0, 1, 2, 3
    vDt, vFrag = 4, 5
    vP = 6
    vWA = 24
    vD = 40
    vFA = 56
    vFB = 88
    vW1, vW8, vW16, vM = 120, 122, 124, 126
    vX = 140
    vYE, vYO = 158, 160
    vTA, vTB = 162, 164
    vZ = 166
    vC = 170
    vS = 178
    sPtr = 8
    sWs = 24
    sWave, sD, sE, sO, sT = 26, 27, 28, 29, 30
    sSrd = 32
    sDs = 36
    vDs = 190
    a.c("================ role: kgen ================")
    a.stamp(0)
    a("s_load_dwordx16 s[8:23], s[0:1], 0")
    a("s_load_dwordx2 s[%d:%d], s[0:1], %d" % (sWs, sWs+1, KA_WS))
    a("s_load_dwordx2 s[%d:%d], s[0:1], %d" % (sDs, sDs+1, KA_DSKIP))
    a("v_mov_b32 v%d, 0" % vDs)
    a("v_lshrrev_b32 v%d, 6, v0" % vT0)
    a("v_and_b32 v0, 63, v0")
    a("v_readfirstlane_b32 s%d, v%d" % (sWave, vT0))
    for i in range(18):
        a("v_mov_b32 v%d, 0" % (vP+i))
    a("v_mov_b32 v%d, 0" % vDt)
    a("s_lshl_b32 s%d, s%d, 2" % (sD, s_idx))
    a("s_add_u32 s%d, s%d, s%d" % (sD, sD, sWave))
    a("s_mul_i32 s%d, s%d, 384" % (sT, sD))
    a("v_lshlrev_b32 v%d, 1, v0" % vOff)
    a("v_add_u32 v%d, s%d, v%d" % (vOff, sT, vOff))
    a("s_lshl_b32 s%d, s%d, 1" % (sT, sD))
    a("v_mov_b32 v%d, s%d" % (vT1, sT))
    a("s_waitcnt lgkmcnt(0)")
    a.vmem("global_load_short_d16_hi v%d, v%d, s[22:23]" % (vDt, vT1), "dt")
    for st in range(3):
        for k in range(6):
            a.vmem("global_load_short_d16_hi v%d, v%d, s[%d:%d] offset:%d" % (vP+st*6+k, vOff, sPtr+2+2*k, sPtr+3+2*k, 128*st), "p%d" % st)
    a.vmem("global_load_short_d16_hi v%d, v%d, s[%d:%d]" % (vDs, vT1, sDs, sDs+1), "p2")
    a.srd_off(sSrd, sWs, WS_KR, KR_BYTES)
    a("s_mul_i32 s%d, s%d, %d" % (sE, sD, KR_STRIDE))
    a("s_add_u32 s%d, s%d, %d" % (sO, sE, RO_OFF))
    a("s_mul_i32 s%d, s%d, %d" % (sT, sWave, KG_LDS_PER_WAVE))
    a("v_lshlrev_b32 v%d, 2, v0" % vT0)
    a("v_add_u32 v%d, s%d, v%d" % (vWA, sT, vT0))
    for g in range(1, 16):
        a("v_add_u32 v%d, %d, v%d" % (vWA+g, g*4*ROWB, vWA))
    a("v_and_b32 v%d, 31, v0" % vT0)
    a("v_mul_u32_u24 v%d, %d, v%d" % (vFrag, ROWB, vT0))
    a("v_lshrrev_b32 v%d, 5, v0" % vT0)
    a("v_lshl_add_u32 v%d, v%d, 4, v%d" % (vFrag, vT0, vFrag))
    a("v_add_u32 v%d, s%d, v%d" % (vFrag, sT, vFrag))
    Lhi = np.float32(LOG2E); Llo = np.float32(LOG2E - float(Lhi))
    a.wait(vm="dt")
    a.stamp(1)
    a("v_mul_f32 v%d, %s, v%d" % (vS, fhex(Lhi), vDt))
    a("s_mov_b32 s%d, %s" % (sT, fhex(Lhi)))
    a("v_fma_f32 v%d, v%d, s%d, -v%d" % (vS+1, vDt, sT, vS))
    a("v_fmamk_f32 v%d, v%d, %s, v%d" % (vS+1, vDt, fhex(Llo), vS+1))
    a("v_exp_f32 v%d, v%d" % (vS, vS))
    a("v_mul_f32 v%d, %s, v%d" % (vS+1, fhex(0.6931471805599453), vS+1))
    a("v_fma_f32 v%d, v%d, v%d, v%d" % (vS, vS, vS+1, vS))
    a("v_cvt_pk_bf16_f32 v%d, v%d, v%d" % (vDt, vS, vS))
    a("v_and_b32 v%d, 0xffff0000, v%d" % (vDt, vDt))

    def wr2(row0, r0, r1):
        g, o = row0 // 4, row0 % 4
        return ("LDS", "ds_write2_b32 v%d, v%d, v%d offset0:%d offset1:%d" % (vWA+g, r0, r1, o*68, (o+1)*68))
    def xrow(h, q):
        return 8*(q >> 2) + 4*h + (q & 3)

    pending_mfma = []
    for st in range(3):
        P = vP + st*6
        setup = []
        e = setup.append
        aL, bL = vS, vS+1
        e("v_mul_f32 v%d, v%d, v%d" % (aL, vDt, P+0))
        e("v_mul_f32 v%d, v%d, v%d" % (bL, vDt, P+1))
        e("v_mul_f32 v%d, %s, v%d" % (aL, fhex(LOG2E), aL))
        e("v_mul_f32 v%d, %s, v%d" % (bL, fhex(INV2PI), bL))
        e("v_mul_f32 v%d, v%d, v%d" % (vZ, vDt, P+2))
        e("v_mul_f32 v%d, v%d, v%d" % (vZ+1, vDt, P+3))
        i1, i2 = cmul(None, vX, P+4, vZ, vTA)
        e(i1); e(i2)
        evs = [(1.0, vW1), (8.0, vW8), (256.0, vM)]
        for j, (l, dst) in enumerate(evs):
            m, p, r = vS+2+3*j, vS+3+3*j, vS+4+3*j
            if l == 1.0:
                e("v_exp_f32 v%d, v%d" % (m, aL))
                e("v_rndne_f32 v%d, v%d" % (r, bL))
                e("v_sub_f32 v%d, v%d, v%d" % (p, bL, r))
            else:
                e("v_mul_f32 v%d, %s, v%d" % (m, fhex(l), aL))
                e("v_mul_f32 v%d, %s, v%d" % (p, fhex(l), bL))
                e("v_exp_f32 v%d, v%d" % (m, m))
                e("v_rndne_f32 v%d, v%d" % (r, p))
                e("v_sub_f32 v%d, v%d, v%d" % (p, p, r))
        for j, (l, dst) in enumerate(evs):
            m, p, r = vS+2+3*j, vS+3+3*j, vS+4+3*j
            e("v_cos_f32 v%d, v%d" % (dst, p))
            e("v_sin_f32 v%d, v%d" % (dst+1, p))
        e("s_nop 0")
        for j, (l, dst) in enumerate(evs):
            m = vS+2+3*j
            e("v_mul_f32 v%d, v%d, v%d" % (dst, dst, m))
            e("v_mul_f32 v%d, v%d, v%d" % (dst+1, dst+1, m))
        i1, i2 = cmul(None, vW16, vW8, vW8, vTA)
        j1, j2 = cmul(None, vM+2, vM, vM, vTB)
        e(i1); e(j1); e(i2); e(j2)
        i1, i2 = cmul(None, vM+4, vM+2, vM, vTA)
        j1, j2 = cmul(None, vM+6, vM+2, vM+2, vTB)
        e(i1); e(j1); e(i2); e(j2)
        i1, i2 = cmul(None, vM+8, vM+6, vM, vTA)
        j1, j2 = cmul(None, vM+10, vM+6, vM+2, vTB)
        e(i1); e(j1); e(i2); e(j2)
        i1, i2 = cmul(None, vM+12, vM+6, vM+4, vTA)
        e(i1); e("v_mov_b32 v%d, 0x3f80" % (vC+0)); e(i2)
        body = []
        e = body.append
        e("v_cvt_pk_bf16_f32 v%d, v%d, v%d" % (vC+1, vW8, vW8+1))
        e(wr2(32, vC+0, vC+1))
        curE, curO = vW16, None
        i1, i2 = cmul(None, vYO, vW8, vW16, vTB)
        e(i1)
        x1, x2 = cmul(None, vX+2, vX, vW1, vTA)
        e(x1); e(i2); e(x2)
        xi = 1
        for pr in range(1, 16):
            c0, c1 = vC + 2*(pr & 1), vC + 2*(pr & 1) + 1
            e("v_cvt_pk_bf16_f32 v%d, v%d, v%d" % (c0, curE, curE+1))
            e("v_cvt_pk_bf16_f32 v%d, v%d, v%d" % (c1, vYO, vYO+1))
            if pr < 15:
                i1, i2 = cmul(None, vYE, curE, vW16, vTA)
                j1, j2 = cmul(None, vYO, vYO, vW16, vTB)
                e(i1); e(j1)
            e(wr2(32 + 2*pr, c0, c1))
            if xi < 8:
                x1, x2 = cmul(None, vX+2*(xi+1), vX+2*xi, vW1, vZ)
                e(x1)
            if pr < 15:
                e(i2); e(j2)
                curE = vYE
            if xi < 8:
                e(x2); xi += 1
        def cvx(dst, src):
            return "v_cvt_pk_bf16_f32 v%d, v%d, -v%d" % (dst, src, src+1)
        for q in range(0, 8, 2):
            c0 = vC + 4 + (q & 2)
            e(cvx(c0, vX+2*q)); e(cvx(c0+1, vX+2*q+2))
            e(wr2(xrow(0, q), c0, c0+1))
        def prod(dstpair, tmp, xidx, midx):
            return cmul(None, dstpair, vX+2*xidx, vM+2*(midx-1), tmp)
        pairs = [
            (xrow(0,8),  (8,0), (0,2)),
            (xrow(0,10), (4,2), (8,2)),
            (xrow(0,12), (0,4), (8,4)),
            (xrow(0,14), (0,5), (8,5)),
            (xrow(1,10), (4,3), (8,3)),
            (xrow(1,12), (0,6), (8,6)),
            (xrow(1,14), (0,7), (8,7)),
        ]
        k = 0
        for row0, p0, p1 in pairs:
            c0 = vC + 2*(k & 3); k += 1
            ins = []
            srcs = []
            for idx, (xx, mm) in enumerate((p0, p1)):
                if mm == 0:
                    srcs.append(vX+2*xx)
                else:
                    ins.append(prod(vZ+2*idx, (vTA, vTB)[idx], xx, mm)); srcs.append(vZ+2*idx)
            for t in ins: e(t[0])
            for t in ins: e(t[1])
            e(cvx(c0, srcs[0])); e(cvx(c0+1, srcs[1]))
            e(wr2(row0, c0, c0+1))
        i = prod(vZ, vTA, 0, 1); j = prod(vZ+2, vTB, 2, 1)
        e(i[0]); e(j[0]); e(i[1]); e(j[1])
        e(cvx(vC+0, vZ)); e(cvx(vC+1, vZ+2))
        e(wr2(xrow(1,0), vC+0, vC+0))
        i = prod(vZ, vTA, 4, 1); j = prod(vZ+2, vTB, 6, 1)
        e(i[0]); e(j[0]); e(i[1]); e(j[1])
        e(cvx(vC+2, vZ)); e(cvx(vC+3, vZ+2))
        e(wr2(xrow(1,2), vC+1, vC+2))
        e(wr2(xrow(1,4), vC+2, vC+2))
        i = prod(vZ, vTA, 8, 1); j = prod(vZ+2, vTB, 0, 3)
        e(i[0]); e(j[0]); e(i[1]); e(j[1])
        e(cvx(vC+4, vZ)); e(cvx(vC+5, vZ+2))
        e(wr2(xrow(1,6), vC+3, vC+4))
        e(wr2(xrow(1,8), vC+4, vC+5))
        a.c("---- kgen set %d" % st)
        a.wait(vm="p%d" % st)
        a.stamp(2+st)
        for t in setup: a(t)
        if pending_mfma:
            a.wait(lg="frag")
        cnt = 0
        for t in body:
            if isinstance(t, tuple):
                a.lds(t[1], "w")
            else:
                a(t)
            cnt += 1
            if pending_mfma and cnt % 10 == 0:
                a(pending_mfma.pop(0))
        assert not pending_mfma
        for kk in range(8):
            a.lds("ds_read_b128 %s, v%d offset:%d" % (v(vFA+4*kk,4), vFrag, 32*kk), "frag")
            a.lds("ds_read_b128 %s, v%d offset:%d" % (v(vFB+4*kk,4), vFrag, 32*kk + 32*ROWB), "frag")
        for kk in range(8):
            cin = "0" if (st == 0 and kk == 0) else v(vD,16)
            pending_mfma.append("v_mfma_f32_32x32x16_bf16 %s, %s, %s, %s" % (v(vD,16), v(vFA+4*kk,4), v(vFB+4*kk,4), cin))
    vOA, vOC, vOT = vS, vS+1, vS+2
    a("v_lshlrev_b32 v%d, 4, v0" % vOA)
    a("v_sub_u32 v%d, 1008, v%d" % (vOA, vOA))
    a("v_and_b32 v%d, 31, v0" % vT0)
    a("v_lshlrev_b32 v%d, 4, v%d" % (vOC, vT0))
    a("v_lshrrev_b32 v%d, 5, v0" % vT1)
    a("v_lshl_add_u32 v%d, v%d, 10, v%d" % (vOC, vT1, vOC))
    a("v_sub_u32 v%d, 1520, v%d" % (vOC, vOC))
    a("v_cmp_eq_u32 vcc, 0, v0")
    a("v_and_b32 v%d, 1, v0" % vT0)
    a("s_nop 0")
    a("v_cndmask_b32 v%d, 0, v%d, vcc" % (vDs, vDs))
    a("v_cmp_eq_u32 vcc, 1, v%d" % vT0)
    a("v_lshlrev_b32 v%d, 4, v%d" % (vOT, vT0))
    a("v_lshrrev_b32 v%d, 1, v0" % vT1)
    a("v_mul_u32_u24 v%d, %d, v%d" % (vT1, RO_OFF, vT1))
    a("v_add3_u32 v%d, v%d, v%d, s%d" % (vOT, vOT, vT1, sE))
    a("v_add_u32 v%d, 4096, v%d" % (vOT, vOT))
    a.wait(lg="frag")
    a.stamp(5)
    for t in pending_mfma: a(t)
    a.nop(18)
    a.stamp(6)
    d = lambda q: vD + q
    a("v_add_f32 v%d, v%d, v%d" % (d(0), d(0), vDs))
    O = vFA
    def pk(dst, lo, hi): a("v_cvt_pk_bf16_f32 v%d, v%d, v%d" % (dst, lo, hi))
    def st(reg, voff, soff, imm): a.vmem("buffer_store_dwordx4 %s, v%d, s[%d:%d], s%d offen offset:%d" % (v(reg,4), voff, sSrd, sSrd+3, soff, imm), "st")
    for i, (lo, hi) in enumerate([(7,6),(5,4),(3,2),(1,0)]): pk(O+i, d(lo), d(hi))
    st(O, vOA, sE, 3072)
    for i, (lo, hi) in enumerate([(8,7),(6,5),(4,3),(2,1)]): pk(O+4+i, d(lo), d(hi))
    st(O+4, vOA, sO, 3072)
    for i, (lo, hi) in enumerate([(11,11),(10,10),(10,9),(9,9)]): pk(O+8+i, d(lo), d(hi))
    st(O+8, vOA, sE, 2048)
    for i, (lo, hi) in enumerate([(11,11),(11,10),(10,10),(9,9)]): pk(O+12+i, d(lo), d(hi))
    st(O+12, vOA, sO, 2048)
    for sl, (qa, imm) in enumerate([(12, 512), (14, 0)]):
        x = vS+4+sl
        a("v_cndmask_b32 v%d, v%d, v%d, vcc" % (x, d(qa), d(qa+1)))
        B = O+16+8*sl
        for i, (lo, hi) in enumerate([(d(qa+1),d(qa+1)),(d(qa+1),x),(d(qa),d(qa)),(d(qa),d(qa))]): pk(B+i, lo, hi)
        st(B, vOC, sE, imm)
        for i, (lo, hi) in enumerate([(d(qa+1),d(qa+1)),(d(qa+1),d(qa+1)),(x,d(qa)),(d(qa),d(qa))]): pk(B+4+i, lo, hi)
        st(B+4, vOC, sO, imm)
    T = vFB
    a("v_readlane_b32 s%d, v%d, 0" % (sT, d(0)))
    a("v_mov_b32 v%d, 0" % (T+1)); a("v_mov_b32 v%d, 0" % (T+2)); a("v_mov_b32 v%d, 0" % (T+3))
    a("v_cvt_pk_bf16_f32 v%d, s%d, 0" % (T+4, sT))
    a("v_cmp_eq_u32 vcc, 2, v0")
    a("s_nop 1")
    a("v_cndmask_b32 v%d, 0, v%d, vcc" % (T, T+4))
    a("s_mov_b64 exec, 0xf")
    a.vmem("buffer_store_dwordx4 %s, v%d, s[%d:%d], 0 offen" % (v(T,4), vOT, sSrd, sSrd+3), "st")
    if a.PROF:
        a("s_waitcnt vmcnt(0)")
    a.stamp(7)
    a.stamp_dump(8, sWave, 200)
    a("s_endpgm")
    a.vm = []; a.lg = []
```

```python
import sys
from asmlib import *
from common import *
from kgen import *
from aux import *
from conv import *
from gemm1 import *
from gemm2 import *
HDR = open("recurrent_scan__ssm_conv_s4__dense_activation_mish__prompt.s.ref").read().split("; Override launch")[0]
def build(path, prof=False, mode="3k"):
    a = Asm()
    a.PROF = prof
    a.raw(HDR.rstrip())
    a.raw("; @launch kernel=k1_kernel grid=(504,1,1) block=(256,1,1) lds=81920")
    a.raw("; @launch kernel=k2_kernel grid=(160,1,1) block=(256,1,1) lds=81920")
    a.raw("; @launch kernel=k3_kernel grid=(256,1,1) block=(256,1,1) lds=81920")
    a.raw('.amdgcn_target "amdgcn-amd-amdhsa--gfx950"')
    a.raw(".text")
    kernel_begin(a, "k1_kernel")
    a("s_cmp_ge_u32 s2, 256")
    a("s_cbranch_scc1 L_aux")
    a("s_mov_b32 s3, s2")
    emit_gemm1(a, 3)
    a.label("L_aux")
    a("s_cmp_ge_u32 s2, 504")
    a("s_cbranch_scc1 L_end1")
    a("s_cmp_ge_u32 s2, 480")
    a("s_cbranch_scc1 L_w2f")
    a("s_cmp_ge_u32 s2, 416")
    a("s_cbranch_scc1 L_lnt")
    a("s_sub_u32 s3, s2, 256")
    emit_kgen(a, 3)
    a.label("L_lnt")
    a("s_sub_u32 s3, s2, 416")
    emit_lnt(a, 3)
    a.label("L_w2f")
    a("s_sub_u32 s3, s2, 480")
    emit_w2f(a, 3)
    a.label("L_end1")
    a("s_endpgm")
    kernel_begin(a, "k2_kernel")
    a("s_cmp_ge_u32 s2, 160")
    a("s_cbranch_scc1 L_end2")
    a("s_mov_b32 s3, s2")
    emit_conv(a, 3)
    a.label("L_end2")
    a("s_endpgm")
    kernel_begin(a, "k3_kernel")
    a("s_cmp_ge_u32 s2, 256")
    a("s_cbranch_scc1 L_end3")
    a("s_mov_b32 s3, s2")
    emit_gemm2(a, 3)
    a.label("L_end3")
    a("s_endpgm")
    a.raw('.section .rodata,"a"')
    for k in ("k1_kernel", "k2_kernel", "k3_kernel"):
        a.raw(".p2align 6")
        a.raw(kernel_desc(k, 256, 102))
    open(path, "w").write(a.text())
if __name__ == "__main__":
    build("full_prof.s", prof=True)
    build("full.s", prof=False)
```

```python
import struct

def f2u(x):
    return struct.unpack("<I", struct.pack("<f", x))[0]

def fhex(x):
    return "0x%08x" % f2u(x)

def v(i, n=1):
    return "v%d" % i if n == 1 else "v[%d:%d]" % (i, i + n - 1)

def s(i, n=1):
    return "s%d" % i if n == 1 else "s[%d:%d]" % (i, i + n - 1)

class Asm:
    def __init__(self):
        self.lines = []
        self.vm = []
        self.lg = []
        self.nlabel = 0
    def __call__(self, txt):
        self.lines.append("    " + txt)
    def c(self, txt):
        self.lines.append("    ; " + txt)
    def label(self, name):
        self.lines.append(name + ":")
    def raw(self, txt):
        self.lines.append(txt)
    def newlabel(self, base="L"):
        self.nlabel += 1
        return "%s_%d" % (base, self.nlabel)
    def text(self):
        return "\n".join(self.lines) + "\n"
    def vmem(self, txt, tag=None):
        self(txt)
        self.vm.append(tag)
    def lds(self, txt, tag=None):
        self(txt)
        self.lg.append(tag)
    def _n_after(self, lst, tags):
        last = -1
        for i, t in enumerate(lst):
            if t in tags:
                last = i
        if last < 0:
            return None
        return len(lst) - 1 - last, last
    def wait(self, vm=None, lg=None):
        parts = []
        if vm is not None:
            if vm == "all":
                parts.append("vmcnt(0)"); self.vm = []
            else:
                if not isinstance(vm, (list, tuple, set)): vm = [vm]
                r = self._n_after(self.vm, set(vm))
                if r is not None:
                    n, last = r
                    if n <= 63:
                        parts.append("vmcnt(%d)" % n)
                        self.vm = self.vm[last + 1:]
                    else:
                        raise Exception("vmcnt overflow")
        if lg is not None:
            if lg == "all":
                parts.append("lgkmcnt(0)"); self.lg = []
            else:
                if not isinstance(lg, (list, tuple, set)): lg = [lg]
                r = self._n_after(self.lg, set(lg))
                if r is not None:
                    n, last = r
                    n2 = min(n, 15)
                    parts.append("lgkmcnt(%d)" % n2)
                    self.lg = self.lg[len(self.lg) - n2:] if n2 > 0 else []
        if parts:
            self("s_waitcnt " + " ".join(parts))
    PROF = False
    STAMP_S = 80
    def stamp(self, i):
        if not self.PROF: return
        self("s_memrealtime s[98:99]")
        self("s_waitcnt lgkmcnt(0)")
        self("s_mov_b32 s%d, s98" % (self.STAMP_S + i))
        self.lg = []
    def stamp_dump(self, n, vtid_wave_sgpr, vtmp, ws_off=200 << 20):
        if not self.PROF: return
        self("s_load_dwordx2 s[96:97], s[0:1], 120")
        self("s_waitcnt lgkmcnt(0)")
        self("s_add_u32 s96, s96, 0x%x" % ws_off)
        self("s_addc_u32 s97, s97, 0")
        self("s_lshl_b32 s98, s2, 2")
        self("s_add_u32 s98, s98, s%d" % vtid_wave_sgpr)
        self("s_lshl_b32 s98, s98, 6")
        self("s_mov_b64 exec, 1")
        self("v_mov_b32 v%d, s98" % (vtmp + 16))
        for i in range(16):
            self("v_mov_b32 v%d, s%d" % (vtmp + i, self.STAMP_S + min(i, n-1)))
        for q in range(4):
            self("global_store_dwordx4 v%d, v[%d:%d], s[96:97] offset:%d" % (vtmp + 16, vtmp + 4*q, vtmp + 4*q + 3, 16*q))
    def nop(self, n):
        while n > 0:
            k = min(n, 16)
            self("s_nop %d" % (k - 1))
            n -= k
    def srd(self, d, base, nbytes):
        self("s_mov_b32 s%d, s%d" % (d, base))
        self("s_and_b32 s%d, s%d, 0xffff" % (d + 1, base + 1))
        self("s_mov_b32 s%d, 0x%x" % (d + 2, nbytes))
        self("s_mov_b32 s%d, 0x00020000" % (d + 3))
    def srd_off(self, d, base, off, nbytes):
        self("s_add_u32 s%d, s%d, 0x%x" % (d, base, off))
        self("s_addc_u32 s%d, s%d, 0" % (d + 1, base + 1))
        self("s_and_b32 s%d, s%d, 0xffff" % (d + 1, d + 1))
        self("s_mov_b32 s%d, 0x%x" % (d + 2, nbytes))
        self("s_mov_b32 s%d, 0x00020000" % (d + 3))

def kernel_begin(a, name):
    a.raw(".globl %s" % name)
    a.raw(".p2align 8")
    a.raw(".type %s,@function" % name)
    a.raw("%s:" % name)

def kernel_desc(name, vgpr, sgpr, accum=None):
    if accum is None:
        accum = (vgpr + 3) // 4 * 4
    return """.amdhsa_kernel %s
  .amdhsa_next_free_vgpr %d
  .amdhsa_next_free_sgpr %d
  .amdhsa_accum_offset %d
  .amdhsa_group_segment_fixed_size 0
  .amdhsa_kernarg_size 128
  .amdhsa_user_sgpr_count 2
  .amdhsa_user_sgpr_kernarg_segment_ptr 1
  .amdhsa_system_sgpr_workgroup_id_x 1
.end_amdhsa_kernel
""" % (name, vgpr, sgpr, accum)
```

```python
from asmlib import *
from common import *
from sync import Sync
from aux import emit_rowstats, ONES_BF, LNT_RS

def emit_lnt(a, s_idx):
    vT0, vT1, vOff, vWr, vRd, vSt, vZero = 1, 2, 3, 4, 5, 6, 7
    vX = 8
    vS = 48
    vMb, vRs = 52, 56
    vU = 60
    vO = 76
    vTag, vPoll, vSo, vSv = 116, 120, 118, 124
    sX, sWs, sDbg, sWave, sT, sOne = 8, 10, 12, 14, 15, 16
    sSy = 18
    sSrd, sFl, sSt = 24, 28, 32
    sy = Sync(a, sFl, sDbg, vTag, vPoll, sSy, vZero)
    a.c("================ role: LN + transpose ================")
    a.stamp(0)
    a("s_load_dwordx2 s[%d:%d], s[0:1], %d" % (sX, sX+1, KA_X))
    a("s_load_dwordx2 s[%d:%d], s[0:1], %d" % (sWs, sWs+1, KA_WS))
    a("s_load_dwordx2 s[%d:%d], s[0:1], %d" % (sDbg, sDbg+1, KA_DBG))
    a("v_lshrrev_b32 v%d, 6, v0" % vT0)
    a("v_and_b32 v0, 63, v0")
    a("v_readfirstlane_b32 s%d, v%d" % (sWave, vT0))
    a("v_lshrrev_b32 v%d, 4, v0" % vT0)
    a("v_and_b32 v%d, 15, v0" % vT1)
    a("v_mul_u32_u24 v%d, 1280, v%d" % (vOff, vT0))
    a("v_lshl_add_u32 v%d, v%d, 4, v%d" % (vOff, vT1, vOff))
    a("s_lshl2_add_u32 s%d, s%d, s%d" % (sT, s_idx, sWave))
    a("v_lshlrev_b32 v%d, 4, v%d" % (vSo, vT0))
    a("s_lshl_b32 s%d, s%d, 7" % (sOne, sT))
    a("v_add_u32 v%d, s%d, v%d" % (vSo, sOne, vSo))
    a("s_mul_i32 s%d, s%d, %d" % (sT, sT, 8*1280))
    a("v_add_u32 v%d, s%d, v%d" % (vOff, sT, vOff))
    a("v_add_u32 v%d, %d, v%d" % (vSt, 4*1280, vOff))
    a("v_mov_b32 v%d, 0" % vZero)
    a("s_waitcnt lgkmcnt(0)")
    for j in range(2):
        for c in range(5):
            a.vmem("global_load_dwordx4 %s, v%d, s[%d:%d] offset:%d" % (v(vX+(j*5+c)*4,4), (vOff, vSt)[j], sX, sX+1, c*256), "x%d" % j)
    a.srd_off(sSrd, sWs, WS_XNT, XNT_BYTES)
    a.srd_off(sFl, sWs, WS_FLAGS, FLAGS_BYTES)
    a.srd_off(sSt, sWs, WS_STATS, STATS_BYTES)
    a("s_mov_b32 s%d, 0x%x" % (sOne, ONES_BF))
    a("v_mul_u32_u24 v%d, %d, v%d" % (vWr, LNT_RS, vT0))
    a("v_lshl_add_u32 v%d, v%d, 4, v%d" % (vWr, vT1, vWr))
    a("s_mul_i32 s%d, s%d, %d" % (sT, sWave, 8*LNT_RS + 128))
    a("v_add_u32 v%d, s%d, v%d" % (vWr, sT, vWr))
    a("v_mul_u32_u24 v%d, %d, v%d" % (vRd, 8*LNT_RS + 128, vT0))
    a("v_lshrrev_b32 v%d, 2, v%d" % (vU, vT1))
    a("v_mul_u32_u24 v%d, %d, v%d" % (vU, LNT_RS, vU))
    a("v_add_u32 v%d, v%d, v%d" % (vRd, vRd, vU))
    a("v_and_b32 v%d, 3, v0" % vU)
    a("v_lshl_add_u32 v%d, v%d, 3, v%d" % (vRd, vU, vRd))
    a("s_mul_i32 s%d, s%d, 320" % (sT, sWave))
    a("v_add_u32 v%d, s%d, v%d" % (vRd, sT, vRd))
    a("v_lshlrev_b32 v%d, 6, v%d" % (vSt, vT1))
    a("v_lshl_add_u32 v%d, v%d, 4, v%d" % (vSt, vT0, vSt))
    a("s_mul_i32 s%d, s%d, %d" % (sT, sWave, 160*64))
    a("v_add_u32 v%d, s%d, v%d" % (vSt, sT, vSt))
    a("s_mul_i32 s%d, s%d, %d" % (sT, s_idx, 640*64))
    a("v_add_u32 v%d, s%d, v%d" % (vSt, sT, vSt))
    for i in range(4): a("v_mov_b32 v%d, 0" % (vS+i))
    for j in range(2):
        a.wait(vm="x%d" % j)
        if j == 0:
            a.stamp(1)
            sy.tag_load()
        for k in range(20):
            r = vX + j*20 + k
            a("v_dot2_f32_bf16 v%d, v%d, s%d, v%d" % (vS+2*j, r, sOne, vS+2*j))
            a("v_dot2_f32_bf16 v%d, v%d, v%d, v%d" % (vS+2*j+1, r, r, vS+2*j+1))
    a.nop(3)
    for sh in (8, 4, 2, 1):
        for i in range(4):
            a("v_add_f32_dpp v%d, v%d, v%d row_ror:%d row_mask:0xf bank_mask:0xf" % (vS+i, vS+i, vS+i, sh))
    for j in range(2):
        emit_rowstats(a, vS+2*j, vS+2*j+1, vMb+2*j, vRs+2*j, vT0, vT1)
        a("v_cvt_pk_bf16_f32 v%d, -v%d, -v%d" % (vSv+4*j, vMb+2*j, vMb+2*j))
        a("v_cvt_pk_bf16_f32 v%d, v%d, v%d" % (vSv+4*j+1, vT1, vT1))
    sy.tag_check()
    for j in range(2):
        a("v_mov_b32 v%d, v%d" % (vSv+4*j+2, vTag))
        a("v_mov_b32 v%d, v%d" % (vSv+4*j+3, vTag+1))
    a("s_mov_b32 exec_lo, 0x00010001")
    a("s_mov_b32 exec_hi, 0x00010001")
    for j in range(2):
        a.vmem("buffer_store_dwordx4 %s, v%d, s[%d:%d], 0 offen offset:%d sc1" % (v(vSv+4*j,4), vSo, sSt, sSt+3, 64*j), "st")
    a("s_mov_b64 exec, -1")
    for j in range(2):
        for c in range(5):
            b = vX + (j*5+c)*4
            for k in range(4):
                a("v_lshlrev_b32 v%d, 16, v%d" % (vU+2*k, b+k))
                a("v_and_b32 v%d, 0xffff0000, v%d" % (vU+2*k+1, b+k))
            for k in range(4):
                a("v_pk_add_f32 %s, %s, %s op_sel_hi:[1,0] neg_lo:[0,1] neg_hi:[0,1]" % (v(vU+2*k,2), v(vU+2*k,2), v(vMb+2*j,2)))
            for k in range(4):
                a("v_cvt_pk_bf16_f32 v%d, v%d, v%d" % (b+k, vU+2*k, vU+2*k+1))
            for k in range(4):
                a("v_lshlrev_b32 v%d, 16, v%d" % (vU+8+2*k, b+k))
                a("v_and_b32 v%d, 0xffff0000, v%d" % (vU+8+2*k+1, b+k))
            for k in range(4):
                a("v_pk_mul_f32 %s, %s, %s op_sel_hi:[1,0]" % (v(vU+8+2*k,2), v(vU+8+2*k,2), v(vRs+2*j,2)))
            for k in range(4):
                a("v_cvt_pk_bf16_f32 v%d, v%d, v%d" % (b+k, vU+8+2*k, vU+8+2*k+1))
            a.lds("ds_write_b128 v%d, %s offset:%d" % (vWr, v(b,4), j*4*LNT_RS + c*256), "w")
    a.wait(lg="all")
    a("s_barrier")
    a.stamp(2)
    for db in range(10):
        for q in range(2):
            a.lds("ds_read_b64_tr_b16 %s, v%d offset:%d" % (v(vO+4*db+2*q,2), vRd, q*4*LNT_RS + db*32), "r%d" % db)
    a("s_mov_b32 s%d, 0" % sT)
    for db in range(10):
        a.wait(lg="r%d" % db)
        a.vmem("buffer_store_dwordx4 %s, v%d, s[%d:%d], s%d offen sc1" % (v(vO+4*db,4), vSt, sSrd, sSrd+3, sT), "st")
        if db < 9: a("s_add_u32 s%d, s%d, %d" % (sT, sT, 1024))
    a.wait(vm="all")
    a("s_barrier")
    a.stamp(3)
    a("s_lshl_b32 s%d, s%d, 3" % (sT, s_idx))
    done = a.newlabel("L_lnt_done")
    a("s_cmp_lg_u32 s%d, 0" % sWave)
    a("s_cbranch_scc1 %s" % done)
    sy.signal("s%d" % sT, FL_LNT)
    a.label(done)
    a.stamp_dump(4, sWave, 8, (200 << 20))
    a("s_endpgm")
    a.vm = []; a.lg = []

def emit_w2f(a, s_idx):
    vT0, vT1, vRd, vSt, vZero = 1, 2, 3, 4, 5
    vTag, vPoll = 6, 8
    vSrc = 12
    vO = 32
    sW2, sWs, sDbg, sWave, sT, sB, sL, sTau, sPhi, sHalf = 8, 10, 12, 14, 15, 16, 17, 18, 19, 23
    sSy = 20
    sSrc, sDst, sFl = 24, 28, 32
    sy = Sync(a, sFl, sDbg, vTag, vPoll, sSy, vZero)
    a.c("================ role: w2 relayout ================")
    a.stamp(0)
    a("s_load_dwordx2 s[%d:%d], s[0:1], %d" % (sW2, sW2+1, KA_W2))
    a("s_load_dwordx2 s[%d:%d], s[0:1], %d" % (sWs, sWs+1, KA_WS))
    a("s_load_dwordx2 s[%d:%d], s[0:1], %d" % (sDbg, sDbg+1, KA_DBG))
    a("v_lshrrev_b32 v%d, 6, v0" % vT0)
    a("v_and_b32 v0, 63, v0")
    a("v_readfirstlane_b32 s%d, v%d" % (sWave, vT0))
    a("v_mov_b32 v%d, 0" % vZero)
    end = a.newlabel("L_w2f_end"); go = a.newlabel("L_w2f_go")
    a("s_cmp_lt_u32 s%d, 3" % sWave)
    a("s_cbranch_scc1 %s" % go)
    a("s_cmp_lg_u32 s%d, 0" % s_idx)
    a("s_cbranch_scc1 %s" % end)
    sy.publish_tag(vPoll)
    a.vm = []
    a("s_endpgm")
    a.label(go)
    a("s_mul_i32 s%d, s%d, 3" % (sTau, s_idx))
    a("s_add_u32 s%d, s%d, s%d" % (sTau, sTau, sWave))
    a("s_lshr_b32 s%d, s%d, 1" % (sPhi, sTau))
    a("s_and_b32 s%d, s%d, 1" % (sHalf, sTau))
    a("s_mul_i32 s%d, s%d, %d" % (sB, sPhi, 32*1280))
    a("s_mul_i32 s%d, s%d, 640" % (sT, sHalf))
    a("s_add_u32 s%d, s%d, s%d" % (sB, sB, sT))
    a("s_mul_i32 s%d, s%d, 20480" % (sL, sWave))
    for i in range(5):
        a("v_add_u32 v%d, %d, v0" % (vT0, 64*i))
        a("v_mul_u32_u24 v%d, 1639, v%d" % (vT1, vT0))
        a("v_lshrrev_b32 v%d, 16, v%d" % (vT1, vT1))
        a("v_mul_u32_u24 v%d, 640, v%d" % (vSrc+i, vT1))
        a("v_lshl_add_u32 v%d, v%d, 4, v%d" % (vSrc+i, vT0, vSrc+i))
    a("s_waitcnt lgkmcnt(0)")
    a.srd(sSrc, sW2, W2F_BYTES)
    for i in range(20):
        a("s_add_u32 m0, s%d, %d" % (sL, i*1024))
        if i % 5 == 0 and i: a("s_add_u32 s%d, s%d, %d" % (sB, sB, 8*1280))
        else: a("s_nop 0")
        a.vmem("buffer_load_dwordx4 v%d, s[%d:%d], s%d offen lds" % (vSrc+(i%5), sSrc, sSrc+3, sB), "d")
    a.srd_off(sDst, sWs, WS_W2F, W2F_BYTES)
    a.srd_off(sFl, sWs, WS_FLAGS, FLAGS_BYTES)
    a("v_lshrrev_b32 v%d, 5, v0" % vT0)
    a("v_lshlrev_b32 v%d, 4, v%d" % (vRd, vT0))
    a("v_bfe_u32 v%d, v0, 4, 1" % vT0)
    a("v_lshl_add_u32 v%d, v%d, 2, v%d" % (vRd, vT0, vRd))
    a("v_bfe_u32 v%d, v0, 2, 2" % vT0)
    a("v_add_u32 v%d, v%d, v%d" % (vRd, vRd, vT0))
    a("v_mul_u32_u24 v%d, 640, v%d" % (vRd, vRd))
    a("v_and_b32 v%d, 3, v0" % vT0)
    a("v_lshl_add_u32 v%d, v%d, 3, v%d" % (vRd, vT0, vRd))
    a("v_add_u32 v%d, s%d, v%d" % (vRd, sL, vRd))
    a("v_lshlrev_b32 v%d, 4, v0" % vSt)
    a("s_mul_i32 s%d, s%d, %d" % (sT, sHalf, 20*48*1024))
    a("s_lshl_b32 s%d, s%d, 10" % (sB, sPhi))
    a("s_add_u32 s%d, s%d, s%d" % (sB, sB, sT))
    a.wait(vm="d")
    a.stamp(1)
    sy.tag_load()
    for k in range(20):
        for q in range(2):
            a.lds("ds_read_b64_tr_b16 %s, v%d offset:%d" % (v(vO+4*k+2*q,2), vRd, q*8*640 + k*32), "r%d" % k)
        if k >= 4:
            kk = k - 4
            a.wait(lg="r%d" % kk)
            a.vmem("buffer_store_dwordx4 %s, v%d, s[%d:%d], s%d offen sc1" % (v(vO+4*kk,4), vSt, sDst, sDst+3, sB), "st")
            a("s_add_u32 s%d, s%d, %d" % (sB, sB, 48*1024))
    for kk in range(16, 20):
        a.wait(lg="r%d" % kk)
        a.vmem("buffer_store_dwordx4 %s, v%d, s[%d:%d], s%d offen sc1" % (v(vO+4*kk,4), vSt, sDst, sDst+3, sB), "st")
        a("s_add_u32 s%d, s%d, %d" % (sB, sB, 48*1024))
    sy.tag_check()
    a.wait(vm="all")
    a.stamp(2)
    a("s_lshl_b32 s%d, s%d, 3" % (sT, sTau))
    sy.signal("s%d" % sT, FL_W2F)
    a.stamp_dump(3, sWave, 32, (200 << 20))
    a.label(end)
    a("s_endpgm")
    a.vm = []; a.lg = []
```

```python
import math
KA_X, KA_ARE, KA_AIM, KA_BRE, KA_BIM, KA_CRE, KA_CIM, KA_LOGDT, KA_DSKIP, KA_BX, KA_W1, KA_B1, KA_W2, KA_OUT, KA_DBG, KA_WS = [8*i for i in range(16)]
L, D, N, F = 2048, 640, 192, 1536
WS_ACT = 0
WS_W2F = 8 << 20
WS_XNT = 12 << 20
WS_KR  = 16 << 20
WS_ST  = 24 << 20
ACT_BYTES = 2048*1536*2
W2F_BYTES = 1536*640*2
XNT_BYTES = 640*2048*2
KR_STRIDE = 8320
RO_OFF = 4160
KR_BYTES = 640*KR_STRIDE
ST_BYTES = 640*2048*2
LOG2E = 1.4426950408889634
INV2PI = 1.0/(2*math.pi)
WS_STATS = 30 << 20
STATS_BYTES = 2048*16
WS_FLAGS = 31 << 20
FL_LNT = 0
FL_W2F = 1024
FL_ACT = 4096
FL_S   = 16384
FLAGS_BYTES = 32768
SPIN_MAX = 1 << 16
```

```python
from asmlib import *
from common import *
from sync import Sync
from aux import ONES_BF

G1_SLOT = 12288
G1_NS = 5
G1_XB = G1_SLOT*G1_NS
G1_CS = G1_XB + 16384
G2_P = 61440
G2_PW = 3328
G2_PRS = 40

def emit_gemm(a, s_idx, prio=0, NBR=3, stage_stamps=False, PRO=3):
    vT0, vT1, vT2 = 1, 2, 3
    vTag, vZero, vL16, vPoll = 4, 6, 7, 8
    vXg, vWg, vXw, vXr, vSt = 12, 16, 19, 21, 25
    vSo, vPA2, vCw, vCr = 30, 31, 32, 33
    vC1, vC2, vC3 = 34, 36, 38
    vOne = 38
    vCs4 = [224, 248, 26]
    vWr, vB1, vPoll2 = 240, 244, 252
    vAcc = 40; vXL = 112
    WB = [88, 100, 228]
    sWave, sRb, sCb, sT, sT2, sXo, sWo, sM, sAo = 14, 15, 16, 17, 18, 20, 21, 22, 23
    sXs, sW1, sAct, sFl, sStt, sW2, sOut, sST = 24, 28, 32, 36, 40, 44, 48, 52
    sDbg, sSy = 56, 58
    sRb2, sCb2, sFa, sFc, sFs = 61, 62, 63, 64, 65
    sA, sB = 66, 70
    sReg = 75
    sK = 76
    sy = Sync(a, sFl, sDbg, vTag, vPoll, sSy, vZero)
    a.c("================ role: gemm1 + gemm2 ================")
    a.stamp(0)
    a("s_load_dwordx2 s[8:9], s[0:1], %d" % KA_X)
    a("s_load_dwordx4 s[4:7], s[0:1], %d" % KA_W1)
    a("s_load_dwordx2 s[10:11], s[0:1], %d" % KA_OUT)
    a("s_load_dwordx2 s[%d:%d], s[0:1], %d" % (sDbg, sDbg+1, KA_DBG))
    a("s_load_dwordx2 s[12:13], s[0:1], %d" % KA_WS)
    if prio: a("s_setprio %d" % prio)
    a("v_lshrrev_b32 v%d, 6, v0" % vT0)
    a("v_and_b32 v0, 63, v0")
    a("v_readfirstlane_b32 s%d, v%d" % (sWave, vT0))
    a("s_bfe_u32 s%d, s%d, 0x20001" % (sRb, s_idx))
    a("s_lshl_b32 s%d, s%d, 2" % (sRb, sRb))
    a("s_lshr_b32 s%d, s%d, 6" % (sT, s_idx))
    a("s_add_u32 s%d, s%d, s%d" % (sRb, sRb, sT))
    a("s_and_b32 s%d, s%d, 1" % (sCb, s_idx))
    a("s_lshl_b32 s%d, s%d, 3" % (sCb, sCb))
    a("s_bfe_u32 s%d, s%d, 0x30003" % (sT, s_idx))
    a("s_add_u32 s%d, s%d, s%d" % (sCb, sCb, sT))
    a("v_lshrrev_b32 v%d, 3, v0" % vT0)
    a("v_and_b32 v%d, 7, v0" % vT1)
    a("v_mul_u32_u24 v%d, 1280, v%d" % (vXg, vT0))
    a("v_lshl_add_u32 v%d, v%d, 4, v%d" % (vXg, vT1, vXg))
    for i in range(1, 4): a("v_add_u32 v%d, %d, v%d" % (vXg+i, i*8*1280, vXg))
    a("s_lshl2_add_u32 s%d, s%d, s%d" % (sT, sRb, sWave))
    a("s_mul_i32 s%d, s%d, %d" % (sXo, sT, 32*1280))
    a("s_mul_i32 s%d, s%d, 192" % (sT, sWave))
    a("v_add_u32 v%d, s%d, v0" % (vSt, sT))
    for z in range(3):
        a("v_add_u32 v%d, %d, v%d" % (vT2, 64*z, vSt))
        a("v_mul_u32_u24 v%d, 5462, v%d" % (vWg+z, vT2))
        a("v_lshrrev_b32 v%d, 16, v%d" % (vWg+z, vWg+z))
        a("v_mul_u32_u24 v%d, %d, v%d" % (vWg+z, 3072-192, vWg+z))
        a("v_lshl_add_u32 v%d, v%d, 4, v%d" % (vWg+z, vSt, vWg+z))
    a("s_mul_i32 s%d, s%d, 192" % (sWo, sCb))
    a("s_mul_i32 s%d, s%d, 3072" % (sM, sWave))
    a("s_waitcnt lgkmcnt(0)")
    a.srd(sXs, 8, 2048*640*2)
    a.srd(sW1, 4, 640*1536*2)
    def xl(st): return vXL + (st % 7)*16
    def xload1(st, i):
        a.vmem("buffer_load_dwordx4 %s, v%d, s[%d:%d], s%d offen offset:%d" % (v(xl(st)+4*i,4), vXg+i, sXs, sXs+3, sXo, st*128), "x%d" % st)
    def xloads(st):
        for i in range(4): xload1(st, i)
    def wdma1(st, z):
        if z == 0:
            a("s_add_u32 m0, s%d, %d" % (sM, (st % G1_NS)*G1_SLOT))
            if st > 0: a("s_add_u32 s%d, s%d, %d" % (sWo, sWo, 64*3072))
            else: a("s_nop 0")
        a.vmem("buffer_load_dwordx4 v%d, s[%d:%d], s%d offen offset:%d lds" % (vWg+z, sW1, sW1+3, sWo, z*1024), "w%d" % st)
    def wdma(st):
        for z in range(3): wdma1(st, z)
    for st in range(2):
        xloads(st); wdma(st)
    a("s_lshl_b32 s%d, s%d, 12" % (sT, sWave))
    a("s_add_u32 s%d, s%d, %d" % (sT, sT, G1_XB))
    a("v_lshrrev_b32 v%d, 4, v0" % vT2)
    a("v_xor_b32 v%d, v%d, v%d" % (vXw, vT1, vT2))
    a("v_lshlrev_b32 v%d, 4, v%d" % (vXw, vXw))
    a("v_lshl_add_u32 v%d, v%d, 7, v%d" % (vXw, vT0, vXw))
    a("v_add_u32 v%d, s%d, v%d" % (vXw, sT, vXw))
    a("v_xor_b32 v%d, 64, v%d" % (vXw+1, vXw))
    a("v_and_b32 v%d, 31, v0" % vT0)
    a("v_lshrrev_b32 v%d, 5, v0" % vT1)
    a("v_bfe_u32 v%d, v0, 1, 3" % vT2)
    a("v_xor_b32 v%d, v%d, v%d" % (vT2, vT2, vT1))
    a("v_lshlrev_b32 v%d, 4, v%d" % (vT2, vT2))
    a("v_lshl_add_u32 v%d, v%d, 7, v%d" % (vT2, vT0, vT2))
    a("v_add_u32 v%d, s%d, v%d" % (vT2, sT, vT2))
    for jl in range(4):
        a("s_add_u32 s%d, s%d, %d" % (sT2, sWave, jl))
        a("s_and_b32 s%d, s%d, 3" % (sT2, sT2))
        a("s_lshl_b32 s%d, s%d, 5" % (sT2, sT2))
        a("v_xor_b32 v%d, s%d, v%d" % (vXr+jl, sT2, vT2))
    a("v_bfe_u32 v%d, v0, 2, 2" % vT2)
    a("v_lshl_add_u32 v%d, v%d, 3, v%d" % (vT2, vT1, vT2))
    a("v_mul_u32_u24 v%d, 192, v%d" % (vT2, vT2))
    a("v_bfe_u32 v%d, v0, 4, 1" % vSt)
    a("v_lshl_add_u32 v%d, v%d, 5, v%d" % (vT2, vSt, vT2))
    a("v_and_b32 v%d, 3, v0" % vSo)
    a("v_lshl_add_u32 v%d, v%d, 3, v%d" % (vT2, vSo, vT2))
    for jl in range(4):
        a("s_add_u32 s%d, s%d, %d" % (sT2, sWave, jl))
        a("s_and_b32 s%d, s%d, 3" % (sT2, sT2))
        a("s_mul_i32 s%d, s%d, %d" % (sT2, sT2, 16*192))
        a("v_add_u32 v%d, s%d, v%d" % (vWr+jl, sT2, vT2))
    for r in (vOne, vOne+1): a("v_mov_b32 v%d, 0x%x" % (r, ONES_BF))
    for st in range(2, PRO):
        xloads(st); wdma(st)

    def late_setup():
        out = []
        e = out.append
        e("v_mov_b32 v%d, 0" % vZero)
        e("v_lshlrev_b32 v%d, 1, v%d" % (vT2, vT0))
        e("s_mul_i32 s%d, s%d, 192" % (sT, sCb))
        e("v_add_u32 v%d, s%d, v%d" % (vT2, sT, vT2))
        for p in range(3):
            out.append(lambda p=p: a.vmem("global_load_ushort v%d, v%d, s[6:7] offset:%d" % (vB1+p, vT2, 64*p), "b1"))
        b = Asm()
        b.srd_off(sAct, 12, WS_ACT, ACT_BYTES)
        b.srd_off(sFl, 12, WS_FLAGS, FLAGS_BYTES)
        b.srd_off(sStt, 12, WS_STATS, STATS_BYTES)
        b.srd_off(sW2, 12, WS_W2F, W2F_BYTES)
        b.srd_off(sST, 12, WS_ST, ST_BYTES)
        b.srd(sOut, 10, 2048*640*2)
        out += [l.strip() for l in b.lines]
        e("v_lshlrev_b32 v%d, 2, v%d" % (vCr, vT0))
        e("v_add_u32 v%d, %d, v%d" % (vCr, G1_CS, vCr))
        e("s_mul_i32 s%d, s%d, 384" % (sT2, sWave))
        e("v_add_u32 v%d, s%d, v%d" % (vCw, sT2, vCr))
        e("v_mul_u32_u24 v%d, %d, v%d" % (vSt, 48*64, vSt))
        e("v_and_b32 v%d, 15, v0" % vL16)
        e("v_add_u32 v%d, v%d, v%d" % (vSt, vSt, vL16))
        e("v_lshl_add_u32 v%d, v%d, 4, v%d" % (vSt, vT1, vSt))
        e("v_lshlrev_b32 v%d, 4, v%d" % (vSt, vSt))
        e("s_lshl2_add_u32 s%d, s%d, s%d" % (sT2, sRb, sWave))
        e("s_lshl_b32 s%d, s%d, 9" % (sT, sT2))
        e("v_lshlrev_b32 v%d, 4, v%d" % (vSo, vT0))
        e("v_add_u32 v%d, s%d, v%d" % (vSo, sT, vSo))
        e("s_lshr_b32 s%d, s%d, 1" % (sT, sT2))
        e("s_lshl_b32 s%d, s%d, 5" % (sFa, sT))
        e("s_and_b32 s%d, s%d, 1" % (sT, sT2))
        e("s_add_u32 s%d, s%d, s%d" % (sFa, sFa, sT))
        e("s_lshl_b32 s%d, s%d, 1" % (sT, sCb))
        e("s_add_u32 s%d, s%d, s%d" % (sFa, sFa, sT))
        e("s_lshl_b32 s%d, s%d, 3" % (sFa, sFa))
        e("s_add_u32 s%d, s%d, %d" % (sFa, sFa, FL_ACT))
        e("s_mul_i32 s%d, s%d, 96" % (sT2, sT2))
        e("s_mul_i32 s%d, s%d, 3" % (sAo, sCb))
        e("s_add_u32 s%d, s%d, s%d" % (sAo, sAo, sT2))
        e("s_lshl_b32 s%d, s%d, 10" % (sAo, sAo))
        e("v_lshlrev_b32 v%d, 4, v0" % vL16)
        e("v_min_u32 v%d, %d, v%d" % (vPA2, 47*16, vL16))
        e("s_bfe_u32 s%d, s%d, 0x20001" % (sRb2, s_idx))
        e("s_lshl_b32 s%d, s%d, 3" % (sRb2, sRb2))
        e("s_lshr_b32 s%d, s%d, 5" % (sT, s_idx))
        e("s_add_u32 s%d, s%d, s%d" % (sRb2, sRb2, sT))
        e("s_and_b32 s%d, s%d, 1" % (sCb2, s_idx))
        e("s_lshl_b32 s%d, s%d, 2" % (sCb2, sCb2))
        e("s_bfe_u32 s%d, s%d, 0x20003" % (sT, s_idx))
        e("s_add_u32 s%d, s%d, s%d" % (sCb2, sCb2, sT))
        e("s_mul_i32 s%d, s%d, %d" % (sT2, sWave, 12*1024))
        for i in range(4):
            e("s_add_u32 s%d, s%d, %d" % (sT, sWave, i))
            e("s_and_b32 s%d, s%d, 3" % (sT, sT))
            e("s_lshl2_add_u32 s%d, s%d, s%d" % (sT, sRb2, sT))
            e("s_mul_i32 s%d, s%d, %d" % (sT, sT, 48*1024))
            e("s_add_u32 s%d, s%d, s%d" % (sA+i, sT, sT2))
        e("s_mul_i32 s%d, s%d, %d" % (sT, sCb2, 5*48*1024))
        e("s_add_u32 s%d, s%d, s%d" % (sB, sT, sT2))
        for n in range(1, 5): e("s_add_u32 s%d, s%d, %d" % (sB+n, sB, n*48*1024))
        e("s_lshl2_add_u32 s%d, s%d, s%d" % (sT, sRb2, sWave))
        e("s_lshl_b32 s%d, s%d, 6" % (sFc, sT))
        e("s_add_u32 s%d, s%d, %d" % (sFc, sFc, FL_ACT))
        e("s_mul_i32 s%d, s%d, 640" % (sFs, sCb2))
        e("s_add_u32 s%d, s%d, %d" % (sFs, sFs, FL_S))
        e("s_mov_b32 s%d, %s" % (sK, fhex(LOG2E))); e("s_mov_b32 s%d, %s" % (sK+1, fhex(LOG2E)))
        e("s_mov_b32 s%d, 2.0" % (sK+2)); e("s_mov_b32 s%d, 2.0" % (sK+3))
        e("s_mul_i32 s%d, s%d, 15360" % (sReg, sWave))
        return out
    def xtrans(st):
        out = []
        for i in range(4):
            out.append(("xw", "ds_write_b128 v%d, %s offset:%d" % (vXw+(i&1), v(xl(st)+4*i,4), i*1024)))
        for jl in range(4):
            out.append(("xf%d_%d" % (st, jl), "ds_read_b128 %s, v%d" % (v(xl(st)+4*jl,4), vXr+jl)))
        return out
    def wreads(g_):
        st, jl = g_ // 4, g_ % 4
        buf = WB[g_ % 3]
        return [("wf%d" % g_, "ds_read_b64_tr_b16 %s, v%d offset:%d" % (v(buf+4*p+2*q,2), vWr+jl, (st % G1_NS)*G1_SLOT + q*4*192 + p*64)) for p in range(3) for q in range(2)]
    def emit(t):
        if callable(t): t()
        elif isinstance(t, tuple): a.lds(t[1], t[0])
        else: a(t)
    def step(g_, gaps):
        st, jl = g_ // 4, g_ % 4
        buf = WB[g_ % 3]
        xf = xl(st) + 4*jl
        a.wait(lg=["wf%d" % g_, "xf%d_%d" % (st, jl)])
        rd = wreads(g_ + 2) if g_ + 2 < 40 else []
        for p in range(3):
            acc = vAcc + 16*p
            a("v_mfma_f32_32x32x16_bf16 %s, %s, %s, %s" % (v(acc,16), v(buf+4*p,4), v(xf,4), "0" if g_ == 0 else v(acc,16)))
            for tag, ins in rd[2*p:2*p+2]: a.lds(ins, tag)
            if jl < 2:
                a("v_mfma_f32_4x4x4_16b_bf16 %s, %s, %s, %s" % (v(vCs4[p],4), v(vOne,2), v(buf+4*p+2*jl,2), "0" if g_ == 0 else v(vCs4[p],4)))
            for t in gaps[p]: emit(t)
    def take(lst, n):
        while n < len(lst) and isinstance(lst[n], str) and lst[n].startswith("s_addc"): n += 1
        return lst[:n], lst[n:]
    late = late_setup()
    statld = "buffer_load_dwordx4 %s, v%d, s[%d:%d], 0 offen sc1" % (v(vPoll,4), vSo, sStt, sStt+3)
    a.wait(vm="x0")
    a.stamp(1)
    for tag, ins in xtrans(0): a.lds(ins, tag)
    a.wait(vm="w0")
    a("s_barrier")
    for tag, ins in wreads(0) + wreads(1): a.lds(ins, tag)
    vP = xl(3)
    vAp = xl(4)
    vBp = vAp + 12
    nx, nw = PRO, PRO
    for st in range(10):
        gp = [[] for _ in range(12)]
        if st < 9:
            xt = xtrans(st+1)
            gp[0].append(lambda: a.wait(vm="x%d" % (st+1)))
            for i, gi in enumerate((0, 2, 4, 6, 8, 9, 10, 11)): gp[gi].append(xt[i])
            pre_b = []; post_b = []
            while nw < G1_NS and len(pre_b) < 3:
                pre_b += [(lambda s_=nw, z=z: wdma1(s_, z)) for z in range(3)]; nw += 1
            if nx < 10 and nx <= st + 6:
                pre_b += [(lambda s_=nx, i=i: xload1(s_, i)) for i in range(4)]; nx += 1
            if nw < 10 and nw >= G1_NS and nw <= st + 4:
                post_b += [(lambda s_=nw, z=z: wdma1(s_, z)) for z in range(3)]; nw += 1
            if nx < 10 and nx <= st + 6 and st < 3:
                post_b += [(lambda s_=nx, i=i: xload1(s_, i)) for i in range(4)]; nx += 1
            for i, t in enumerate(pre_b): gp[(1, 3, 5, 1, 3, 5, 5)[i] if len(pre_b) <= 4 else (1, 1, 2, 3, 3, 4, 5)[i]].append(t)
            for i, t in enumerate(post_b): gp[(7, 8, 9, 10, 10, 11, 11)[i]].append(t)
            if st == 6: gp[7].append(sy.tag_load)
            if st == 7: gp[7].append(lambda: a.vmem(statld, "stat"))
            if st == 8: gp[7].append(lambda: sy.poll_issue(vPA2, "0", FL_W2F, "pw2f", vPoll2))
            if st >= 1:
                for gi in (6, 7, 8, 9, 10, 11):
                    e_, late = take(late, 4); gp[gi] = e_ + gp[gi]
            step(4*st, gp[0:3]); step(4*st+1, gp[3:6])
            a.wait(vm="w%d" % (st+1))
            a("s_barrier")
            if stage_stamps and st >= 1: a.stamp(7 + st)
            step(4*st+2, gp[6:9]); step(4*st+3, gp[9:12])
        else:
            assert not late and nx == 10 and nw == 10
            z = ["v_mov_b32 v%d, 0" % (vAp+i) for i in range(16)]
            step(36, [z[0:3], z[3:6], z[6:9]]); step(37, [z[9:12], z[12:16], []])
            g1 = ["s_nop 1"] + ["v_permlane32_swap_b32 v%d, v%d" % (vCs4[p], vCs4[p]+1) for p in range(3)]
            g1 += ["v_add_f32 v%d, v%d, v%d" % (vCs4[p], vCs4[p], vCs4[p]+1) for p in range(3)]
            g1 += [("cw", "ds_write_b32 v%d, v%d offset:%d" % (vCw, vCs4[p], p*128)) for p in range(3)]
            step(38, [["s_nop 1"], g1, []])
            a.wait(lg="all")
            a("s_barrier")
            for w in range(4):
                for p in range(3):
                    a.lds("ds_read_b32 v%d, v%d offset:%d" % (vP+w*3+p, vCr, w*384 + p*128), "cr")
            step(39, [[], [], []])
    a.stamp(2)
    sy.tag_check()
    sy.granule_check(statld, "stat", vPoll+2)
    a("v_mov_b32 v%d, v%d" % (vBp, vPoll))
    a("v_mov_b32 v%d, v%d" % (vBp+1, vPoll+1))
    a("v_and_b32 v%d, 0xffff0000, v%d" % (vC3, vPoll+1))
    a("v_rcp_f32 v%d, v%d" % (vC3, vC3))
    a.wait(lg="cr", vm="b1")
    a("s_mov_b32 exec_hi, 0")
    for p in range(3):
        a("v_add_f32 v%d, v%d, v%d" % (vP+p, vP+p, vP+3+p))
        a("v_add_f32 v%d, v%d, v%d" % (vP+6+p, vP+6+p, vP+9+p))
    for p in range(3): a("v_add_f32 v%d, v%d, v%d" % (vP+p, vP+p, vP+6+p))
    for p in range(3): a("v_cvt_pk_bf16_f32 v%d, v%d, v%d" % (vP+3+p, vP+p, vP+p))
    for p in range(3): a("v_and_b32 v%d, 0xffff0000, v%d" % (vP+3+p, vP+3+p))
    for p in range(3): a("v_sub_f32 v%d, v%d, v%d" % (vP+3+p, vP+p, vP+3+p))
    for p in range(3): a("v_cvt_pk_bf16_f32 v%d, v%d, v%d" % (vAp+4*p, vP+p, vP+3+p))
    for p in range(3): a("v_mov_b32 v%d, v%d" % (vAp+4*p+1, vB1+p))
    a("s_mov_b32 exec_hi, -1")
    a("v_mul_f32 v%d, %s, v%d" % (vC1, fhex(LOG2E), vC3))
    a("v_mul_f32 v%d, -2.0, v%d" % (vC2, vC3))
    for p in range(3):
        acc = vAcc + 16*p
        a("v_mfma_f32_32x32x16_bf16 %s, %s, %s, %s" % (v(acc,16), v(vAp+4*p,4), v(vBp,4), v(acc,16)))
    BR = 256 - 4 - NBR*20
    assert BR >= 192
    pre = []
    for s_ in range(NBR):
        for n in range(5):
            pre.append(("ld", "buffer_load_dwordx4 %s, v%d, s[%d:%d], s%d offen offset:%d sc1" % (v(BR+(s_*5+n)*4,4), vL16, sW2, sW2+3, sB+n, s_*1024), "B"))
    for n in range(5):
        for k in range(3): pre.append(("dma", n, k))
    vL16b = vT2
    a("v_add_u32 v%d, %d, v%d" % (vL16b, NBR*1024, vL16))
    sy.poll_check(vPA2, "0", FL_W2F, "pw2f", vPoll2)
    def emit_pre(k):
        for _ in range(k):
            if not pre: return
            t = pre.pop(0)
            if t[0] == "ld": a.vmem(t[1], t[2])
            else:
                n, k_ = t[1], t[2]
                if k_ == 0:
                    a("s_add_u32 m0, s%d, %d" % (sReg, n*3072))
                    a("s_nop 0")
                a.vmem("buffer_load_dwordx4 v%d, s[%d:%d], s%d offen offset:%d sc1 lds" % (vL16b, sW2, sW2+3, sB+n, k_*1024), "BL")
    emit_pre(6)
    a.nop(6)
    vE = 112
    vO = 144
    for c in range(6):
        A = vAcc + 8*c; E = vE + 16*(c & 1); O = vO + 4*c
        for k in range(4): a("v_pk_mul_f32 %s, %s, %s op_sel_hi:[1,0]" % (v(E+2*k,2), v(A+2*k,2), v(vC1,2)))
        for k in range(8): a("v_exp_f32 v%d, v%d" % (E+k, E+k))
        emit_pre(1)
        for k in range(4): a("v_pk_add_f32 %s, %s, s[%d:%d]" % (v(E+8+2*k,2), v(E+2*k,2), sK+2, sK+3))
        for k in range(4): a("v_pk_fma_f32 %s, %s, %s, s[%d:%d]" % (v(E+2*k,2), v(E+2*k,2), v(E+8+2*k,2), sK+2, sK+3))
        emit_pre(1)
        for k in range(8): a("v_rcp_f32 v%d, v%d" % (E+k, E+k))
        emit_pre(1)
        for k in range(4): a("v_pk_fma_f32 %s, %s, %s, %s op_sel_hi:[1,0,0]" % (v(E+2*k,2), v(E+2*k,2), v(vC2,2), v(vC3,2)))
        for k in range(4): a("v_pk_mul_f32 %s, %s, %s" % (v(E+2*k,2), v(E+2*k,2), v(A+2*k,2)))
        emit_pre(1)
        for k in range(4): a("v_cvt_pk_bf16_f32 v%d, v%d, v%d" % (O+k, E+2*k, E+2*k+1))
        a.vmem("buffer_store_dwordx4 %s, v%d, s[%d:%d], s%d offen offset:%d sc1" % (v(O,4), vSt, sAct, sAct+3, sAo, c*512), "st")
    emit_pre(100)
    a.stamp(3)
    vOff = 12; vRW = 15; vRR, vPW, vPR, vXO, vSO, vPA = 18, 19, 20, 21, 22, 23
    a("v_mov_b32 v%d, v%d" % (vOff, vL16))
    a("v_add_u32 v%d, 4096, v%d" % (vOff+1, vL16))
    a("v_add_u32 v%d, 8192, v%d" % (vOff+2, vL16))
    a("v_and_b32 v%d, 15, v0" % vT0)
    a("v_lshrrev_b32 v%d, 4, v0" % vT1)
    a("s_lshl2_add_u32 s%d, s%d, s%d" % (sT, sRb2, sWave))
    a("s_mul_i32 s%d, s%d, %d" % (sT2, sT, 16*1280))
    a("v_mul_u32_u24 v%d, 1280, v%d" % (vXO, vT0))
    a("v_lshl_add_u32 v%d, v%d, 4, v%d" % (vXO, vT1, vXO))
    a("s_mul_i32 s%d, s%d, 160" % (sM, sCb2))
    a("s_add_u32 s%d, s%d, s%d" % (sT2, sT2, sM))
    a("v_add_u32 v%d, s%d, v%d" % (vXO, sT2, vXO))
    a("v_lshlrev_b32 v%d, 12, v%d" % (vSO, vT0))
    a("v_lshl_add_u32 v%d, v%d, 3, v%d" % (vSO, vT1, vSO))
    a("s_mul_i32 s%d, s%d, %d" % (sT2, sCb2, 80*4096))
    a("s_lshl_b32 s%d, s%d, 5" % (sM, sT))
    a("s_add_u32 s%d, s%d, s%d" % (sT2, sT2, sM))
    a("v_add_u32 v%d, s%d, v%d" % (vSO, sT2, vSO))
    for i in range(1, 4):
        a("s_add_u32 s%d, s%d, %d" % (sT, sWave, i))
        a("s_and_b32 s%d, s%d, 3" % (sT, sT))
        a("s_mul_i32 s%d, s%d, 15360" % (sT, sT))
        a("s_add_u32 s%d, s%d, %d" % (sT, sT, (i-1)*5120))
        a("v_add_u32 v%d, s%d, v%d" % (vRW+i-1, sT, vL16))
    a("v_add_u32 v%d, s%d, v%d" % (vRR, sReg, vL16))
    a("s_mul_i32 s%d, s%d, %d" % (sT, sWave, G2_PW))
    a("s_add_u32 s%d, s%d, %d" % (sT, sT, G2_P))
    a("v_mul_u32_u24 v%d, %d, v%d" % (vPW, G2_PRS, vT0))
    a("v_lshl_add_u32 v%d, v%d, 3, v%d" % (vPW, vT1, vPW))
    a("v_add_u32 v%d, s%d, v%d" % (vPW, sT, vPW))
    a("v_lshrrev_b32 v%d, 2, v%d" % (vT0, vT0))
    a("v_lshl_add_u32 v%d, v%d, 3, v%d" % (vT0, vT1, vT0))
    a("v_mul_u32_u24 v%d, %d, v%d" % (vPR, G2_PRS, vT0))
    a("v_and_b32 v%d, 3, v0" % vT0)
    a("v_lshl_add_u32 v%d, v%d, 3, v%d" % (vPR, vT0, vPR))
    a("v_add_u32 v%d, s%d, v%d" % (vPR, sT, vPR))
    a("v_min_u32 v%d, %d, v%d" % (vPA, 3*16, vL16))
    a.wait(vm="all")
    sy.signal("s%d" % sFa, 0)
    a.stamp(4)
    sy.poll_issue(vPA, "s%d" % sFc, 0, "pact")
    sy.poll_check(vPA, "s%d" % sFc, 0, "pact")
    a.stamp(5)
    vAcc2 = 24
    free = [r for r in range(104, 256, 4) if not (BR <= r < BR + NBR*20)]
    loc = {}
    for s_ in range(NBR):
        for n in range(5): loc[("B", s_, n)] = BR + (s_*5+n)*4
    G = []
    for s_ in range(12):
        if s_ >= NBR + 3:
            G += [("A", s_, 0), ("B", s_, 0), ("B", s_, 1), ("A", s_, 1), ("B", s_, 2), ("B", s_, 3), ("A", s_, 2), ("B", s_, 4), ("A", s_, 3)]
        else:
            G += [("A", s_, i) for i in range(4)]
    G += [("X", 0, k) for k in range(3)]
    def issue_g():
        kind, s_, i = G.pop(0)
        r = free.pop(0); loc[(kind, s_, i)] = r
        if kind == "A":
            a.vmem("buffer_load_dwordx4 %s, v%d, s[%d:%d], s%d offen offset:%d sc1" % (v(r,4), vOff + s_//4, sAct, sAct+3, sA+i, (s_%4)*1024), "g%d" % s_)
        elif kind == "B":
            a.vmem("buffer_load_dwordx4 %s, v%d, s[%d:%d], s%d offen offset:%d sc1" % (v(r,4), vOff + s_//4, sW2, sW2+3, sB+i, (s_%4)*1024), "g%d" % s_)
        else:
            a.vmem("buffer_load_dwordx4 %s, v%d, s[%d:%d], 0 offen offset:%d" % (v(r,4), vXO, sXs, sXs+3, 64*i), "x")
    while G and len(free) > 0: issue_g()
    a("v_min_u32 v%d, %d, v%d" % (vPA, 39*16, vL16))
    spolled = None
    vS = None
    for s_ in range(12):
        side = []
        if NBR <= s_ + 1 < NBR + 3:
            for n in range(5):
                r = free.pop(0); loc[("B", s_+1, n)] = r
                side.append(("lds", "ds_read_b128 %s, v%d offset:%d" % (v(r,4), vRR, n*3072 + (s_+1-NBR)*1024), "bl%d" % (s_+1)))
        side += [("g",)]*min(len(G), len(free))
        a.wait(vm="g%d" % s_, lg="bl%d" % s_)
        k = 0
        for i in range(4):
            for n in range(5):
                acc = vAcc2 + (i*5+n)*4
                a("v_mfma_f32_16x16x32_bf16 %s, %s, %s, %s" % (v(acc,4), v(loc[("A",s_,i)],4), v(loc[("B",s_,n)],4), "0" if s_ == 0 else v(acc,4)))
                k += 1
                if side and k % 2 == 1:
                    t = side.pop(0)
                    if t[0] == "lds": a.lds(t[1], t[2])
                    else: issue_g()
        assert not side
        for i in range(4): free.append(loc[("A", s_, i)])
        for n in range(5): free.append(loc[("B", s_, n)])
        if not G and spolled is None:
            sy.poll_issue(vPA, "s%d" % sFs, 0, "ps"); spolled = s_
        if s_ == 10: a("s_barrier")
    a.stamp(6)
    for i in range(1, 4):
        for n in range(5):
            if i == 3 and n == 3: a.nop(4)
            a.lds("ds_write_b128 v%d, %s offset:%d" % (vRW+i-1, v(vAcc2+(i*5+n)*4,4), n*1024), "rw")
        if i == 1:
            sy.poll_check(vPA, "s%d" % sFs, 0, "ps")
            vS = [free.pop(0) for _ in range(3)]
            for n in range(5):
                a("s_mov_b32 s%d, %d" % (sT, n*16*4096))
                a.vmem("buffer_load_dwordx2 %s, v%d, s[%d:%d], s%d offen sc1" % (v(vS[n//2] + 2*(n%2),2), vSO, sST, sST+3, sT), "s")
    a.wait(lg="all")
    a("s_barrier")
    vR = [free.pop(0) for _ in range(15)]
    for n in range(5):
        for sl in range(3):
            a.lds("ds_read_b128 %s, v%d offset:%d" % (v(vR[n*3+sl],4), vRR, sl*5120 + n*1024), "rr%d" % n)
    vE = [free.pop(0) for _ in range(8)]
    vXu = vAcc2 + 20
    for k in range(3):
        X = loc[("X", 0, k)]
        for j in range(4):
            a("v_lshlrev_b32 v%d, 16, v%d" % (vXu+8*k+2*j, X+j))
            a("v_and_b32 v%d, 0xffff0000, v%d" % (vXu+8*k+2*j+1, X+j))
    for n in range(5):
        a.wait(lg="rr%d" % n)
        acc = vAcc2 + n*4; E = vE[n]
        for h in range(2):
            a("v_pk_add_f32 %s, %s, %s" % (v(vR[n*3]+2*h,2), v(vR[n*3]+2*h,2), v(vR[n*3+1]+2*h,2)))
            a("v_pk_add_f32 %s, %s, %s" % (v(acc+2*h,2), v(acc+2*h,2), v(vR[n*3+2]+2*h,2)))
        for h in range(2):
            a("v_pk_add_f32 %s, %s, %s" % (v(acc+2*h,2), v(acc+2*h,2), v(vR[n*3]+2*h,2)))
        for h in range(2):
            a("v_pk_mul_f32 %s, %s, s[%d:%d] neg_lo:[0,1] neg_hi:[0,1]" % (v(E+2*h,2), v(acc+2*h,2), sK, sK+1))
        for r in range(4): a("v_exp_f32 v%d, v%d" % (E+r, E+r))
        a("s_nop 0")
        for r in range(4): a("v_add_f32 v%d, 1.0, v%d" % (E+r, E+r))
        for r in range(4): a("v_rcp_f32 v%d, v%d" % (E+r, E+r))
        a("s_nop 0")
        for h in range(2):
            a("v_pk_mul_f32 %s, %s, %s" % (v(acc+2*h,2), v(acc+2*h,2), v(E+2*h,2)))
    a.wait(vm="s")
    for n in range(5):
        acc = vAcc2 + n*4; E = vE[n]
        S = vS[n//2] + 2*(n%2); U = vR[n*3+1]
        a("v_lshlrev_b32 v%d, 16, v%d" % (U+0, S))
        a("v_and_b32 v%d, 0xffff0000, v%d" % (U+1, S))
        a("v_lshlrev_b32 v%d, 16, v%d" % (U+2, S+1))
        a("v_and_b32 v%d, 0xffff0000, v%d" % (U+3, S+1))
        for h in range(2):
            a("v_pk_mul_f32 %s, %s, %s" % (v(acc+2*h,2), v(acc+2*h,2), v(U+2*h,2)))
        a("v_cvt_pk_bf16_f32 v%d, v%d, v%d" % (E, acc, acc+1))
        a("v_cvt_pk_bf16_f32 v%d, v%d, v%d" % (E+1, acc+2, acc+3))
        a.lds("ds_write_b64 v%d, %s offset:%d" % (vPW, v(E,2), n*16*G2_PRS), "pw")
    vPq = vE[5:8]
    for k in range(3):
        for q in range(2):
            a.lds("ds_read_b64_tr_b16 %s, v%d offset:%d" % (v(vPq[k]+2*q,2), vPR, (32*k + 4*q)*G2_PRS), "pr%d" % k)
    for k in range(3):
        X = loc[("X", 0, k)]
        a.wait(lg="pr%d" % k)
        Wp = (vR[2*k], vR[2*k+1])
        for j in range(4):
            a("v_lshlrev_b32 v%d, 16, v%d" % (Wp[j//2] + 2*(j%2), vPq[k]+j))
            a("v_and_b32 v%d, 0xffff0000, v%d" % (Wp[j//2] + 2*(j%2) + 1, vPq[k]+j))
        for j in range(4):
            u = vXu+8*k+2*j
            a("v_pk_add_f32 %s, %s, %s" % (v(u,2), v(u,2), v(Wp[j//2] + 2*(j%2),2)))
        for j in range(4):
            u = vXu+8*k+2*j
            a("v_cvt_pk_bf16_f32 v%d, v%d, v%d" % (X+j, u, u+1))
        if k == 2: a("s_mov_b32 exec_hi, 0")
        a.vmem("buffer_store_dwordx4 %s, v%d, s[%d:%d], 0 offen offset:%d" % (v(X,4), vXO, sOut, sOut+3, 64*k), "st")
    a.stamp(7)
    a.stamp_dump(16, sWave, 24, (200 << 20))
    a("s_endpgm")
    a.vm = []; a.lg = []
```

```python
from asmlib import *
from common import *
from sync import Sync
import numpy as np

ROWB = 272
KC_REGION = 20480
CV_UB = 9216 + 512

def cmul(dst, a, b, tmp):
    i1 = "v_pk_mul_f32 %s, %s, %s op_sel:[0,0] op_sel_hi:[0,1]" % (v(tmp,2), v(a,2), v(b,2))
    i2 = "v_pk_fma_f32 %s, %s, %s, %s op_sel:[1,1,0] op_sel_hi:[1,0,1] neg_lo:[0,1,0]" % (v(dst,2), v(a,2), v(b,2), v(tmp,2))
    return i1, i2

def emit_kc(a, s_idx):
    vT0, vT1, vOff = 1, 2, 3
    vDt, vFrag = 4, 5
    vP = 6
    vWA = 24
    vD = 40
    vFA = 56
    vFB = 88
    vW1, vW8, vW16, vM = 120, 122, 124, 126
    vX = 140
    vYE, vYO = 158, 160
    vTA, vTB = 162, 164
    vZ = 166
    vC = 170
    vS = 178
    vDs, vZero, vPA, vL16 = 190, 191, 192, 193
    vTag, vPoll, vUg = 194, 196, 200
    sWs, sDs, sDbg = 24, 26, 28
    sWave, sD, sT, sL, sU, sCnt, sFo = 30, 31, 32, 33, 34, 35, 39
    sSy = 36
    sFl, sXN, sST = 40, 44, 48
    sy = Sync(a, sFl, sDbg, vTag, vPoll, sSy, vZero)
    a.c("================ role: kgen + conv ================")
    a.stamp(0)
    a("s_load_dwordx16 s[8:23], s[0:1], 0")
    a("s_load_dwordx2 s[%d:%d], s[0:1], %d" % (sDs, sDs+1, KA_DSKIP))
    a("s_load_dwordx2 s[%d:%d], s[0:1], %d" % (sDbg, sDbg+1, KA_DBG))
    a("s_load_dwordx2 s[%d:%d], s[0:1], %d" % (sWs, sWs+1, KA_WS))
    a("v_lshrrev_b32 v%d, 6, v0" % vT0)
    a("v_and_b32 v0, 63, v0")
    a("v_readfirstlane_b32 s%d, v%d" % (sWave, vT0))
    for i in range(18): a("v_mov_b32 v%d, 0" % (vP+i))
    a("v_mov_b32 v%d, 0" % vDt); a("v_mov_b32 v%d, 0" % vDs); a("v_mov_b32 v%d, 0" % vZero)
    a("s_lshl2_add_u32 s%d, s%d, s%d" % (sD, s_idx, sWave))
    a("s_mul_i32 s%d, s%d, 384" % (sT, sD))
    a("v_lshlrev_b32 v%d, 1, v0" % vOff)
    a("v_add_u32 v%d, s%d, v%d" % (vOff, sT, vOff))
    a("s_lshl_b32 s%d, s%d, 1" % (sT, sD))
    a("v_mov_b32 v%d, s%d" % (vT1, sT))
    a("s_waitcnt lgkmcnt(0)")
    a.vmem("global_load_short_d16_hi v%d, v%d, s[22:23]" % (vDt, vT1), "dt")
    for st in range(3):
        for k in range(6):
            a.vmem("global_load_short_d16_hi v%d, v%d, s[%d:%d] offset:%d" % (vP+st*6+k, vOff, 10+2*k, 11+2*k, 128*st), "p")
    a.vmem("global_load_short_d16_hi v%d, v%d, s[%d:%d]" % (vDs, vT1, sDs, sDs+1), "p")
    a("s_setprio 0")
    a.srd_off(sFl, sWs, WS_FLAGS, FLAGS_BYTES)
    a.srd_off(sXN, sWs, WS_XNT, XNT_BYTES)
    a.srd_off(sST, sWs, WS_ST, ST_BYTES)
    a("s_mul_i32 s%d, s%d, %d" % (sL, sWave, KC_REGION))
    a("s_lshl_b32 s%d, s%d, 12" % (sU, sD))
    a("s_lshl_b32 s%d, s%d, 3" % (sFo, sD))
    a("s_add_u32 s%d, s%d, %d" % (sFo, sFo, FL_S))
    a("v_lshlrev_b32 v%d, 2, v0" % vT0)
    a("v_add_u32 v%d, s%d, v%d" % (vWA, sL, vT0))
    for g in range(1, 16): a("v_add_u32 v%d, %d, v%d" % (vWA+g, g*4*ROWB, vWA))
    a("v_and_b32 v%d, 31, v0" % vT0)
    a("v_mul_u32_u24 v%d, %d, v%d" % (vFrag, ROWB, vT0))
    a("v_lshrrev_b32 v%d, 5, v0" % vT0)
    a("v_lshl_add_u32 v%d, v%d, 4, v%d" % (vFrag, vT0, vFrag))
    a("v_add_u32 v%d, s%d, v%d" % (vFrag, sL, vFrag))
    a("v_lshlrev_b32 v%d, 4, v0" % vL16)
    sy.poll_addr(vPA, 64)
    a("v_lshrrev_b32 v%d, 2, v0" % vUg)
    a("v_mul_u32_u24 v%d, 40960, v%d" % (vUg, vUg))
    a("v_and_b32 v%d, 3, v0" % vT0)
    a("v_lshl_add_u32 v%d, v%d, 4, v%d" % (vUg, vT0, vUg))
    for i in range(80): a("v_mov_b32 v%d, 0" % (vD+i))
    Lhi = np.float32(LOG2E); Llo = np.float32(LOG2E - float(Lhi))
    a.wait(vm="dt")
    a.stamp(1)
    a("v_mul_f32 v%d, %s, v%d" % (vS, fhex(Lhi), vDt))
    a("s_mov_b32 s%d, %s" % (sT, fhex(Lhi)))
    a("v_fma_f32 v%d, v%d, s%d, -v%d" % (vS+1, vDt, sT, vS))
    a("v_fmamk_f32 v%d, v%d, %s, v%d" % (vS+1, vDt, fhex(Llo), vS+1))
    a("v_exp_f32 v%d, v%d" % (vS, vS))
    a("v_mul_f32 v%d, %s, v%d" % (vS+1, fhex(0.6931471805599453), vS+1))
    a("v_fma_f32 v%d, v%d, v%d, v%d" % (vS, vS, vS+1, vS))
    a("v_cvt_pk_bf16_f32 v%d, v%d, v%d" % (vDt, vS, vS))
    a("v_and_b32 v%d, 0xffff0000, v%d" % (vDt, vDt))
    a.wait(vm="all")
    a("s_mov_b32 s%d, 0" % sCnt)

    def wr2(row0, r0, r1):
        g, o = row0 // 4, row0 % 4
        return "ds_write2_b32 v%d, v%d, v%d offset0:%d offset1:%d" % (vWA+g, r0, r1, o*68, (o+1)*68)
    def xrow(h, q): return 8*(q >> 2) + 4*h + (q & 3)
    mfmas = ["v_mfma_f32_32x32x16_bf16 %s, %s, %s, %s" % (v(vD,16), v(vFA+4*kk,4), v(vFB+4*kk,4), v(vD,16)) for kk in range(8)]
    P = vP
    setup = []
    e = setup.append
    aL, bL = vS, vS+1
    e("v_mul_f32 v%d, v%d, v%d" % (aL, vDt, P+0))
    e("v_mul_f32 v%d, v%d, v%d" % (bL, vDt, P+1))
    e("v_mul_f32 v%d, %s, v%d" % (aL, fhex(LOG2E), aL))
    e("v_mul_f32 v%d, %s, v%d" % (bL, fhex(INV2PI), bL))
    e("v_mul_f32 v%d, v%d, v%d" % (vZ, vDt, P+2))
    e("v_mul_f32 v%d, v%d, v%d" % (vZ+1, vDt, P+3))
    i1, i2 = cmul(vX, P+4, vZ, vTA)
    e(i1); e(i2)
    evs = [(1.0, vW1), (8.0, vW8), (256.0, vM)]
    for j, (l, dst) in enumerate(evs):
        m, p, r = vS+2+3*j, vS+3+3*j, vS+4+3*j
        if l == 1.0:
            e("v_exp_f32 v%d, v%d" % (m, aL))
            e("v_rndne_f32 v%d, v%d" % (r, bL))
            e("v_sub_f32 v%d, v%d, v%d" % (p, bL, r))
        else:
            e("v_mul_f32 v%d, %s, v%d" % (m, fhex(l), aL))
            e("v_mul_f32 v%d, %s, v%d" % (p, fhex(l), bL))
            e("v_exp_f32 v%d, v%d" % (m, m))
            e("v_rndne_f32 v%d, v%d" % (r, p))
            e("v_sub_f32 v%d, v%d, v%d" % (p, p, r))
    for i in range(12): e("v_mov_b32 v%d, v%d" % (P+i, P+6+i))
    body = []
    e = body.append
    for j, (l, dst) in enumerate(evs):
        p = vS+3+3*j
        e("v_cos_f32 v%d, v%d" % (dst, p))
        e("v_sin_f32 v%d, v%d" % (dst+1, p))
    e("v_mov_b32 v%d, 0x3f80" % (vC+0))
    for j, (l, dst) in enumerate(evs):
        m = vS+2+3*j
        e("v_mul_f32 v%d, v%d, v%d" % (dst, dst, m))
        e("v_mul_f32 v%d, v%d, v%d" % (dst+1, dst+1, m))
    for (d1, a1, b1), (d2, a2, b2) in [((vW16, vW8, vW8), (vM+2, vM, vM)), ((vM+4, vM+2, vM), (vM+6, vM+2, vM+2)), ((vM+8, vM+6, vM), (vM+10, vM+6, vM+2)), ((vM+12, vM+6, vM+4), (vYO, vW8, vW16))]:
        i1, i2 = cmul(d1, a1, b1, vTA); j1, j2 = cmul(d2, a2, b2, vTB)
        e(i1); e(j1); e(i2); e(j2)
    e("v_cvt_pk_bf16_f32 v%d, v%d, v%d" % (vC+1, vW8, vW8+1))
    e(wr2(32, vC+0, vC+1))
    curE = vW16
    xi = 0
    for pr in range(1, 16):
        c0, c1 = vC + 2*(pr & 1), vC + 2*(pr & 1) + 1
        e("v_cvt_pk_bf16_f32 v%d, v%d, v%d" % (c0, curE, curE+1))
        e("v_cvt_pk_bf16_f32 v%d, v%d, v%d" % (c1, vYO, vYO+1))
        if pr < 15:
            i1, i2 = cmul(vYE, curE, vW16, vTA); j1, j2 = cmul(vYO, vYO, vW16, vTB)
            e(i1); e(j1)
        e(wr2(32 + 2*pr, c0, c1))
        if xi < 8:
            x1, x2 = cmul(vX+2*(xi+1), vX+2*xi, vW1, vZ); e(x1)
        if pr < 15:
            e(i2); e(j2); curE = vYE
        if xi < 8:
            e(x2); xi += 1
    def cvx(dst, src): return "v_cvt_pk_bf16_f32 v%d, v%d, -v%d" % (dst, src, src+1)
    for q in range(0, 8, 2):
        c0 = vC + 4 + (q & 2)
        e(cvx(c0, vX+2*q)); e(cvx(c0+1, vX+2*q+2))
        e(wr2(xrow(0, q), c0, c0+1))
    def prod(dstpair, tmp, xidx, midx): return cmul(dstpair, vX+2*xidx, vM+2*(midx-1), tmp)
    pairs = [(xrow(0,8), (8,0), (0,2)), (xrow(0,10), (4,2), (8,2)), (xrow(0,12), (0,4), (8,4)), (xrow(0,14), (0,5), (8,5)),
             (xrow(1,10), (4,3), (8,3)), (xrow(1,12), (0,6), (8,6)), (xrow(1,14), (0,7), (8,7))]
    k = 0
    for row0, p0, p1 in pairs:
        c0 = vC + 2*(k & 3); k += 1
        ins = []; srcs = []
        for idx, (xx, mm) in enumerate((p0, p1)):
            if mm == 0: srcs.append(vX+2*xx)
            else:
                ins.append(prod(vZ+2*idx, (vTA, vTB)[idx], xx, mm)); srcs.append(vZ+2*idx)
        for t in ins: e(t[0])
        for t in ins: e(t[1])
        e(cvx(c0, srcs[0])); e(cvx(c0+1, srcs[1]))
        e(wr2(row0, c0, c0+1))
    i = prod(vZ, vTA, 0, 1); j = prod(vZ+2, vTB, 2, 1)
    e(i[0]); e(j[0]); e(i[1]); e(j[1])
    e(cvx(vC+0, vZ)); e(cvx(vC+1, vZ+2))
    e(wr2(xrow(1,0), vC+0, vC+0))
    i = prod(vZ, vTA, 4, 1); j = prod(vZ+2, vTB, 6, 1)
    e(i[0]); e(j[0]); e(i[1]); e(j[1])
    e(cvx(vC+2, vZ)); e(cvx(vC+3, vZ+2))
    e(wr2(xrow(1,2), vC+1, vC+2))
    e(wr2(xrow(1,4), vC+2, vC+2))
    i = prod(vZ, vTA, 8, 1); j = prod(vZ+2, vTB, 0, 3)
    e(i[0]); e(j[0]); e(i[1]); e(j[1])
    e(cvx(vC+4, vZ)); e(cvx(vC+5, vZ+2))
    e(wr2(xrow(1,6), vC+3, vC+4))
    e(wr2(xrow(1,8), vC+4, vC+5))
    lp = a.newlabel("L_kgen")
    a.label(lp)
    sy.tag_load()
    sy.poll_issue(vPA, "0", FL_LNT, "lnt")
    for t in setup: a(t)
    a("s_waitcnt lgkmcnt(0)")
    mf = list(mfmas)
    for cnt, t in enumerate(body):
        if mf and cnt % 8 == 0: a(mf.pop(0))
        a(t)
    assert not mf
    for kk in range(8):
        a("ds_read_b128 %s, v%d offset:%d" % (v(vFA+4*kk,4), vFrag, 32*kk))
        a("ds_read_b128 %s, v%d offset:%d" % (v(vFB+4*kk,4), vFrag, 32*kk + 32*ROWB))
    a("s_add_u32 s%d, s%d, 1" % (sCnt, sCnt))
    a("s_cmp_lt_u32 s%d, 3" % sCnt)
    a("s_cbranch_scc1 %s" % lp)
    a.stamp(2)
    vOA, vOC, vOT = vS, vS+1, vS+2
    a("v_sub_u32 v%d, 1008, v%d" % (vOA, vL16))
    a("v_add_u32 v%d, s%d, v%d" % (vOA, sL, vOA))
    a("v_and_b32 v%d, 0x1f0, v%d" % (vOC, vL16))
    a("v_add_u32 v%d, s%d, v%d" % (vS+3, sL, vOC))
    a("v_lshrrev_b32 v%d, 5, v0" % vT1)
    a("v_lshl_add_u32 v%d, v%d, 10, v%d" % (vOC, vT1, vOC))
    a("v_sub_u32 v%d, 1520, v%d" % (vOC, vOC))
    a("v_add_u32 v%d, s%d, v%d" % (vOC, sL, vOC))
    a("v_cmp_eq_u32 vcc, 0, v0")
    a("v_and_b32 v%d, 1, v0" % vT0)
    a("v_lshlrev_b32 v%d, 4, v%d" % (vOT, vT0))
    a("v_cndmask_b32 v%d, 0, v%d, vcc" % (vDs, vDs))
    a("v_bfe_u32 v%d, v0, 1, 1" % vT1)
    a("v_mul_u32_u24 v%d, %d, v%d" % (vT1, RO_OFF, vT1))
    a("v_add3_u32 v%d, v%d, v%d, s%d" % (vOT, vOT, vT1, sL))
    sy.tag_check()
    sy.poll_check(vPA, "0", FL_LNT, "lnt")
    a("s_waitcnt lgkmcnt(0)")
    a("s_lshl_b32 s%d, s%d, 6" % (sT, sD))
    for i in range(4):
        a("s_add_u32 m0, s%d, %d" % (sL, CV_UB + i*1024))
        a(mfmas[i])
        a.vmem("buffer_load_dwordx4 v%d, s[%d:%d], s%d offen sc1 lds" % (vUg, sXN, sXN+3, sT), "u")
        a("s_add_u32 s%d, s%d, %d" % (sT, sT, 16*40960))
    for t in mfmas[4:]: a(t)
    vA, vB = vWA, vWA+4
    vZr = vWA+8
    for i in range(4): a("v_mov_b32 v%d, 0" % (vZr+i))
    a("ds_write_b128 v%d, %s offset:9216" % (vS+3, v(vZr,4)))
    a("v_and_b32 v%d, 15, v0" % vT0)
    a("v_lshrrev_b32 v%d, 4, v0" % vT1)
    a("v_lshlrev_b32 v%d, 3, v%d" % (vA, vT1))
    a("v_sub_u32 v%d, v%d, v%d" % (vA, vA, vT0))
    a("v_lshlrev_b32 v%d, 1, v%d" % (vA, vA))
    a("v_and_b32 v%d, 1, v0" % (vA+1))
    a("v_cmp_eq_u32 vcc, 1, v%d" % (vA+1))
    a("v_xor_b32 v%d, 1, v%d" % (vA+1, vA+1))
    a("v_mul_u32_u24 v%d, %d, v%d" % (vA+1, RO_OFF + 2, vA+1))
    a("v_add3_u32 v%d, v%d, v%d, s%d" % (vA, vA, vA+1, sL))
    for j in (3, 2, 1, 0):
        a("v_add_u32 v%d, %d, v%d" % (vA+j, 4062 - 1024*j - 512 - 64, vA))
    a("v_lshlrev_b32 v%d, 5, v%d" % (vB, vT0))
    a("v_lshl_add_u32 v%d, v%d, 4, v%d" % (vB, vT1, vB))
    a("v_add_u32 v%d, s%d, v%d" % (vB, sL, vB))
    a("v_add_u32 v%d, %d, v%d" % (vB, CV_UB - 32 - 64, vB))
    d = lambda q: vD + q
    a("v_add_f32 v%d, v%d, v%d" % (d(0), d(0), vDs))
    O = vFA
    def pk(dst, lo, hi): a("v_cvt_pk_bf16_f32 v%d, v%d, v%d" % (dst, lo, hi))
    def st(reg, voff, imm): a("ds_write_b128 v%d, %s offset:%d" % (voff, v(reg,4), imm))
    for i, (lo, hi) in enumerate([(7,6),(5,4),(3,2),(1,0)]): pk(O+i, d(lo), d(hi))
    st(O, vOA, 3072)
    for i, (lo, hi) in enumerate([(8,7),(6,5),(4,3),(2,1)]): pk(O+4+i, d(lo), d(hi))
    st(O+4, vOA, RO_OFF + 3072)
    for i, (lo, hi) in enumerate([(11,11),(10,10),(10,9),(9,9)]): pk(O+8+i, d(lo), d(hi))
    st(O+8, vOA, 2048)
    for i, (lo, hi) in enumerate([(11,11),(11,10),(10,10),(9,9)]): pk(O+12+i, d(lo), d(hi))
    st(O+12, vOA, RO_OFF + 2048)
    for sl, (qa, imm) in enumerate([(12, 512), (14, 0)]):
        x = vS+4+sl
        a("v_cndmask_b32 v%d, v%d, v%d, vcc" % (x, d(qa), d(qa+1)))
        B = O+16+8*sl
        for i, (lo, hi) in enumerate([(d(qa+1),d(qa+1)),(d(qa+1),x),(d(qa),d(qa)),(d(qa),d(qa))]): pk(B+i, lo, hi)
        st(B, vOC, imm)
        for i, (lo, hi) in enumerate([(d(qa+1),d(qa+1)),(d(qa+1),d(qa+1)),(x,d(qa)),(d(qa),d(qa))]): pk(B+4+i, lo, hi)
        st(B+4, vOC, RO_OFF + imm)
    a("v_readlane_b32 s%d, v%d, 0" % (sT, d(0)))
    a("v_and_b32 v%d, 3, v0" % vT0)
    a("v_cmp_eq_u32 vcc, 2, v%d" % vT0)
    a("v_cvt_pk_bf16_f32 v%d, s%d, 0" % (vT1, sT))
    a("s_nop 0")
    a("v_cndmask_b32 v%d, 0, v%d, vcc" % (vZr, vT1))
    st(vZr, vOT, 4096)
    vAcc = 208
    vFr = 56
    vO = 240
    for i in range(32): a("v_mov_b32 v%d, 0" % (vAcc+i))
    def frA(buf, k1): return vFr + buf*64 + 4*k1
    def frB(buf, mu): return vFr + buf*64 + 32 + 4*mu
    def reads(buf, par):
        out = []
        ex = 64 if par == 0 else 0
        for i in range(8):
            j = i // 2
            o = (128 if i % 2 == 0 else 0) + ex//4
            out.append("ds_read2_b32 %s, v%d offset0:%d offset1:%d" % (v(frA(buf,i),2), vA+j, o, o+1))
            out.append("ds_read2_b32 %s, v%d offset0:%d offset1:%d" % (v(frA(buf,i)+2,2), vA+j, o+2, o+3))
            out.append("ds_read_b128 %s, v%d offset:%d" % (v(frB(buf,i),4), vB, 512*i + ex))
        return out
    def cmfmas(buf):
        out = []
        for sm in range(8):
            for k1 in range(sm+1):
                for mu in range(sm+1):
                    if max(k1, mu) == sm and k1 + mu <= 7:
                        c = k1 + mu
                        out.append("v_mfma_f32_16x16x32_bf16 %s, %s, %s, %s" % (v(vAcc+4*c,4), v(frA(buf,k1),4), v(frB(buf,mu),4), v(vAcc+4*c,4)))
        return out
    a("s_waitcnt vmcnt(0) lgkmcnt(0)")
    a.vm = []
    a.stamp(3)
    for ins in reads(0, 0): a(ins)
    a("s_mov_b32 s%d, 0" % sCnt)
    lp = a.newlabel("L_conv")
    a.label(lp)
    for buf in (0, 1):
        a("s_waitcnt lgkmcnt(0)")
        if buf == 1:
            for j in range(4): a("v_subrev_u32 v%d, 128, v%d" % (vA+j, vA+j))
            a("v_subrev_u32 v%d, 128, v%d" % (vB, vB))
        rd = reads(1-buf, 1 if buf == 0 else 0)
        ri = 0
        for m in cmfmas(buf):
            a(m)
            if ri < len(rd):
                a(rd[ri]); ri += 1
    a("s_add_u32 s%d, s%d, 1" % (sCnt, sCnt))
    a("s_cmp_lt_u32 s%d, 4" % sCnt)
    a("s_cbranch_scc1 %s" % lp)
    a.stamp(4)
    a("v_and_b32 v%d, 15, v0" % vT0)
    a("v_lshrrev_b32 v%d, 4, v0" % vT1)
    a("v_lshlrev_b32 v%d, 5, v%d" % (vT0, vT0))
    a("v_lshl_add_u32 v%d, v%d, 3, v%d" % (vT0, vT1, vT0))
    a("v_add_u32 v%d, s%d, v%d" % (vT0, sL, vT0))
    a("v_add_u32 v%d, s%d, v%d" % (vT1, sL, vL16))
    a.nop(2)
    for c in range(8):
        a("v_cvt_pk_bf16_f32 v%d, v%d, v%d" % (vO+2*c, vAcc+4*c, vAcc+4*c+1))
        a("v_cvt_pk_bf16_f32 v%d, v%d, v%d" % (vO+2*c+1, vAcc+4*c+2, vAcc+4*c+3))
        a("ds_write_b64 v%d, %s offset:%d" % (vT0, v(vO+2*c,2), 512*c))
    for p in range(4): a("ds_read_b128 %s, v%d offset:%d" % (v(vAcc+4*p,4), vT1, 1024*p))
    for p in range(4):
        a("s_waitcnt lgkmcnt(%d)" % (3-p))
        a.vmem("buffer_store_dwordx4 %s, v%d, s[%d:%d], s%d offen offset:%d sc1" % (v(vAcc+4*p,4), vL16, sST, sST+3, sU, p*1024), "st")
    a("s_waitcnt vmcnt(0) lgkmcnt(0)")
    sy.signal("s%d" % sFo, 0)
    a.stamp(5)
    a.stamp_dump(6, sWave, 56, (200 << 20))
    a("s_endpgm")
    a.vm = []; a.lg = []
```

```python
from asmlib import *
from common import *

class Sync:
    def __init__(self, a, sFl, sDbg, vTag, vP, sTmp, vZero):
        self.a, self.sFl, self.sDbg, self.vTag, self.vP, self.sT, self.vZ = a, sFl, sDbg, vTag, vP, sTmp, vZero
    def publish_tag(self, vtmp):
        a = self.a
        a("s_memrealtime s[%d:%d]" % (self.sT, self.sT+1))
        a("s_waitcnt lgkmcnt(0)")
        a("s_or_b32 s%d, s%d, 1" % (self.sT, self.sT))
        a("v_mov_b32 v%d, s%d" % (vtmp, self.sT))
        a("v_mov_b32 v%d, s%d" % (vtmp+1, self.sT+1))
        a.vmem("global_store_dwordx2 v%d, %s, s[%d:%d] sc1" % (self.vZ, v(vtmp,2), self.sDbg, self.sDbg+1), "tagst")
    def tag_load(self):
        self.a.vmem("global_load_dwordx2 %s, v%d, s[%d:%d] sc1" % (v(self.vTag,2), self.vZ, self.sDbg, self.sDbg+1), "tag")
    def tag_check(self):
        a = self.a
        a.wait(vm="tag")
        if getattr(a, "NOPOLL", False): return
        ok = a.newlabel("L_tagok"); lp = a.newlabel("L_tagspin")
        a("v_cmp_ne_u32 vcc, 0, v%d" % self.vTag)
        a("s_cbranch_vccnz %s" % ok)
        a("s_mov_b32 s%d, 0" % (self.sT+2))
        a.label(lp)
        a("s_sleep 2")
        a("global_load_dwordx2 %s, v%d, s[%d:%d] sc1" % (v(self.vTag,2), self.vZ, self.sDbg, self.sDbg+1))
        a("s_add_u32 s%d, s%d, 1" % (self.sT+2, self.sT+2))
        a("s_cmp_gt_u32 s%d, 0x%x" % (self.sT+2, SPIN_MAX))
        a("s_waitcnt vmcnt(0)")
        a("s_cbranch_scc1 %s" % ok)
        a("v_cmp_ne_u32 vcc, 0, v%d" % self.vTag)
        a("s_cbranch_vccz %s" % lp)
        a.label(ok)
    def poll_addr(self, vaddr, nflags):
        a = self.a
        a("v_min_u32 v%d, %d, v0" % (vaddr, nflags//2 - 1))
        a("v_lshlrev_b32 v%d, 4, v%d" % (vaddr, vaddr))
    def _ld(self, vaddr, soff, imm, vP):
        return "buffer_load_dwordx4 %s, v%d, s[%d:%d], %s offen offset:%d sc1" % (v(vP,4), vaddr, self.sFl, self.sFl+3, soff, imm)
    def poll_issue(self, vaddr, soff, imm, tag, vP=None):
        self.a.vmem(self._ld(vaddr, soff, imm, self.vP if vP is None else vP), tag)
    def poll_check(self, vaddr, soff, imm, tag, vP=None, sleep=1):
        a = self.a
        if vP is None: vP = self.vP
        ok = a.newlabel("L_pok"); lp = a.newlabel("L_pspin"); ck = a.newlabel("L_pchk")
        a.wait(vm=tag)
        if getattr(a, "NOPOLL", False): return
        a("s_mov_b32 s%d, 0" % (self.sT+2))
        a("s_branch %s" % ck)
        a.label(lp)
        a("s_sleep %d" % sleep)
        a(self._ld(vaddr, soff, imm, vP))
        a("s_add_u32 s%d, s%d, 1" % (self.sT+2, self.sT+2))
        a("s_cmp_gt_u32 s%d, 0x%x" % (self.sT+2, SPIN_MAX))
        a("s_waitcnt vmcnt(0)")
        a("s_cbranch_scc1 %s" % ok)
        a.label(ck)
        a("v_cmp_ne_u64 vcc, %s, %s" % (v(vP,2), v(self.vTag,2)))
        a("v_cmp_ne_u64 s[%d:%d], %s, %s" % (self.sT, self.sT+1, v(vP+2,2), v(self.vTag,2)))
        a("s_or_b64 vcc, vcc, s[%d:%d]" % (self.sT, self.sT+1))
        a("s_cbranch_scc1 %s" % lp)
        a.label(ok)
    def signal(self, soff, imm):
        a = self.a
        a("s_mov_b64 exec, 1")
        a.vmem("buffer_store_dwordx2 %s, v%d, s[%d:%d], %s offen offset:%d sc1" % (v(self.vTag,2), self.vZ, self.sFl, self.sFl+3, soff, imm), "flag")
        a("s_mov_b64 exec, -1")
    def granule_check(self, ld, tag, vtagfield, sleep=1):
        a = self.a
        ok = a.newlabel("L_gok"); lp = a.newlabel("L_gspin"); ck = a.newlabel("L_gchk")
        a.wait(vm=tag)
        if getattr(a, "NOPOLL", False): return
        a("s_mov_b32 s%d, 0" % (self.sT+2))
        a("s_branch %s" % ck)
        a.label(lp)
        a("s_sleep %d" % sleep)
        a(ld)
        a("s_add_u32 s%d, s%d, 1" % (self.sT+2, self.sT+2))
        a("s_cmp_gt_u32 s%d, 0x%x" % (self.sT+2, SPIN_MAX))
        a("s_waitcnt vmcnt(0)")
        a("s_cbranch_scc1 %s" % ok)
        a.label(ck)
        a("v_cmp_ne_u64 vcc, %s, %s" % (v(vtagfield,2), v(self.vTag,2)))
        a("s_cbranch_vccnz %s" % lp)
        a.label(ok)
```

```python
import sys
from asmlib import *
from common import *
from kc import emit_kc
from aux2 import emit_lnt, emit_w2f
from gemm3 import emit_gemm
NAME = "recurrent_scan__ssm_conv_s4__dense_activation_mish__prompt_kernel"
HDR = open("recurrent_scan__ssm_conv_s4__dense_activation_mish__prompt.s.ref").read().split("; Override launch")[0]
def build(path, prof=False, auxprio=3, nopoll=False, noaux=0, **kw):
    a = Asm()
    a.NOPOLL = nopoll
    a.PROF = prof
    a.raw(HDR.rstrip())
    a.raw("; @launch grid=(512,1,1) block=(256,1,1) lds=81920")
    a.raw('.amdgcn_target "amdgcn-amd-amdhsa--gfx950"')
    a.raw(".text")
    kernel_begin(a, NAME)
    a("s_cmp_ge_u32 s2, 256")
    a("s_cbranch_scc1 L_gemm")
    if noaux == 1: a("s_endpgm")
    if noaux == 2:
        a("s_cmp_lt_u32 s2, 96"); a("s_cbranch_scc1 L_end")
    if noaux == 3:
        a("s_cmp_ge_u32 s2, 96"); a("s_cbranch_scc1 L_end")
    if auxprio: a("s_setprio %d" % auxprio)
    a("s_cmp_ge_u32 s2, 96")
    a("s_cbranch_scc1 L_kc")
    a("s_cmp_ge_u32 s2, 64")
    a("s_cbranch_scc1 L_w2f")
    a("s_mov_b32 s3, s2")
    emit_lnt(a, 3)
    a.label("L_w2f")
    a("s_sub_u32 s3, s2, 64")
    emit_w2f(a, 3)
    a.label("L_kc")
    a("s_sub_u32 s3, s2, 96")
    emit_kc(a, 3)
    a.label("L_gemm")
    a("s_cmp_ge_u32 s2, 512")
    a("s_cbranch_scc1 L_end")
    a("s_sub_u32 s3, s2, 256")
    emit_gemm(a, 3, **kw)
    a.label("L_end")
    a("s_endpgm")
    a.raw('.section .rodata,"a"')
    a.raw(".p2align 6")
    a.raw(kernel_desc(NAME, 256, 102))
    open(path, "w").write(a.text())
if __name__ == "__main__":
    build("one_prof.s", prof=True)
    build("one.s", prof=False)
    build("one_np1.s", prof=True, nopoll=True, noaux=1, stage_stamps=False)
    build("one_np2.s", prof=True, nopoll=True, noaux=2)
    build("one_np3.s", prof=True, nopoll=True, noaux=3)
    build("one_np0.s", prof=True, nopoll=True, noaux=0)
```

```python
import struct

def f2u(x):
    return struct.unpack("<I", struct.pack("<f", x))[0]

def fhex(x):
    return "0x%08x" % f2u(x)

def v(i, n=1):
    return "v%d" % i if n == 1 else "v[%d:%d]" % (i, i + n - 1)

def s(i, n=1):
    return "s%d" % i if n == 1 else "s[%d:%d]" % (i, i + n - 1)

class Asm:
    def __init__(self):
        self.lines = []
        self.vm = []
        self.lg = []
        self.nlabel = 0
    def __call__(self, txt):
        self.lines.append("    " + txt)
    def c(self, txt):
        self.lines.append("    ; " + txt)
    def label(self, name):
        self.lines.append(name + ":")
    def raw(self, txt):
        self.lines.append(txt)
    def newlabel(self, base="L"):
        self.nlabel += 1
        return "%s_%d" % (base, self.nlabel)
    def text(self):
        return "\n".join(self.lines) + "\n"
    def vmem(self, txt, tag=None):
        self(txt)
        self.vm.append(tag)
    def lds(self, txt, tag=None):
        self(txt)
        self.lg.append(tag)
    def _n_after(self, lst, tags):
        last = -1
        for i, t in enumerate(lst):
            if t in tags:
                last = i
        if last < 0:
            return None
        return len(lst) - 1 - last, last
    def wait(self, vm=None, lg=None):
        parts = []
        if vm is not None:
            if vm == "all":
                parts.append("vmcnt(0)"); self.vm = []
            else:
                if not isinstance(vm, (list, tuple, set)): vm = [vm]
                r = self._n_after(self.vm, set(vm))
                if r is not None:
                    n, last = r
                    if n <= 63:
                        parts.append("vmcnt(%d)" % n)
                        self.vm = self.vm[last + 1:]
                    else:
                        raise Exception("vmcnt overflow")
        if lg is not None:
            if lg == "all":
                parts.append("lgkmcnt(0)"); self.lg = []
            else:
                if not isinstance(lg, (list, set)): lg = [lg]
                r = self._n_after(self.lg, set(lg))
                if r is not None:
                    n, last = r
                    n2 = min(n, 14)
                    parts.append("lgkmcnt(%d)" % n2)
                    self.lg = self.lg[len(self.lg) - n2:] if n2 > 0 else []
        if parts:
            self("s_waitcnt " + " ".join(parts))
    PROF = False
    STAMP_S = 80
    def stamp(self, i):
        if not self.PROF: return
        self("s_memrealtime s[98:99]")
        self("s_waitcnt lgkmcnt(0)")
        self("s_mov_b32 s%d, s98" % (self.STAMP_S + i))
        self.lg = []
    def cstamp(self, i):
        if not self.PROF: return
        self("s_memtime s[98:99]")
        self("s_waitcnt lgkmcnt(0)")
        self("s_mov_b32 s%d, s98" % (self.STAMP_S + i))
        self.lg = []
    def stamp_dump(self, n, vtid_wave_sgpr, vtmp, ws_off=200 << 20):
        if not self.PROF: return
        self("s_load_dwordx2 s[96:97], s[0:1], 120")
        self("s_waitcnt lgkmcnt(0)")
        self("s_add_u32 s96, s96, 0x%x" % ws_off)
        self("s_addc_u32 s97, s97, 0")
        self("s_lshl_b32 s98, s2, 3")
        self("s_add_u32 s98, s98, s%d" % vtid_wave_sgpr)
        self("s_lshl_b32 s98, s98, 6")
        self("s_mov_b64 exec, 1")
        self("v_mov_b32 v%d, s98" % (vtmp + 16))
        for i in range(16):
            self("v_mov_b32 v%d, s%d" % (vtmp + i, self.STAMP_S + min(i, n-1)))
        for q in range(4):
            self("global_store_dwordx4 v%d, v[%d:%d], s[96:97] offset:%d" % (vtmp + 16, vtmp + 4*q, vtmp + 4*q + 3, 16*q))
    def nop(self, n):
        while n > 0:
            k = min(n, 16)
            self("s_nop %d" % (k - 1))
            n -= k
    def srd(self, d, base, nbytes):
        self("s_mov_b32 s%d, s%d" % (d, base))
        self("s_and_b32 s%d, s%d, 0xffff" % (d + 1, base + 1))
        self("s_mov_b32 s%d, 0x%x" % (d + 2, nbytes))
        self("s_mov_b32 s%d, 0x00020000" % (d + 3))
    def srd_off(self, d, base, off, nbytes):
        self("s_add_u32 s%d, s%d, 0x%x" % (d, base, off))
        self("s_addc_u32 s%d, s%d, 0" % (d + 1, base + 1))
        self("s_and_b32 s%d, s%d, 0xffff" % (d + 1, d + 1))
        self("s_mov_b32 s%d, 0x%x" % (d + 2, nbytes))
        self("s_mov_b32 s%d, 0x00020000" % (d + 3))

def kernel_begin(a, name):
    a.raw(".globl %s" % name)
    a.raw(".p2align 8")
    a.raw(".type %s,@function" % name)
    a.raw("%s:" % name)

def kernel_desc(name, vgpr, sgpr, accum=None):
    if accum is None:
        accum = (vgpr + 3) // 4 * 4
    return """.amdhsa_kernel %s
  .amdhsa_next_free_vgpr %d
  .amdhsa_next_free_sgpr %d
  .amdhsa_accum_offset %d
  .amdhsa_group_segment_fixed_size 0
  .amdhsa_kernarg_size 128
  .amdhsa_user_sgpr_count 2
  .amdhsa_user_sgpr_kernarg_segment_ptr 1
  .amdhsa_system_sgpr_workgroup_id_x 1
.end_amdhsa_kernel
""" % (name, vgpr, sgpr, accum)
```

```python
import math
KA_X, KA_ARE, KA_AIM, KA_BRE, KA_BIM, KA_CRE, KA_CIM, KA_LOGDT, KA_DSKIP, KA_BX, KA_W1, KA_B1, KA_W2, KA_OUT, KA_DBG, KA_WS = [8*i for i in range(16)]
P_X, P_ARE, P_AIM, P_BRE, P_BIM, P_CRE, P_CIM, P_LOGDT, P_DSKIP, P_BX, P_W1, P_B1, P_W2, P_OUT, P_DBG, P_WS = [8+2*i for i in range(16)]
S_WG, S_WAVE = 2, 3
WS_ACT = 0
WS_W2F = 8 << 20
WS_XN  = 12 << 20
WS_SF = 29 << 20
SF_BYTES = 2048*8
WS_ST  = 24 << 20
WS_STATS = 30 << 20
WS_FLAGS = 31 << 20
ACT_BYTES = 2048*1536*2
W2F_BYTES = 1536*640*2
TRS = 4096 + 256
XN_BYTES = 640*TRS
ST_BYTES = 640*TRS
STATS_BYTES = 2048*16
FL_LNT = 0
FL_ACT = 4096
FL_S   = 16384
FL_W2F = 24576
FL_XT = 36864
FLAGS_BYTES = 45056
SPIN_MAX = 1 << 16
RO_OFF = 4160
LOG2E = 1.4426950408889634
INV2PI = 1.0/(2*math.pi)
ONES_BF = 0x3f803f80
L_W = 0
L_X = 49152
L_AUX = 98304
L_CTL = 159744
C_RDY = L_CTL
C_REL = L_CTL + 16
C_BAR = L_CTL + 32
C_TAG = L_CTL + 48
C_DUMMY = L_CTL + 64
C_CS = L_CTL + 512
LDS_BYTES = 163840
```

```python
from asmlib import *
from common import *
from sync import Sync
from loader import tile_maps, k_rotation, k_rotation2, x_src_offsets

G2_P = 61440
G2_PW = 3328
G2_PRS = 40

def emit_compute(a, plan, prio=1):
    vT0, vT1, vT2 = 1, 2, 3
    vTag, vZero, vL16, vPoll = 4, 6, 7, 8
    vRelA, vRv, vCtl, vBarA = 12, 13, 14, 15
    vXr, vWr = 16, 20
    vSt, vSo, vCw, vCr = 24, 25, 26, 27
    vB1 = 28
    vC1, vC2, vC3 = 32, 34, 36
    vOne = 36
    vBar = vPoll
    vAcc = 40
    WB = [112, 124, 136]
    vXF = [148, 164]
    vCs4 = [88, 92, 96]
    vP, vAp, vBp = 180, 192, 204
    sRb, sCb, sRb2, sCb2, sT, sT2, sM, sAo, sRdy, sFa, sFs, sFw = 40, 41, 42, 43, 44, 45, 46, 47, 48, 49, 50, 51
    sSy = 52
    sRet = 100
    sK = 56
    sAct, sFl, sStt, sW2F, sOut, sST, sXs = 60, 64, 68, 72, 76, 4, 12
    sA, sB, sK2, sK3 = 16, 20, 25, 10
    W = S_WAVE
    sy = Sync(a, sFl, P_DBG, vTag, vPoll, sSy, vZero)
    a.c("================ role: compute (gemm1 + gemm2) ================")
    a.stamp(0)
    if a.PROF: a("s_mov_b32 s88, 0")
    a("v_lshlrev_b32 v%d, 2, v0" % vT0)
    a("v_add_u32 v%d, %d, v%d" % (vRelA, C_DUMMY, vT0))
    a("v_mov_b32 v%d, 0" % vZero)
    if prio: a("s_setprio %d" % prio)
    a("s_lshl_b32 s%d, s%d, 2" % (sT, W))
    a("s_add_u32 s%d, s%d, %d" % (sT, sT, C_REL))
    a("v_mov_b32 v%d, s%d" % (vT1, sT))
    a("v_cmp_eq_u32 vcc, 0, v0")
    a("v_mov_b32 v%d, %d" % (vCtl, L_CTL))
    a("s_mov_b32 s%d, 0" % sRdy)
    a("v_cndmask_b32 v%d, v%d, v%d, vcc" % (vRelA, vRelA, vT1))
    tile_maps(a, sRb, sCb, None, None, sT)
    vXd = 100
    sXb, sXk, sXm = 16, 17, 18
    x_src_offsets(a, vXd, vT0, vT1, vT2)
    k_rotation(a, sM, sT2, sRb, sCb)
    a("s_lshl2_add_u32 s%d, s%d, s%d" % (sT, sRb, W))
    a("s_waitcnt lgkmcnt(0)")
    a("s_mul_i32 s%d, s%d, 40960" % (sXb, sT))
    a("s_lshl_b32 s%d, s%d, 12" % (sXm, W))
    a("s_lshl_b32 s%d, s%d, 7" % (sXk, sM))
    a.srd(sXs, P_X, 2048*640*2)
    def xdma(st, i):
        if i == 0:
            a("s_add_u32 m0, s%d, %d" % (sXm, L_X + (st % 3)*16384))
            a("s_add_u32 s%d, s%d, s%d" % (sXb+3, sXb, sXk))
        a.vmem("buffer_load_dwordx4 v%d, s[%d:%d], s%d offen offset:%d lds" % (vXd+i, sXs, sXs+3, sXb+3, i*1024), "X%d" % st)
        if i == 0:
            a("s_add_u32 s%d, s%d, 128" % (sXk, sXk)); a("s_cmp_ge_u32 s%d, 1280" % sXk); a("s_cselect_b32 s%d, 0, s%d" % (sXk, sXk))
    for st in range(min(3, plan.NX_OWN)):
        for i in range(4): xdma(st, i)
    nt = a.newlabel("L_notag")
    a("s_lshl2_add_u32 s%d, s%d, s%d" % (sT, S_WG, W))
    a("s_cmp_lg_u32 s%d, %d" % (sT, 248*4))
    a("s_cbranch_scc1 %s" % nt)
    sy.publish_tag(vPoll)
    a.vm.pop()
    a.label(nt)
    if getattr(a, "NOREL", False): a("s_endpgm")
    ool = []
    st_ = {"peeked": False}
    vPk = 31
    def peek():
        st_["peeked"] = True
        a.lds("ds_read_b32 v%d, v%d" % (vPk, vCtl), "peek")
    def ready(name):
        if name not in plan.rdy:
            a.wait(vm=name); return
        k = plan.rdy[name]
        ok = a.newlabel("L_rok"); sp = a.newlabel("L_rspin")
        if "peek" in a.lg or st_["peeked"]:
            a.wait(lg="peek")
            a("v_readfirstlane_b32 s%d, v%d" % (sRdy, vPk))
            st_["peeked"] = False
        a("s_cmp_ge_u32 s%d, %d" % (sRdy, k))
        a("s_cbranch_scc0 %s" % sp)
        a.label(ok)
        ool.append((sp, ok, k))
    def release(name):
        a("v_mov_b32 v%d, %d" % (vRv, plan.rel[name]))
        a.lds("ds_write_b32 v%d, v%d" % (vRelA, vRv), "rel")
    def bar_arrive(ep):
        a("v_mov_b32 v%d, %d" % (vRv, ep))
        a.lds("ds_write_b32 v%d, v%d offset:16" % (vRelA, vRv), "rel")
    def bar_wait(ep, off=32):
        sp = a.newlabel("L_bspin"); ok = a.newlabel("L_bok")
        a("s_mov_b32 s%d, 0" % (sSy+2))
        a.label(sp)
        a("ds_read_b128 %s, v%d offset:%d" % (v(vBar,4), vCtl, off))
        a("s_add_u32 s%d, s%d, 1" % (sSy+2, sSy+2))
        a("s_cmp_gt_u32 s%d, 0x%x" % (sSy+2, SPIN_MAX*16))
        a("s_waitcnt lgkmcnt(0)")
        a("v_min3_u32 v%d, v%d, v%d, v%d" % (vBar, vBar, vBar+1, vBar+2))
        a("v_min_u32 v%d, v%d, v%d" % (vBar, vBar, vBar+3))
        a("s_cbranch_scc1 %s" % ok)
        a("v_cmp_gt_u32 vcc, %d, v%d" % (ep, vBar))
        a("s_cbranch_vccnz %s" % sp)
        a.label(ok)
        a.lg = []
    tile_maps(a, None, None, sRb2, sCb2, sT)
    a("v_lshlrev_b32 v%d, 4, v0" % vL16)
    a("v_and_b32 v%d, 31, v0" % vT0)
    a("v_lshrrev_b32 v%d, 5, v0" % vT1)
    a("v_lshlrev_b32 v%d, 1, v%d" % (vT2, vT0))
    a("s_mul_i32 s%d, s%d, 192" % (sT, sCb))
    a("v_add_u32 v%d, s%d, v%d" % (vT2, sT, vT2))
    for p in range(3): a.vmem("global_load_ushort v%d, v%d, s[%d:%d] offset:%d" % (vB1+p, vT2, P_B1, P_B1+1, 64*p), "b1")
    a("s_lshl_b32 s%d, s%d, 12" % (sT, W))
    a("s_add_u32 s%d, s%d, %d" % (sT, sT, L_X))
    a("v_bfe_u32 v%d, v0, 1, 3" % vT2)
    a("v_xor_b32 v%d, v%d, v%d" % (vT2, vT2, vT1))
    a("v_lshlrev_b32 v%d, 4, v%d" % (vT2, vT2))
    a("v_lshl_add_u32 v%d, v%d, 7, v%d" % (vT2, vT0, vT2))
    a("v_add_u32 v%d, s%d, v%d" % (vT2, sT, vT2))
    for jl in range(4):
        a("s_add_u32 s%d, s%d, %d" % (sT2, W, jl))
        a("s_and_b32 s%d, s%d, 3" % (sT2, sT2))
        a("s_lshl_b32 s%d, s%d, 5" % (sT2, sT2))
        a("v_xor_b32 v%d, s%d, v%d" % (vXr+jl, sT2, vT2))
    a("v_bfe_u32 v%d, v0, 2, 2" % vT2)
    a("v_lshl_add_u32 v%d, v%d, 3, v%d" % (vT2, vT1, vT2))
    a("v_mul_u32_u24 v%d, 192, v%d" % (vT2, vT2))
    a("v_bfe_u32 v%d, v0, 4, 1" % vSt)
    a("v_lshl_add_u32 v%d, v%d, 5, v%d" % (vT2, vSt, vT2))
    a("v_and_b32 v%d, 3, v0" % vSo)
    a("v_lshl_add_u32 v%d, v%d, 3, v%d" % (vT2, vSo, vT2))
    for jl in range(4):
        a("s_add_u32 s%d, s%d, %d" % (sT2, W, jl))
        a("s_and_b32 s%d, s%d, 3" % (sT2, sT2))
        a("s_mul_i32 s%d, s%d, %d" % (sT2, sT2, 16*192))
        a("v_add_u32 v%d, s%d, v%d" % (vWr+jl, sT2, vT2))
    for r in (vOne, vOne+1): a("v_mov_b32 v%d, 0x%x" % (r, ONES_BF))
    a("v_lshlrev_b32 v%d, 4, v%d" % (vCw, vT1))
    a("v_lshl_add_u32 v%d, v%d, 2, v%d" % (vCw, vSt, vCw))
    a("v_bfe_u32 v%d, v0, 2, 2" % vT2)
    a("v_add_u32 v%d, v%d, v%d" % (vCw, vCw, vT2))
    a("v_lshlrev_b32 v%d, 8, v%d" % (vCw, vCw))
    a("v_lshl_add_u32 v%d, v%d, 3, v%d" % (vCw, vSo, vCw))
    a("s_lshl_b32 s%d, s%d, 6" % (sT, W))
    a("v_add_u32 v%d, s%d, v%d" % (vCw, sT, vCw))
    a("s_mul_i32 s%d, s%d, 13108" % (sT, S_WG))
    a("s_lshr_b32 s%d, s%d, 16" % (sT, sT))
    a("s_mul_i32 s%d, s%d, 5" % (sT2, sT))
    a("s_sub_u32 s%d, s%d, s%d" % (sT2, S_WG, sT2))
    a("s_cmp_ge_u32 s%d, 240" % S_WG)
    a("s_cselect_b32 s%d, 5, s%d" % (sT2, sT2))
    a("s_cselect_b32 s%d, 0, s%d" % (sT, sT))
    a("s_lshl2_add_u32 s%d, s%d, s%d" % (sM, sT2, W))
    a("s_mul_i32 s%d, s%d, %d" % (sM, sM, 2*48*1024))
    a("s_lshl_b32 s%d, s%d, 10" % (sAo, sT))
    a("s_add_u32 s%d, s%d, s%d" % (sM, sM, sAo))
    a("s_mul_i32 s%d, s%d, 48" % (sFw, sT2))
    a("s_add_u32 s%d, s%d, s%d" % (sFw, sFw, sT))
    a("s_lshl2_add_u32 s%d, s%d, s%d" % (sFw, sFw, W))
    a("s_lshl_b32 s%d, s%d, 3" % (sFw, sFw))
    a("s_add_u32 s%d, s%d, %d" % (sFw, sFw, FL_W2F))
    a.srd_off(sW2F, P_WS, WS_W2F, W2F_BYTES)
    a.srd_off(sFl, P_WS, WS_FLAGS, FLAGS_BYTES)
    a.srd_off(sAct, P_WS, WS_ACT, ACT_BYTES)
    a.srd_off(sStt, P_WS, WS_STATS, STATS_BYTES)
    a.srd_off(sST, P_WS, WS_ST, ST_BYTES)
    a("v_mul_u32_u24 v%d, %d, v%d" % (vSt, 48*64, vSt))
    a("v_and_b32 v%d, 15, v0" % vT2)
    a("v_add_u32 v%d, v%d, v%d" % (vSt, vSt, vT2))
    a("v_lshl_add_u32 v%d, v%d, 4, v%d" % (vSt, vT1, vSt))
    a("v_lshlrev_b32 v%d, 4, v%d" % (vSt, vSt))
    a("s_lshl2_add_u32 s%d, s%d, s%d" % (sT2, sRb, W))
    a("s_lshl_b32 s%d, s%d, 9" % (sT, sT2))
    a("v_lshlrev_b32 v%d, 4, v%d" % (vSo, vT0))
    a("v_add_u32 v%d, s%d, v%d" % (vSo, sT, vSo))
    a("s_lshr_b32 s%d, s%d, 1" % (sT, sT2))
    a("s_lshl_b32 s%d, s%d, 5" % (sFa, sT))
    a("s_and_b32 s%d, s%d, 1" % (sT, sT2))
    a("s_add_u32 s%d, s%d, s%d" % (sFa, sFa, sT))
    a("s_lshl_b32 s%d, s%d, 1" % (sT, sCb))
    a("s_add_u32 s%d, s%d, s%d" % (sFa, sFa, sT))
    a("s_lshl_b32 s%d, s%d, 3" % (sFa, sFa))
    a("s_add_u32 s%d, s%d, %d" % (sFa, sFa, FL_ACT))
    a("s_mul_i32 s%d, s%d, 96" % (sT2, sT2))
    a("s_mul_i32 s%d, s%d, 3" % (sAo, sCb))
    a("s_add_u32 s%d, s%d, s%d" % (sAo, sAo, sT2))
    a("s_lshl_b32 s%d, s%d, 10" % (sAo, sAo))
    a("s_mul_i32 s%d, s%d, 640" % (sFs, sCb2))
    a("s_add_u32 s%d, s%d, %d" % (sFs, sFs, FL_S))
    a("s_mov_b32 s%d, %s" % (sK, fhex(LOG2E))); a("s_mov_b32 s%d, %s" % (sK+1, fhex(LOG2E)))
    a("s_mov_b32 s%d, 2.0" % (sK+2)); a("s_mov_b32 s%d, 2.0" % (sK+3))
    for i in range(16): a("v_mov_b32 v%d, 0" % (vAp+i))
    a("v_lshlrev_b32 v%d, 2, v%d" % (vCr, vT0))
    a("v_add_u32 v%d, %d, v%d" % (vCr, C_CS, vCr))
    vXt, vXs_ = 216, 220
    vIt = [224, 240]
    sXt, sFx = 55, 26
    a("v_bfe_u32 v%d, v0, 1, 1" % vXt)
    a("s_lshl_b32 s%d, s%d, 1" % (sT, W))
    a("v_add_u32 v%d, s%d, v%d" % (vXt, sT, vXt))
    a("v_bfe_u32 v%d, v0, 3, 1" % vT2)
    a("v_xor_b32 v%d, v%d, v%d" % (vXt, vXt, vT2))
    a("v_lshlrev_b32 v%d, 4, v%d" % (vXt, vXt))
    a("v_and_b32 v%d, 1, v0" % vT2)
    a("v_lshl_add_u32 v%d, v%d, 3, v%d" % (vXt, vT2, vXt))
    a("v_bfe_u32 v%d, v0, 2, 2" % vT2)
    a("v_lshl_add_u32 v%d, v%d, 7, v%d" % (vXt, vT2, vXt))
    a("v_lshlrev_b32 v%d, 14, v%d" % (vXs_, vT2))
    a("v_lshrrev_b32 v%d, 4, v0" % vT2)
    a("v_lshl_add_u32 v%d, v%d, 12, v%d" % (vXt, vT2, vXt))
    a("v_add_u32 v%d, %d, v%d" % (vXt, L_X, vXt))
    for k in range(1, 4): a("v_xor_b32 v%d, %d, v%d" % (vXt+k, 32*k, vXt))
    a("v_lshl_add_u32 v%d, v%d, 6, v%d" % (vXs_, vT2, vXs_))
    a("v_and_b32 v%d, 3, v0" % vT2)
    a("v_lshl_add_u32 v%d, v%d, 4, v%d" % (vXs_, vT2, vXs_))
    k_rotation(a, sT, sT2, sRb, sCb)
    a("s_cmp_ge_u32 s%d, 10" % sCb)
    a("s_cselect_b32 s%d, 10, s%d" % (sT, sT))
    a("s_lshl2_add_u32 s%d, s%d, s%d" % (sT, sT, W))
    a("s_lshl_b32 s%d, s%d, 16" % (sXt, sT))
    a("s_lshl_b32 s%d, s%d, 8" % (sT2, sRb))
    a("s_add_u32 s%d, s%d, s%d" % (sXt, sXt, sT2))
    a("s_lshl4_add_u32 s%d, s%d, s%d" % (sFx, sT, sRb))
    a("s_lshl_b32 s%d, s%d, 3" % (sFx, sFx))
    a("s_add_u32 s%d, s%d, %d" % (sFx, sFx, FL_XT))
    vCh = 208
    def xreads(st):
        return [("xf%d_%d" % (st, jl), "ds_read_b128 %s, v%d offset:%d" % (v(vXF[st & 1]+4*jl,4), vXr+jl, (st % 3)*16384)) for jl in range(4)]
    def wreads(g_):
        st, jl = g_ // 4, g_ % 4
        buf = WB[g_ % 3]
        return [("wf%d" % g_, "ds_read_b64_tr_b16 %s, v%d offset:%d" % (v(buf+4*p+2*q,2), vWr+jl, L_W + (st % 4)*12288 + q*4*192 + p*64)) for p in range(3) for q in range(2)]
    def w2st(k):
        a.vmem("buffer_store_dwordx4 %s, v%d, s[%d:%d], s%d offen sc1" % (v(vCh+4*k,4), vL16, sW2F, sW2F+3, sM), "chw")
        if k == 0: a("s_add_u32 s%d, s%d, %d" % (sM, sM, 48*1024))
    def xtst(j):
        a.vmem("buffer_store_dwordx4 %s, v%d, s[%d:%d], s%d offen sc1" % (v(vIt[0]+4*j,4), vXs_, sOut, sOut+3, sXt), "chs")
        if j < 3: a("s_add_u32 s%d, s%d, 4096" % (sXt, sXt))
    SW, SX, SG = getattr(a, "CH_W", 0), getattr(a, "CH_X", 2), getattr(a, "CH_LAG", 3)
    a.srd_off(sOut, P_WS, WS_XN, XN_BYTES)
    ready("X0")
    bar_arrive(1)
    a.stamp(10)
    for tag, ins in xreads(0): a.lds(ins, tag)
    ready("W0")
    a.stamp(11)
    bar_wait(1)
    for tag, ins in wreads(0) + wreads(1): a.lds(ins, tag)
    for p in range(4):
        for q in range(2):
            a.lds("ds_read_b64_tr_b16 %s, v%d offset:%d" % (v(vIt[0]+4*p+2*q,2), vXt + 2*(p & 1) + q, (8*p + 4*q)*128), "xt")
    release("X0")
    dpp = []
    for stage_, (masks, perm, x_) in enumerate((((0x55555555, 0xaaaaaaaa), "[1,0,3,2]", 1), ((0x33333333, 0xcccccccc), "[2,3,0,1]", 2))):
        src, dst = vIt[stage_], vIt[1-stage_]
        for mi, m in enumerate(masks):
            for j in range(4):
                if ((j & x_) != 0) != (mi == 1): continue
                dpp.append(["s_mov_b32 vcc_lo, 0x%x" % m, "s_mov_b32 vcc_hi, 0x%x" % m] +
                           ["v_cndmask_b32_dpp v%d, v%d, v%d, vcc quad_perm:%s row_mask:0xf bank_mask:0xf" % (dst+4*j+r, src+4*(j ^ x_)+r, src+4*j+r, perm) for r in range(4)])
    ready("C")
    a.stamp(1)
    for k in range(2):
        for q in range(2):
            a.lds("ds_read_b64_tr_b16 %s, v%d offset:%d" % (v(vCh+4*k+2*q,2), vCw, L_W + 3*12288 + q*8*256 + k*32), "ch")
    release("C")
    a("s_mul_i32 s%d, s%d, 384" % (sT2, W))
    a("v_add_u32 v%d, s%d, v%d" % (vCw, sT2, vCr))
    def emit(t):
        if callable(t): t()
        elif isinstance(t, tuple): a.lds(t[1], t[0])
        else: a(t)
    def step(g_, gaps):
        st, jl = g_ // 4, g_ % 4
        buf = WB[g_ % 3]
        xf = vXF[st & 1] + 4*jl
        a.wait(lg=["wf%d" % g_, "xf%d_%d" % (st, jl)])
        rd = wreads(g_ + 2) if g_ + 2 < 40 else []
        for p in range(3):
            acc = vAcc + 16*p
            a("v_mfma_f32_32x32x16_bf16 %s, %s, %s, %s" % (v(acc,16), v(buf+4*p,4), v(xf,4), "0" if g_ == 0 else v(acc,16)))
            for tag, ins in rd[2*p:2*p+2]: a.lds(ins, tag)
            if jl >= 2:
                a("v_mfma_f32_4x4x4_16b_bf16 %s, %s, %s, %s" % (v(vCs4[p],4), v(vOne,2), v(buf+4*p+2*(jl-2),2), "0" if g_ == 2 else v(vCs4[p],4)))
            for t in gaps[p]: emit(t)
    statld = "buffer_load_dwordx4 %s, v%d, s[%d:%d], 0 offen sc1" % (v(vPoll,4), vSo, sStt, sStt+3)
    for st in range(10):
        gp = [[] for _ in range(12)]
        if st < 9:
            xr = xreads(st+1)
            gp[1] += [lambda: ready("X%d" % (st+1)), xr[0]]
            if plan.rdy["W%d" % (st+1)] > plan.rdy.get("X%d" % (st+1), 0): gp[3] += [peek]
            if st < 8 and ("X%d" % (st+2)) in plan.rdy: gp[10] += [peek]
            gp[2] += [xr[1]]; gp[3] += [xr[2]]; gp[4] += [xr[3]]
            if plan.NX_OWN < 10 or st + 1 >= 7: gp[4] += [lambda: release("X%d" % (st+1))]
        gp[5] += [lambda: release("W%d" % st)]
        if st < 2:
            for gi in (6, 8, 9, 11): gp[gi] += dpp.pop(0)
        if st < 9 and plan.rdy["W%d" % (st+1)] > plan.rdy.get("X%d" % (st+1), 0): gp[5] += [lambda: ready("W%d" % (st+1))]
        if plan.NX_OWN == 10:
            if st + 3 < 10:
                if st == 0: gp[6].append(lambda: bar_wait(1, 16))
                for i in range(4): gp[(6, 7, 9, 10)[i] if st == 0 else (0, 2, 7, 9)[i]].append(lambda i=i: xdma(st+3, i))
        if st == SW:
            gp[6].append(lambda: w2st(0)); gp[9].append(lambda: w2st(1))
        if st == SX:
            for j in range(4): gp[(0, 7, 8, 11)[j]].append(lambda j=j: xtst(j))
        if st == 1: gp[7].append(sy.tag_load)
        if st == max(SW, 0) + SG:
            def sigw():
                sy.tag_check()
                a.wait(vm="chw")
                sy.signal("s%d" % sFw, 0)
            gp[0].insert(0, sigw)
        if st == min(max(SX, 0) + SG, 9):
            def sigx():
                a.wait(vm="chs")
                sy.signal("s%d" % sFx, 0)
                a.srd(sOut, P_OUT, 2048*640*2)
            gp[1 if st < 9 else 11].insert(0, sigx)
        if st == 8: gp[8].append(lambda: a.vmem(statld, "stat"))
        if st in (0, 1, 2, 4): a.stamp({0: 12, 1: 13, 2: 14, 4: 15}[st])
        for j in range(4): step(4*st+j, gp[3*j:3*j+3])
    a.stamp(2)
    if a.PROF: a("s_mov_b32 s89, s88")
    sy.granule_check(statld, "stat", vPoll+2)
    a.nop(2)
    for p in range(3): a("v_permlane32_swap_b32 v%d, v%d" % (vCs4[p], vCs4[p]+1))
    for p in range(3): a("v_add_f32 v%d, v%d, v%d" % (vCs4[p], vCs4[p], vCs4[p]+1))
    for p in range(3): a.lds("ds_write_b32 v%d, v%d offset:%d" % (vCw, vCs4[p], p*128), "cw")
    bar_arrive(2)
    a("v_mov_b32 v%d, v%d" % (vBp, vPoll))
    a("v_mov_b32 v%d, v%d" % (vBp+1, vPoll+1))
    a("v_and_b32 v%d, 0xffff0000, v%d" % (vC3, vPoll+1))
    a("v_rcp_f32 v%d, v%d" % (vC3, vC3))
    bar_wait(2)
    for w in range(4):
        for p in range(3):
            a.lds("ds_read_b32 v%d, v%d offset:%d" % (vP+w*3+p, vCr, w*384 + p*128), "cr")
    a("v_mul_f32 v%d, %s, v%d" % (vC1, fhex(LOG2E), vC3))
    a("v_mul_f32 v%d, -2.0, v%d" % (vC2, vC3))
    a("s_mov_b32 exec_hi, 0")
    for p in range(3): a("v_mov_b32 v%d, v%d" % (vAp+4*p+1, vB1+p))
    a.wait(lg="cr")
    for p in range(3):
        a("v_add_f32 v%d, v%d, v%d" % (vP+p, vP+p, vP+3+p))
        a("v_add_f32 v%d, v%d, v%d" % (vP+6+p, vP+6+p, vP+9+p))
    for p in range(3): a("v_add_f32 v%d, v%d, v%d" % (vP+p, vP+p, vP+6+p))
    for p in range(3): a("v_cvt_pk_bf16_f32 v%d, v%d, v%d" % (vP+3+p, vP+p, vP+p))
    for p in range(3): a("v_and_b32 v%d, 0xffff0000, v%d" % (vP+3+p, vP+3+p))
    for p in range(3): a("v_sub_f32 v%d, v%d, v%d" % (vP+3+p, vP+p, vP+3+p))
    for p in range(3): a("v_cvt_pk_bf16_f32 v%d, v%d, v%d" % (vAp+4*p, vP+p, vP+3+p))
    a("s_mov_b32 exec_hi, -1")
    a("s_nop 0")
    for p in range(3):
        acc = vAcc + 16*p
        a("v_mfma_f32_32x32x16_bf16 %s, %s, %s, %s" % (v(acc,16), v(vAp+4*p,4), v(vBp,4), v(acc,16)))
    vRW = 16; vRR, vPW, vPR, vXO, vSO = 19, 20, 21, 22, 23
    vFr, vPA = vBarA, vCr
    a("v_and_b32 v%d, 15, v0" % vT0)
    a("v_lshrrev_b32 v%d, 4, v0" % vT1)
    a("s_lshl2_add_u32 s%d, s%d, s%d" % (sT, sRb2, W))
    a("s_mul_i32 s%d, s%d, %d" % (sT2, sT, 16*1280))
    a("v_mul_u32_u24 v%d, 1280, v%d" % (vXO, vT0))
    a("v_lshl_add_u32 v%d, v%d, 4, v%d" % (vXO, vT1, vXO))
    a("s_mul_i32 s%d, s%d, 160" % (sM, sCb2))
    a("s_add_u32 s%d, s%d, s%d" % (sT2, sT2, sM))
    a("v_add_u32 v%d, s%d, v%d" % (vXO, sT2, vXO))
    a("v_lshlrev_b32 v%d, 12, v%d" % (vSO, vT0))
    a("v_lshl_add_u32 v%d, v%d, 3, v%d" % (vSO, vT1, vSO))
    a("s_mul_i32 s%d, s%d, %d" % (sT2, sCb2, 80*4096))
    a("s_lshl_b32 s%d, s%d, 5" % (sM, sT))
    a("s_add_u32 s%d, s%d, s%d" % (sT2, sT2, sM))
    a("v_add_u32 v%d, s%d, v%d" % (vSO, sT2, vSO))
    a("s_lshl_b32 s%d, s%d, 10" % (sT, W))
    a("v_add_u32 v%d, s%d, v%d" % (vFr, sT, vL16))
    vE = 112; vO = 144
    vFr2 = vCr
    a("v_add_u32 v%d, 65536, v%d" % (vFr2, vFr))
    early = [r for r in range(208, 256, 4)] + [r for r in range(168, 208, 4)] + [r for r in range(104, 144, 4)]
    latef = [r for r in range(144, 168, 4)]
    free = early
    loc = {}
    def pull(name):
        out = []
        for j, row in enumerate(plan.rowsof[name]):
            r = free.pop(0); loc[(name, j)] = r
            base, off = (vFr, row*4096) if row < 16 else (vFr2, (row-16)*4096)
            out.append((name, "ds_read_b128 %s, v%d offset:%d" % (v(r,4), base, off)))
        return out
    def pull_now(nm):
        ready(nm)
        for tag, ins in pull(nm): a.lds(ins, tag)
        release(nm)
    NEP = getattr(a, "NEP", 4)
    for c in range(6):
        A = vAcc + 8*c; E = vE + 16*(c & 1); O = vO + 4*c
        for k in range(4): a("v_pk_mul_f32 %s, %s, %s op_sel_hi:[1,0]" % (v(E+2*k,2), v(A+2*k,2), v(vC1,2)))
        for k in range(8): a("v_exp_f32 v%d, v%d" % (E+k, E+k))
        for k in range(4): a("v_pk_add_f32 %s, %s, s[%d:%d]" % (v(E+8+2*k,2), v(E+2*k,2), sK+2, sK+3))
        for k in range(4): a("v_pk_fma_f32 %s, %s, %s, s[%d:%d]" % (v(E+2*k,2), v(E+2*k,2), v(E+8+2*k,2), sK+2, sK+3))
        for k in range(8): a("v_rcp_f32 v%d, v%d" % (E+k, E+k))
        for k in range(4): a("v_pk_fma_f32 %s, %s, %s, %s op_sel_hi:[1,0,0]" % (v(E+2*k,2), v(E+2*k,2), v(vC2,2), v(vC3,2)))
        for k in range(4): a("v_pk_mul_f32 %s, %s, %s" % (v(E+2*k,2), v(E+2*k,2), v(A+2*k,2)))
        for k in range(4): a("v_cvt_pk_bf16_f32 v%d, v%d, v%d" % (O+k, E+2*k, E+2*k+1))
        a.vmem("buffer_store_dwordx4 %s, v%d, s[%d:%d], s%d offen offset:%d sc1" % (v(O,4), vSt, sAct, sAct+3, sAo, c*512), "st")
    bar_arrive(3)
    a.stamp(3)
    for i in range(1, 4):
        a("s_add_u32 s%d, s%d, %d" % (sT, W, i))
        a("s_and_b32 s%d, s%d, 3" % (sT, sT))
        a("s_mul_i32 s%d, s%d, 15360" % (sT, sT))
        a("s_add_u32 s%d, s%d, %d" % (sT, sT, (i-1)*5120))
        a("v_add_u32 v%d, s%d, v%d" % (vRW+i-1, sT, vL16))
    a("s_mul_i32 s%d, s%d, 15360" % (sT, W))
    a("v_add_u32 v%d, s%d, v%d" % (vRR, sT, vL16))
    a("s_mul_i32 s%d, s%d, %d" % (sT, W, G2_PW))
    a("s_add_u32 s%d, s%d, %d" % (sT, sT, G2_P))
    a("v_mul_u32_u24 v%d, %d, v%d" % (vPW, G2_PRS, vT0))
    a("v_lshl_add_u32 v%d, v%d, 3, v%d" % (vPW, vT1, vPW))
    a("v_add_u32 v%d, s%d, v%d" % (vPW, sT, vPW))
    a("v_lshrrev_b32 v%d, 2, v%d" % (vT0, vT0))
    a("v_lshl_add_u32 v%d, v%d, 3, v%d" % (vT0, vT1, vT0))
    a("v_mul_u32_u24 v%d, %d, v%d" % (vPR, G2_PRS, vT0))
    a("v_and_b32 v%d, 3, v0" % vT0)
    a("v_lshl_add_u32 v%d, v%d, 3, v%d" % (vPR, vT0, vPR))
    a("v_add_u32 v%d, s%d, v%d" % (vPR, sT, vPR))
    vPA = vT2
    a("v_min_u32 v%d, %d, v%d" % (vPA, 39*16, vL16))
    a("v_mov_b32 v%d, v%d" % (vT1, vFr2))
    vFr2 = vT1
    vAcc2 = 24
    vZero2 = vPoll + 3
    k_rotation2(a, sK2, sT2, sRb2, sCb2)
    a("s_mul_i32 s%d, s%d, %d" % (sT2, W, 12*1024))
    for i in range(4):
        a("s_add_u32 s%d, s%d, %d" % (sT, W, i))
        a("s_and_b32 s%d, s%d, 3" % (sT, sT))
        a("s_lshl2_add_u32 s%d, s%d, s%d" % (sT, sRb2, sT))
        a("s_mul_i32 s%d, s%d, %d" % (sT, sT, 48*1024))
        a("s_add_u32 s%d, s%d, s%d" % (sA+i, sT, sT2))
    a("s_mul_i32 s%d, s%d, %d" % (sT, sCb2, 5*48*1024))
    a("s_add_u32 s%d, s%d, s%d" % (sB, sT, sT2))
    for n in range(1, 5): a("s_add_u32 s%d, s%d, %d" % (sB+n, sB, n*48*1024))
    vKo = [vT0, vZero2]
    def koff(s_, reg):
        a("s_add_u32 s%d, s%d, %d" % (sK3, sK2, s_*1024))
        a("s_sub_u32 s%d, s%d, %d" % (sK3+1, sK3, 12*1024))
        a("s_cmp_ge_u32 s%d, %d" % (sK3, 12*1024))
        a("s_cselect_b32 s%d, s%d, s%d" % (sK3, sK3+1, sK3))
        a("v_add_u32 v%d, s%d, v%d" % (reg, sK3, vL16))
    pull_now("B0")
    a.wait(vm="all")
    sy.signal("s%d" % sFa, 0)
    a.stamp(4)
    free += latef
    for s_ in plan.regB:
        koff(s_, vKo[0])
        for n in range(5):
            r = free.pop(0); loc[("B%d" % s_, n)] = r
            a.vmem("buffer_load_dwordx4 %s, v%d, s[%d:%d], s%d offen sc1" % (v(r,4), vKo[0], sW2F, sW2F+3, sB+n), "B%d" % s_)
    ready("ACT")
    a.stamp(5)
    G = [(s_, i) for s_ in range(12) for i in range(4)]
    def issue_a():
        s_, i = G.pop(0)
        if i == 0: koff(s_, vKo[0])
        r = free.pop(0); loc[("A%d" % s_, i)] = r
        a.vmem("buffer_load_dwordx4 %s, v%d, s[%d:%d], s%d offen sc1" % (v(r,4), vKo[0], sAct, sAct+3, sA+i), "A%d" % s_)
    while G and len(free) > 5: issue_a()
    vX = None
    def peek2():
        nonlocal vPk
        vPk = vZero2
        peek()
    for s_ in range(12):
        side = []
        nb = s_ + 1 < 12 and (s_+1) in plan.ringB
        pl = pull("B%d" % (s_+1)) if nb else []
        keep = 5 if (s_ + 2 < 12 and (s_+2) in plan.ringB and s_ == 0 and False) else 0
        na = min(len(G), len(free) - keep)
        if nb: side.append(peek2)
        side += [issue_a]*min(na, 3); na -= min(na, 3)
        if nb:
            side.append(lambda: ready("B%d" % (s_+1)))
            side += pl
            side.append(lambda: release("B%d" % (s_+1)))
        side += [issue_a]*na
        if s_ == 9:
            vX = [free.pop(-1) for _ in range(3)]
            for k in range(3):
                side.append(lambda k=k: a.vmem("buffer_load_dwordx4 %s, v%d, s[%d:%d], 0 offen offset:%d" % (v(vX[k],4), vXO, sXs, sXs+3, 64*k), "x"))
        if s_ == 10: side.append(lambda: sy.poll_issue(vPA, "s%d" % sFs, 0, "ps"))
        if s_ == 11:
            side.append(lambda: bar_arrive(4))
            vS = [free.pop(0) for _ in range(3)]
            def sload():
                sy.poll_check(vPA, "s%d" % sFs, 0, "ps", sleep=getattr(a, "KSLEEP", 1))
                for n in range(5):
                    a("s_mov_b32 s%d, %d" % (sT, n*16*4096))
                    a.vmem("buffer_load_dwordx2 %s, v%d, s[%d:%d], s%d offen sc1" % (v(vS[n//2] + 2*(n%2),2), vSO, sST, sST+3, sT), "s")
        a.wait(lg="B%d" % s_, vm=["A%d" % s_, "B%d" % s_])
        order = [1, 2, 3, 0] if s_ == 11 else [0, 1, 2, 3]
        for i in order:
            for n in range(5):
                acc = vAcc2 + (i*5+n)*4
                a("v_mfma_f32_16x16x32_bf16 %s, %s, %s, %s" % (v(acc,4), v(loc[("A%d" % s_,i)],4), v(loc[("B%d" % s_,n)],4), "0" if s_ == 0 else v(acc,4)))
                if side: emit(side.pop(0))
        assert not side
        for i in range(4): free.append(loc[("A%d" % s_, i)])
        for n in range(5): free.append(loc[("B%d" % s_, n)])
    assert not G
    a.stamp(6)
    sload()
    bar_wait(4)
    for i in range(1, 4):
        for n in range(5):
            a.lds("ds_write_b128 v%d, %s offset:%d" % (vRW+i-1, v(vAcc2+(i*5+n)*4,4), n*1024), "rw")
    bar_arrive(5)
    vXu = [free.pop(0) for _ in range(6)]
    for k in range(3):
        for j in range(4):
            u = vXu[2*k + j//2] + 2*(j % 2)
            a("v_lshlrev_b32 v%d, 16, v%d" % (u, vX[k]+j))
            a("v_and_b32 v%d, 0xffff0000, v%d" % (u+1, vX[k]+j))
    bar_wait(5)
    vR = [free.pop(0) for _ in range(15)]
    for n in range(5):
        for sl in range(3):
            a.lds("ds_read_b128 %s, v%d offset:%d" % (v(vR[n*3+sl],4), vRR, sl*5120 + n*1024), "rr%d" % n)
    vE = [vAcc2 + 20 + 4*i for i in range(8)]
    vU = [vAcc2 + 52 + 4*i for i in range(5)]
    a.wait(vm="s")
    for n in range(5):
        S = vS[n//2] + 2*(n%2); U = vU[n]
        a("v_lshlrev_b32 v%d, 16, v%d" % (U+0, S))
        a("v_and_b32 v%d, 0xffff0000, v%d" % (U+1, S))
        a("v_lshlrev_b32 v%d, 16, v%d" % (U+2, S+1))
        a("v_and_b32 v%d, 0xffff0000, v%d" % (U+3, S+1))
    for n in range(5):
        a.wait(lg="rr%d" % n)
        acc = vAcc2 + n*4; E = vE[n]; U = vU[n]
        for h in range(2):
            a("v_pk_add_f32 %s, %s, %s" % (v(vR[n*3]+2*h,2), v(vR[n*3]+2*h,2), v(vR[n*3+1]+2*h,2)))
            a("v_pk_add_f32 %s, %s, %s" % (v(acc+2*h,2), v(acc+2*h,2), v(vR[n*3+2]+2*h,2)))
        for h in range(2):
            a("v_pk_add_f32 %s, %s, %s" % (v(acc+2*h,2), v(acc+2*h,2), v(vR[n*3]+2*h,2)))
        for h in range(2):
            a("v_pk_mul_f32 %s, %s, s[%d:%d] neg_lo:[0,1] neg_hi:[0,1]" % (v(E+2*h,2), v(acc+2*h,2), sK, sK+1))
        for r in range(4): a("v_exp_f32 v%d, v%d" % (E+r, E+r))
        for h in range(2):
            a("v_pk_mul_f32 %s, %s, %s" % (v(acc+2*h,2), v(acc+2*h,2), v(U+2*h,2)))
        for r in range(4): a("v_add_f32 v%d, 1.0, v%d" % (E+r, E+r))
        for r in range(4): a("v_rcp_f32 v%d, v%d" % (E+r, E+r))
        a("s_nop 0")
        for h in range(2):
            a("v_pk_mul_f32 %s, %s, %s" % (v(acc+2*h,2), v(acc+2*h,2), v(E+2*h,2)))
        a("v_cvt_pk_bf16_f32 v%d, v%d, v%d" % (E, acc, acc+1))
        a("v_cvt_pk_bf16_f32 v%d, v%d, v%d" % (E+1, acc+2, acc+3))
        a.lds("ds_write_b64 v%d, %s offset:%d" % (vPW, v(E,2), n*16*G2_PRS), "pw")
    vPq = vE[5:8]
    for k in range(3):
        for q in range(2):
            a.lds("ds_read_b64_tr_b16 %s, v%d offset:%d" % (v(vPq[k]+2*q,2), vPR, (32*k + 4*q)*G2_PRS), "pr%d" % k)
    for k in range(3):
        a.wait(lg="pr%d" % k)
        Wp = (vR[2*k], vR[2*k+1])
        for j in range(4):
            a("v_lshlrev_b32 v%d, 16, v%d" % (Wp[j//2] + 2*(j%2), vPq[k]+j))
            a("v_and_b32 v%d, 0xffff0000, v%d" % (Wp[j//2] + 2*(j%2) + 1, vPq[k]+j))
        for j in range(4):
            u = vXu[2*k + j//2] + 2*(j % 2)
            a("v_pk_add_f32 %s, %s, %s" % (v(u,2), v(u,2), v(Wp[j//2] + 2*(j%2),2)))
        for j in range(4):
            u = vXu[2*k + j//2] + 2*(j % 2)
            a("v_cvt_pk_bf16_f32 v%d, v%d, v%d" % (vX[k]+j, u, u+1))
        if k == 2: a("s_mov_b32 exec_hi, 0")
        a.vmem("buffer_store_dwordx4 %s, v%d, s[%d:%d], 0 offen offset:%d" % (v(vX[k],4), vXO, sOut, sOut+3, 64*k), "st")
    a.stamp(7)
    a.stamp_dump(16, S_WAVE, 24, (200 << 20))
    a("s_endpgm")
    for sp, ok, k in ool:
        a.label(sp)
        a("s_mov_b32 s%d, %d" % (sSy, k))
        a("s_call_b64 s[%d:%d], L_c_spin" % (sRet, sRet+1))
        a("s_branch %s" % ok)
    a.label("L_c_spin")
    a("s_mov_b32 s%d, 0" % (sSy+2))
    a.label("L_c_spin_loop")
    if a.PROF: a("s_add_u32 s88, s88, 1")
    a("ds_read_b32 v%d, v%d" % (vRv, vCtl))
    a("s_add_u32 s%d, s%d, 1" % (sSy+2, sSy+2))
    a("s_cmp_gt_u32 s%d, 0x%x" % (sSy+2, SPIN_MAX*16))
    a("s_waitcnt lgkmcnt(0)")
    a("v_readfirstlane_b32 s%d, v%d" % (sRdy, vRv))
    a("s_cbranch_scc1 L_c_spin_ret")
    a("s_cmp_lt_u32 s%d, s%d" % (sRdy, sSy))
    a("s_cbranch_scc1 L_c_spin_loop")
    a.label("L_c_spin_ret")
    a("s_setpc_b64 s[%d:%d]" % (sRet, sRet+1))
    a.vm = []; a.lg = []
```

```python
from asmlib import *
from common import *
from sync import Sync
import numpy as np

ROWB = 272
CV_UB = 9216 + 512

def pmul(dR, dI, R, I, WR, WI, t1, t2, bx=False, bw=False, halves=(0, 1)):
    f = []; s_ = []
    inplace = (dR == R)
    for h in halves:
        r, i = (R, I) if bx else (R+h, I+h)
        wr, wi = (WR, WI) if bw else (WR+h, WI+h)
        if inplace:
            f.append("v_mul_f32 v%d, v%d, v%d" % (t1+h, i, wi))
            f.append("v_mul_f32 v%d, v%d, v%d" % (dI+h, i, wr))
            s_.append("v_fmac_f32 v%d, v%d, v%d" % (dI+h, r, wi))
            s_.append("v_fma_f32 v%d, v%d, v%d, -v%d" % (dR+h, r, wr, t1+h))
        else:
            f.append("v_mul_f32 v%d, v%d, v%d" % (dR+h, r, wr))
            f.append("v_mul_f32 v%d, v%d, v%d" % (dI+h, r, wi))
            s_.append("v_fma_f32 v%d, -v%d, v%d, v%d" % (dR+h, i, wi, dR+h))
            s_.append("v_fmac_f32 v%d, v%d, v%d" % (dI+h, i, wr))
    return f, s_

def emit_kc(a, sD, sL, prio=0, gate=True):
    vT0, vT1, vOff = 1, 2, 3
    vDt, vFrag = 4, 5
    vP = 6
    vWA = 24
    vD = 40
    vFA = 56; vFB = 88
    XR, XI = 120, 130
    MR, MI = 140, 148
    YR, YI = 156, 158
    W2R, W2I, W16R, W16I, M2R, M2I = 160, 162, 164, 166, 168, 170
    TA, TB, TC, TD = 172, 174, 176, 178
    ZR, ZI = 180, 182
    vC = 184
    vS = 192
    vDs, vZero, vPA, vL16, vUg = 204, 205, 206, 207, 240
    vTag, vPoll = 242, 244
    sT, sU, sCnt, sFo = 44, 45, 46, 47
    sSy = 48
    sFl, sXN, sST, sSF = 52, 56, 60, 64
    sFx = 51
    vPoll2 = 248
    sy = Sync(a, sFl, P_DBG, vTag, vPoll, sSy, vZero)
    a.c("================ role: kgen + conv ================")
    a.stamp(0)
    for i in range(18): a("v_mov_b32 v%d, 0" % (vP+i))
    a("v_mov_b32 v%d, 0" % vDt); a("v_mov_b32 v%d, 0" % vDs); a("v_mov_b32 v%d, 0" % vZero)
    a("s_mul_i32 s%d, s%d, 384" % (sT, sD))
    a("v_lshlrev_b32 v%d, 1, v0" % vOff)
    a("v_add_u32 v%d, s%d, v%d" % (vOff, sT, vOff))
    a("s_lshl_b32 s%d, s%d, 1" % (sT, sD))
    a("v_mov_b32 v%d, s%d" % (vT1, sT))
    a("s_waitcnt lgkmcnt(0)")
    a.vmem("global_load_short_d16_hi v%d, v%d, s[%d:%d]" % (vDt, vT1, P_LOGDT, P_LOGDT+1), "dt")
    for st in range(3):
        for k in range(6):
            a.vmem("global_load_short_d16_hi v%d, v%d, s[%d:%d] offset:%d" % (vP+st*6+k, vOff, P_ARE+2*k, P_ARE+2*k+1, 128*st), "p")
    a.vmem("global_load_short_d16_hi v%d, v%d, s[%d:%d]" % (vDs, vT1, P_DSKIP, P_DSKIP+1), "p")
    if getattr(a, "NOKC", False): a("s_endpgm")
    a("s_setprio %d" % prio)
    a.srd_off(sFl, P_WS, WS_FLAGS, FLAGS_BYTES)
    a.srd_off(sXN, P_WS, WS_XN, XN_BYTES)
    a.srd_off(sST, P_WS, WS_ST, ST_BYTES)
    a("s_lshl_b32 s%d, s%d, 12" % (sU, sD))
    a("s_lshl_b32 s%d, s%d, 3" % (sFo, sD))
    a("s_add_u32 s%d, s%d, %d" % (sFo, sFo, FL_S))
    a("v_lshlrev_b32 v%d, 2, v0" % vT0)
    a("v_add_u32 v%d, s%d, v%d" % (vWA, sL, vT0))
    for g in range(1, 16): a("v_add_u32 v%d, %d, v%d" % (vWA+g, g*4*ROWB, vWA))
    a("v_and_b32 v%d, 31, v0" % vT0)
    a("v_mul_u32_u24 v%d, %d, v%d" % (vFrag, ROWB, vT0))
    a("v_lshrrev_b32 v%d, 5, v0" % vT0)
    a("v_lshl_add_u32 v%d, v%d, 4, v%d" % (vFrag, vT0, vFrag))
    a("v_add_u32 v%d, s%d, v%d" % (vFrag, sL, vFrag))
    a("v_lshlrev_b32 v%d, 4, v0" % vL16)
    a("v_lshlrev_b32 v%d, 3, v0" % vUg)
    a("v_min_u32 v%d, 112, v%d" % (vPA, vL16))
    a("s_lshr_b32 s%d, s%d, 4" % (sFx, sD))
    a("s_lshl_b32 s%d, s%d, 7" % (sFx, sFx))
    a("s_add_u32 s%d, s%d, %d" % (sFx, sFx, FL_XT))
    a.srd_off(sSF, P_WS, WS_SF, SF_BYTES)
    for i in range(80): a("v_mov_b32 v%d, 0" % (vD+i))
    Lhi = np.float32(LOG2E); Llo = np.float32(LOG2E - float(Lhi))
    a.wait(vm="dt")
    a.stamp(1); a.cstamp(9)
    a("v_mul_f32 v%d, %s, v%d" % (vS, fhex(Lhi), vDt))
    a("s_mov_b32 s%d, %s" % (sT, fhex(Lhi)))
    a("v_fma_f32 v%d, v%d, s%d, -v%d" % (vS+1, vDt, sT, vS))
    a("v_fmamk_f32 v%d, v%d, %s, v%d" % (vS+1, vDt, fhex(Llo), vS+1))
    a("v_exp_f32 v%d, v%d" % (vS, vS))
    a("v_mul_f32 v%d, %s, v%d" % (vS+1, fhex(0.6931471805599453), vS+1))
    a("v_fma_f32 v%d, v%d, v%d, v%d" % (vS, vS, vS+1, vS))
    a("v_cvt_pk_bf16_f32 v%d, v%d, v%d" % (vDt, vS, vS))
    a("v_and_b32 v%d, 0xffff0000, v%d" % (vDt, vDt))
    a.wait(vm="all")
    a("s_mov_b32 s%d, 0" % sCnt)
    def wr2(row0, r0, r1):
        g, o = row0 // 4, row0 % 4
        return "ds_write2_b32 v%d, v%d, v%d offset0:%d offset1:%d" % (vWA+g, r0, r1, o*68, (o+1)*68)
    def xrow(h, q): return 8*(q >> 2) + 4*h + (q & 3)
    mfmas = ["v_mfma_f32_32x32x16_bf16 %s, %s, %s, %s" % (v(vD,16), v(vFA+4*kk,4), v(vFB+4*kk,4), v(vD,16)) for kk in range(8)]
    P = vP
    setup = []; e = setup.append
    aL, bL = vS, vS+1
    e("v_mul_f32 v%d, v%d, v%d" % (aL, vDt, P+0))
    e("v_mul_f32 v%d, v%d, v%d" % (bL, vDt, P+1))
    e("v_mul_f32 v%d, %s, v%d" % (aL, fhex(LOG2E), aL))
    e("v_mul_f32 v%d, %s, v%d" % (bL, fhex(INV2PI), bL))
    e("v_mul_f32 v%d, v%d, v%d" % (TA, vDt, P+2))
    e("v_mul_f32 v%d, v%d, v%d" % (TB, vDt, P+3))
    e("v_mul_f32 v%d, v%d, v%d" % (XR, P+4, TA))
    e("v_mul_f32 v%d, v%d, v%d" % (XI, P+4, TB))
    e("v_fma_f32 v%d, -v%d, v%d, v%d" % (XR, P+5, TB, XR))
    e("v_fmac_f32 v%d, v%d, v%d" % (XI, P+5, TA))
    evs = [(1.0, TC, TD), (8.0, YR+1, YI+1), (256.0, MR, MI)]
    for j, (l, dr, di) in enumerate(evs):
        m, p, r = vS+2+3*j, vS+3+3*j, vS+4+3*j
        if l == 1.0:
            e("v_exp_f32 v%d, v%d" % (m, aL))
            e("v_rndne_f32 v%d, v%d" % (r, bL))
            e("v_sub_f32 v%d, v%d, v%d" % (p, bL, r))
        else:
            e("v_mul_f32 v%d, %s, v%d" % (m, fhex(l), aL))
            e("v_mul_f32 v%d, %s, v%d" % (p, fhex(l), bL))
            e("v_exp_f32 v%d, v%d" % (m, m))
            e("v_rndne_f32 v%d, v%d" % (r, p))
            e("v_sub_f32 v%d, v%d, v%d" % (p, p, r))
    for i in range(12): e("v_mov_b32 v%d, v%d" % (P+i, P+6+i))
    body = []; e = body.append
    for j, (l, dr, di) in enumerate(evs):
        p = vS+3+3*j
        e("v_cos_f32 v%d, v%d" % (dr, p))
        e("v_sin_f32 v%d, v%d" % (di, p))
    e("v_mov_b32 v%d, 1.0" % YR); e("v_mov_b32 v%d, 0" % YI)
    for j, (l, dr, di) in enumerate(evs):
        m = vS+2+3*j
        e("v_mul_f32 v%d, v%d, v%d" % (dr, dr, m))
        e("v_mul_f32 v%d, v%d, v%d" % (di, di, m))
    def square(dr, di, r, i):
        e("v_mul_f32 v%d, v%d, v%d" % (dr, r, r))
        e("v_mul_f32 v%d, v%d, v%d" % (di, r, i))
        e("v_fma_f32 v%d, -v%d, v%d, v%d" % (dr, i, i, dr))
        e("v_add_f32 v%d, v%d, v%d" % (di, di, di))
    square(W16R, W16I, YR+1, YI+1)
    square(W2R, W2I, TC, TD)
    M2R, M2I = MR+1, MI+1
    square(M2R, M2I, MR, MI)
    e("v_mul_f32 v%d, v%d, v%d" % (XR+1, XR, TC))
    e("v_mul_f32 v%d, v%d, v%d" % (XI+1, XR, TD))
    e("v_fma_f32 v%d, -v%d, v%d, v%d" % (XR+1, XI, TD, XR+1))
    e("v_fmac_f32 v%d, v%d, v%d" % (XI+1, XI, TC))
    sidec = []
    for k in range(4): sidec.append(pmul(XR+2*k+2, XI+2*k+2, XR+2*k, XI+2*k, W2R, W2I, TC, TD, bw=True, halves=(0, 1) if k < 3 else (0,)))
    for k in range(3): sidec.append(pmul(MR+2*k+2, MI+2*k+2, MR+2*k, MI+2*k, M2R, M2I, TC, TD, bw=True, halves=(0, 1) if k < 2 else (0,)))
    for pr in range(16):
        c0 = vC + 2*(pr & 1)
        e("v_cvt_pk_bf16_f32 v%d, v%d, v%d" % (c0, YR, YI))
        e("v_cvt_pk_bf16_f32 v%d, v%d, v%d" % (c0+1, YR+1, YI+1))
        y = pmul(YR, YI, YR, YI, W16R, W16I, TA, TB, bw=True) if pr < 15 else ([], [])
        sc = sidec.pop(0) if sidec else ([], [])
        for t in y[0] + sc[0]: e(t)
        e(wr2(32 + 2*pr, c0, c0+1))
        for t in y[1] + sc[1]: e(t)
    def cvx(dst, r, i): e("v_cvt_pk_bf16_f32 v%d, v%d, -v%d" % (dst, r, i))
    for q in range(0, 8, 2):
        c0 = vC + 4 + (q & 2)
        cvx(c0, XR+q, XI+q); cvx(c0+1, XR+q+1, XI+q+1)
        e(wr2(xrow(0, q), c0, c0+1))
    G = {}
    pool = list(range(vS, vS+12)) + list(range(vC, vC+8))
    def prod2(p0, p1):
        fs = []; ss = []
        for h, p in enumerate((p0, p1)):
            if p is None: continue
            f, s_ = pmul(ZR+h, ZI+h, XR+p[0], XI+p[0], MR+p[1]-1, MI+p[1]-1, TA, TB, halves=(0,))
            fs += f; ss += s_
        for t in fs + ss: e(t)
        for h, p in enumerate((p0, p1)):
            if p is None: continue
            G[p[2]] = pool.pop(0); cvx(G[p[2]], ZR+h, ZI+h)
    def put(row0, n0, n1): e(wr2(row0, G[n0], G[n1]))
    G[8] = pool.pop(0); cvx(G[8], XR+8, XI+8)
    prod2((0,1,256), (0,2,512)); put(xrow(1,0), 256, 256); put(xrow(0,8), 8, 512)
    prod2((2,1,258), (4,1,260)); put(xrow(1,2), 258, 260); put(xrow(1,4), 260, 260)
    prod2((6,1,262), (8,1,264)); put(xrow(1,6), 262, 264)
    prod2((4,2,516), (8,2,520)); put(xrow(0,10), 516, 520)
    prod2((0,3,768), None); put(xrow(1,8), 264, 768)
    prod2((4,3,772), (8,3,776)); put(xrow(1,10), 772, 776)
    prod2((0,4,1024), (8,4,1032)); put(xrow(0,12), 1024, 1032)
    prod2((0,5,1280), (8,5,1288)); put(xrow(0,14), 1280, 1288)
    prod2((0,6,1536), (8,6,1544)); put(xrow(1,12), 1536, 1544)
    prod2((0,7,1792), (8,7,1800)); put(xrow(1,14), 1792, 1800)
    lp = a.newlabel("L_kgen")
    a.label(lp)
    for t in setup: a(t)
    a("s_waitcnt lgkmcnt(0)")
    mf = list(mfmas)
    for cnt, t in enumerate(body):
        if mf and cnt % 12 == 0: a(mf.pop(0))
        a(t)
    assert not mf
    for kk in range(8):
        a("ds_read_b128 %s, v%d offset:%d" % (v(vFA+4*kk,4), vFrag, 32*kk))
        a("ds_read_b128 %s, v%d offset:%d" % (v(vFB+4*kk,4), vFrag, 32*kk + 32*ROWB))
    a("s_add_u32 s%d, s%d, 1" % (sCnt, sCnt))
    a("s_cmp_lt_u32 s%d, 3" % sCnt)
    a("s_cbranch_scc1 %s" % lp)
    a.stamp(2); a.cstamp(10)
    sy.tag_load()
    sy.poll_issue(vL16, "0", FL_LNT, "lnt")
    sy.poll_issue(vPA, "s%d" % sFx, 0, "xt", vPoll2)
    vOA, vOC, vOT = vS, vS+1, vS+2
    a("v_sub_u32 v%d, 1008, v%d" % (vOA, vL16))
    a("v_add_u32 v%d, s%d, v%d" % (vOA, sL, vOA))
    a("v_and_b32 v%d, 0x1f0, v%d" % (vOC, vL16))
    a("v_add_u32 v%d, s%d, v%d" % (vS+3, sL, vOC))
    a("v_lshrrev_b32 v%d, 5, v0" % vT1)
    a("v_lshl_add_u32 v%d, v%d, 10, v%d" % (vOC, vT1, vOC))
    a("v_sub_u32 v%d, 1520, v%d" % (vOC, vOC))
    a("v_add_u32 v%d, s%d, v%d" % (vOC, sL, vOC))
    a("v_cmp_eq_u32 vcc, 0, v0")
    a("v_and_b32 v%d, 1, v0" % vT0)
    a("v_lshlrev_b32 v%d, 4, v%d" % (vOT, vT0))
    a("v_cndmask_b32 v%d, 0, v%d, vcc" % (vDs, vDs))
    a("v_bfe_u32 v%d, v0, 1, 1" % vT1)
    a("v_mul_u32_u24 v%d, %d, v%d" % (vT1, RO_OFF, vT1))
    a("v_add3_u32 v%d, v%d, v%d, s%d" % (vOT, vOT, vT1, sL))
    a("s_waitcnt lgkmcnt(0)")
    for t in mfmas[:4]: a(t)
    sy.tag_check()
    sy.poll_check(vL16, "0", FL_LNT, "lnt", sleep=getattr(a, "KSLEEP", 2))
    sy.poll_check(vPA, "s%d" % sFx, 0, "xt", vPoll2, sleep=getattr(a, "KSLEEP", 2))
    vXu, vSf = 120, 136
    for i in range(8):
        if i < 4: a(mfmas[4+i])
        a.vmem("buffer_load_dwordx2 %s, v%d, s[%d:%d], s%d offen offset:%d sc1" % (v(vXu+2*i,2), vUg, sXN, sXN+3, sU, i*512), "u%d" % i)
        dst = vSf + 8*i if i < 7 else 208
        for h in range(2):
            a("s_mov_b32 s%d, %d" % (sT, i*1024 + h*8192))
            a.vmem("buffer_load_dwordx4 %s, v%d, s[%d:%d], s%d offen sc1" % (v(dst+4*h,4), vL16, sSF, sSF+3, sT), "u%d" % i)
    vA, vB = vWA, vWA+4
    vZr = vWA+8
    for i in range(4): a("v_mov_b32 v%d, 0" % (vZr+i))
    a("ds_write_b128 v%d, %s offset:9216" % (vS+3, v(vZr,4)))
    a("v_and_b32 v%d, 15, v0" % vT0)
    a("v_lshrrev_b32 v%d, 4, v0" % vT1)
    a("v_lshlrev_b32 v%d, 3, v%d" % (vA, vT1))
    a("v_sub_u32 v%d, v%d, v%d" % (vA, vA, vT0))
    a("v_lshlrev_b32 v%d, 1, v%d" % (vA, vA))
    a("v_and_b32 v%d, 1, v0" % (vA+1))
    a("v_cmp_eq_u32 vcc, 1, v%d" % (vA+1))
    a("v_xor_b32 v%d, 1, v%d" % (vA+1, vA+1))
    a("v_mul_u32_u24 v%d, %d, v%d" % (vA+1, RO_OFF + 2, vA+1))
    a("v_add3_u32 v%d, v%d, v%d, s%d" % (vA, vA, vA+1, sL))
    for j in (3, 2, 1, 0):
        a("v_add_u32 v%d, %d, v%d" % (vA+j, 4062 - 1024*j - 512 - 64, vA))
    a("v_lshlrev_b32 v%d, 5, v%d" % (vB, vT0))
    a("v_lshl_add_u32 v%d, v%d, 4, v%d" % (vB, vT1, vB))
    a("v_add_u32 v%d, s%d, v%d" % (vB, sL, vB))
    a("v_add_u32 v%d, %d, v%d" % (vB, CV_UB - 32 - 64, vB))
    d = lambda q: vD + q
    a("v_add_f32 v%d, v%d, v%d" % (d(0), d(0), vDs))
    O = vFA
    def pk(dst, lo, hi): a("v_cvt_pk_bf16_f32 v%d, v%d, v%d" % (dst, lo, hi))
    def st(reg, voff, imm): a("ds_write_b128 v%d, %s offset:%d" % (voff, v(reg,4), imm))
    for i, (lo, hi) in enumerate([(7,6),(5,4),(3,2),(1,0)]): pk(O+i, d(lo), d(hi))
    st(O, vOA, 3072)
    for i, (lo, hi) in enumerate([(8,7),(6,5),(4,3),(2,1)]): pk(O+4+i, d(lo), d(hi))
    st(O+4, vOA, RO_OFF + 3072)
    for i, (lo, hi) in enumerate([(11,11),(10,10),(10,9),(9,9)]): pk(O+8+i, d(lo), d(hi))
    st(O+8, vOA, 2048)
    for i, (lo, hi) in enumerate([(11,11),(11,10),(10,10),(9,9)]): pk(O+12+i, d(lo), d(hi))
    st(O+12, vOA, RO_OFF + 2048)
    for sl, (qa, imm) in enumerate([(12, 512), (14, 0)]):
        x = vS+4+sl
        a("v_cndmask_b32 v%d, v%d, v%d, vcc" % (x, d(qa), d(qa+1)))
        B = O+16+8*sl
        for i, (lo, hi) in enumerate([(d(qa+1),d(qa+1)),(d(qa+1),x),(d(qa),d(qa)),(d(qa),d(qa))]): pk(B+i, lo, hi)
        st(B, vOC, imm)
        for i, (lo, hi) in enumerate([(d(qa+1),d(qa+1)),(d(qa+1),d(qa+1)),(x,d(qa)),(d(qa),d(qa))]): pk(B+4+i, lo, hi)
        st(B+4, vOC, RO_OFF + imm)
    a("v_readlane_b32 s%d, v%d, 0" % (sT, d(0)))
    a("v_and_b32 v%d, 3, v0" % vT0)
    a("v_cmp_eq_u32 vcc, 2, v%d" % vT0)
    a("v_cvt_pk_bf16_f32 v%d, s%d, 0" % (vT1, sT))
    a("s_nop 0")
    a("v_cndmask_b32 v%d, 0, v%d, vcc" % (vZr, vT1))
    st(vZr, vOT, 4096)
    vAcc = 208
    vFr = 56
    vO = 184
    a("v_add_u32 v%d, s%d, v%d" % (vT0, sL, vUg))
    for i in range(8):
        a.wait(vm="u%d" % i)
        S = vSf + 8*i if i < 7 else 208
        X = vXu + 2*i; U = 216 + 4*(i & 1)
        a("v_lshlrev_b32 v%d, 16, v%d" % (U, X)); a("v_and_b32 v%d, 0xffff0000, v%d" % (U+1, X))
        a("v_lshlrev_b32 v%d, 16, v%d" % (U+2, X+1)); a("v_and_b32 v%d, 0xffff0000, v%d" % (U+3, X+1))
        for r in range(4): a("v_fma_f32 v%d, v%d, v%d, v%d" % (U+r, U+r, S+r, S+4+r))
        a("v_cvt_pk_bf16_f32 v%d, v%d, v%d" % (X, U, U+1))
        a("v_cvt_pk_bf16_f32 v%d, v%d, v%d" % (X+1, U+2, U+3))
        a("ds_write_b64 v%d, %s offset:%d" % (vT0, v(X,2), CV_UB + 512*i))
    for i in range(32): a("v_mov_b32 v%d, 0" % (vAcc+i))
    def frA(buf, k1): return vFr + buf*64 + 4*k1
    def frB(buf, mu): return vFr + buf*64 + 32 + 4*mu
    def reads(buf, par):
        out = []
        ex = 64 if par == 0 else 0
        for i in range(8):
            j = i // 2
            o = (128 if i % 2 == 0 else 0) + ex//4
            out.append("ds_read2_b32 %s, v%d offset0:%d offset1:%d" % (v(frA(buf,i),2), vA+j, o, o+1))
            out.append("ds_read2_b32 %s, v%d offset0:%d offset1:%d" % (v(frA(buf,i)+2,2), vA+j, o+2, o+3))
            out.append("ds_read_b128 %s, v%d offset:%d" % (v(frB(buf,i),4), vB, 512*i + ex))
        return out
    def cmfmas(buf):
        out = []
        for sm in range(8):
            for k1 in range(sm+1):
                for mu in range(sm+1):
                    if max(k1, mu) == sm and k1 + mu <= 7:
                        c = k1 + mu
                        out.append("v_mfma_f32_16x16x32_bf16 %s, %s, %s, %s" % (v(vAcc+4*c,4), v(frA(buf,k1),4), v(frB(buf,mu),4), v(vAcc+4*c,4)))
        return out
    if gate:
        gl = a.newlabel("L_gate"); go = a.newlabel("L_gateok")
        a("s_lshl_b32 s%d, s%d, 2" % (sT, S_WAVE))
        a("s_add_u32 s%d, s%d, %d" % (sT, sT, C_BAR - 16))
        a("v_mov_b32 v%d, s%d" % (vT0, sT))
        a("s_mov_b32 s%d, 0" % sCnt)
        a.label(gl)
        a("ds_read_b32 v%d, v%d" % (vT1, vT0))
        a("s_add_u32 s%d, s%d, 1" % (sCnt, sCnt))
        a("s_cmp_gt_u32 s%d, 0x%x" % (sCnt, SPIN_MAX*4))
        a("s_waitcnt lgkmcnt(0)")
        a("s_cbranch_scc1 %s" % go)
        a("v_cmp_le_u32 vcc, 3, v%d" % vT1)
        a("s_cbranch_vccnz %s" % go)
        a("s_sleep 2")
        a("s_branch %s" % gl)
        a.label(go)
    a("s_waitcnt vmcnt(0) lgkmcnt(0)")
    a.vm = []
    a.stamp(3); a.cstamp(11)
    a("s_setprio %d" % getattr(a, "CONVPRIO", 3))
    for ins in reads(0, 0): a(ins)
    a("s_mov_b32 s%d, 0" % sCnt)
    lp = a.newlabel("L_conv")
    a.label(lp)
    for buf in (0, 1):
        a("s_waitcnt lgkmcnt(0)")
        if buf == 1:
            for j in range(4): a("v_subrev_u32 v%d, 128, v%d" % (vA+j, vA+j))
            a("v_subrev_u32 v%d, 128, v%d" % (vB, vB))
        rd = reads(1-buf, 1 if buf == 0 else 0)
        ri = 0
        for m in cmfmas(buf):
            a(m)
            if ri < len(rd):
                a(rd[ri]); ri += 1
    a("s_add_u32 s%d, s%d, 1" % (sCnt, sCnt))
    a("s_cmp_lt_u32 s%d, 4" % sCnt)
    a("s_cbranch_scc1 %s" % lp)
    a.stamp(4); a.cstamp(12)
    a("v_and_b32 v%d, 15, v0" % vT0)
    a("v_lshrrev_b32 v%d, 4, v0" % vT1)
    a("v_lshlrev_b32 v%d, 5, v%d" % (vT0, vT0))
    a("v_lshl_add_u32 v%d, v%d, 3, v%d" % (vT0, vT1, vT0))
    a("v_add_u32 v%d, s%d, v%d" % (vT0, sL, vT0))
    a("v_add_u32 v%d, s%d, v%d" % (vT1, sL, vL16))
    a.nop(2)
    for c in range(8):
        a("v_cvt_pk_bf16_f32 v%d, v%d, v%d" % (vO+2*c, vAcc+4*c, vAcc+4*c+1))
        a("v_cvt_pk_bf16_f32 v%d, v%d, v%d" % (vO+2*c+1, vAcc+4*c+2, vAcc+4*c+3))
        a("ds_write_b64 v%d, %s offset:%d" % (vT0, v(vO+2*c,2), 512*c))
    for p in range(4): a("ds_read_b128 %s, v%d offset:%d" % (v(vAcc+4*p,4), vT1, 1024*p))
    for p in range(4):
        a("s_waitcnt lgkmcnt(%d)" % (3-p))
        a.vmem("buffer_store_dwordx4 %s, v%d, s[%d:%d], s%d offen offset:%d sc1" % (v(vAcc+4*p,4), vL16, sST, sST+3, sU, p*1024), "st")
    a("s_waitcnt vmcnt(0) lgkmcnt(0)")
    sy.signal("s%d" % sFo, 0)
    a.stamp(5)
    a.stamp_dump(14, S_WAVE, 56, (200 << 20))
    a("s_endpgm")
    a.vm = []; a.lg = []
```

```python
from asmlib import *
from common import *
from sync import Sync

def emit_lnt(a, sI, sL, prio=2):
    vT0, vT1, vT2 = 1, 2, 3
    vTag, vZero, vL16, vPoll = 4, 6, 7, 8
    vOff = 12
    vWr = 16
    vRd = 18
    vSo = 22
    vS = 24
    vG = 32
    vRs, vMr = 48, 56
    vU = 64
    vX = 80
    vO = 160
    sT, sOne = 44, 45
    sSy = 48
    sXN, sFl, sSt = 52, 56, 60
    sy = Sync(a, sFl, P_DBG, vTag, vPoll, sSy, vZero)
    a.c("================ role: LN + transpose ================")
    a.stamp(0)
    if getattr(a, "NOLNT", False): a("s_endpgm")
    a("s_setprio %d" % prio)
    a("v_lshrrev_b32 v%d, 4, v0" % vT0)
    a("v_and_b32 v%d, 15, v0" % vT1)
    a("v_mul_u32_u24 v%d, 1280, v%d" % (vOff, vT0))
    a("v_lshl_add_u32 v%d, v%d, 4, v%d" % (vOff, vT1, vOff))
    a("s_mul_i32 s%d, s%d, 20480" % (sT, sI))
    a("v_add_u32 v%d, s%d, v%d" % (vOff, sT, vOff))
    for j in range(1, 4): a("v_add_u32 v%d, %d, v%d" % (vOff+j, j*5120, vOff))
    a("v_mov_b32 v%d, 0" % vZero)
    a("s_waitcnt lgkmcnt(0)")
    for j in range(4):
        for c in range(5):
            a.vmem("global_load_dwordx4 %s, v%d, s[%d:%d] offset:%d" % (v(vX+(j*5+c)*4,4), vOff+j, P_X, P_X+1, c*256), "x%d" % j)
    a.srd_off(sXN, P_WS, WS_SF, SF_BYTES)
    a.srd_off(sFl, P_WS, WS_FLAGS, FLAGS_BYTES)
    a.srd_off(sSt, P_WS, WS_STATS, STATS_BYTES)
    a("s_mov_b32 s%d, 0x%x" % (sOne, ONES_BF))
    a("v_lshlrev_b32 v%d, 4, v0" % vL16)
    a("v_lshl_add_u32 v%d, v%d, 2, v%d" % (vSo, vT1, vT0))
    a("s_lshl_b32 s%d, s%d, 4" % (sSy, sI))
    a("v_add_u32 v%d, s%d, v%d" % (vSo, sSy, vSo))
    a("v_lshlrev_b32 v%d, 2, v%d" % (vSo+1, vSo))
    a("v_lshlrev_b32 v%d, 4, v%d" % (vSo, vSo))
    for i in range(8): a("v_mov_b32 v%d, 0" % (vS+i))
    for j in range(4):
        a.wait(vm="x%d" % j)
        if j == 0:
            a.stamp(1)
            sy.tag_load()
        for k in range(20):
            r = vX + j*20 + k
            a("v_dot2_f32_bf16 v%d, v%d, s%d, v%d" % (vS+2*j, r, sOne, vS+2*j))
            a("v_dot2_f32_bf16 v%d, v%d, v%d, v%d" % (vS+2*j+1, r, r, vS+2*j+1))
    a.nop(3)
    for sh in (8, 4, 2, 1):
        for i in range(8):
            a("v_add_f32_dpp v%d, v%d, v%d row_ror:%d row_mask:0xf bank_mask:0xf" % (vS+i, vS+i, vS+i, sh))
    for j in range(1, 4):
        a("v_cmp_eq_u32 vcc, %d, v%d" % (j, vT1))
        a("s_nop 1")
        a("v_cndmask_b32 v%d, v%d, v%d, vcc" % (vS, vS, vS+2*j))
        a("v_cndmask_b32 v%d, v%d, v%d, vcc" % (vS+1, vS+1, vS+2*j+1))
    m, q = vS, vS+1
    a("v_mul_f32 v%d, %s, v%d" % (m, fhex(1.0/640), m))
    a("v_mul_f32 v%d, %s, v%d" % (q, fhex(1.0/640), q))
    a("v_fma_f32 v%d, -v%d, v%d, v%d" % (q, m, m, q))
    a("v_max_f32 v%d, 0, v%d" % (q, q))
    a("v_cvt_pk_bf16_f32 v%d, -v%d, -v%d" % (vG, m, m))
    a("v_cvt_pk_bf16_f32 v%d, v%d, v%d" % (q, q, q))
    a("v_and_b32 v%d, 0xffff0000, v%d" % (q, q))
    a("v_add_f32 v%d, %s, v%d" % (q, fhex(1e-5), q))
    a("v_cvt_pk_bf16_f32 v%d, v%d, v%d" % (q, q, q))
    a("v_and_b32 v%d, 0xffff0000, v%d" % (q, q))
    a("v_sqrt_f32 v%d, v%d" % (q, q))
    a("v_and_b32 v%d, 0xffff0000, v%d" % (m, vG))
    a("v_cvt_pk_bf16_f32 v%d, v%d, v%d" % (vG+1, q, q))
    a("v_and_b32 v%d, 0xffff0000, v%d" % (q, vG+1))
    a("v_rcp_f32 v%d, v%d" % (vRs, q))
    sy.tag_check()
    a("v_mov_b32 v%d, v%d" % (vG+2, vTag))
    a("v_mov_b32 v%d, v%d" % (vG+3, vTag+1))
    a("v_mul_f32 v%d, v%d, v%d" % (vRs+1, m, vRs))
    a("s_mov_b32 exec_lo, 0x000f000f")
    a("s_mov_b32 exec_hi, 0x000f000f")
    a.vmem("buffer_store_dwordx4 %s, v%d, s[%d:%d], 0 offen sc1" % (v(vG,4), vSo, sSt, sSt+3), "st")
    a("s_mov_b32 s%d, 8192" % sT)
    a.vmem("buffer_store_dword v%d, v%d, s[%d:%d], 0 offen sc1" % (vRs, vSo+1, sXN, sXN+3), "st")
    a.vmem("buffer_store_dword v%d, v%d, s[%d:%d], s%d offen sc1" % (vRs+1, vSo+1, sXN, sXN+3, sT), "st")
    a("s_mov_b64 exec, -1")
    a.stamp(2); a.stamp(3)
    a.wait(vm="all")
    a("s_lshl_b32 s%d, s%d, 3" % (sT, sI))
    sy.signal("s%d" % sT, FL_LNT)
    a.stamp(4)
    a.stamp_dump(5, S_WAVE, 80, (200 << 20))
    a("s_endpgm")
    a.vm = []; a.lg = []
```

```python
from asmlib import *
from common import *
from sync import Sync

def tile_maps(e, sRb, sCb, sRb2, sCb2, sT):
    i = S_WG
    if sRb is not None:
        e("s_bfe_u32 s%d, s%d, 0x20001" % (sRb, i))
        e("s_lshl_b32 s%d, s%d, 2" % (sRb, sRb))
        e("s_lshr_b32 s%d, s%d, 6" % (sT, i))
        e("s_add_u32 s%d, s%d, s%d" % (sRb, sRb, sT))
        e("s_and_b32 s%d, s%d, 1" % (sCb, i))
        e("s_lshl_b32 s%d, s%d, 3" % (sCb, sCb))
        e("s_bfe_u32 s%d, s%d, 0x30003" % (sT, i))
        e("s_add_u32 s%d, s%d, s%d" % (sCb, sCb, sT))
    if sRb2 is not None:
        e("s_bfe_u32 s%d, s%d, 0x20001" % (sRb2, i))
        e("s_lshl_b32 s%d, s%d, 3" % (sRb2, sRb2))
        e("s_lshr_b32 s%d, s%d, 5" % (sT, i))
        e("s_add_u32 s%d, s%d, s%d" % (sRb2, sRb2, sT))
        e("s_and_b32 s%d, s%d, 1" % (sCb2, i))
        e("s_lshl_b32 s%d, s%d, 2" % (sCb2, sCb2))
        e("s_bfe_u32 s%d, s%d, 0x20003" % (sT, i))
        e("s_add_u32 s%d, s%d, s%d" % (sCb2, sCb2, sT))

def k_rotation(e, sT, sT2, sRb, sCb):
    e("s_and_b32 s%d, s%d, 3" % (sT, sRb))
    e("s_mul_i32 s%d, s%d, 3" % (sT, sT))
    e("s_add_u32 s%d, s%d, s%d" % (sT, sT, sCb))
    for _ in range(2):
        e("s_sub_u32 s%d, s%d, 10" % (sT2, sT))
        e("s_cmp_ge_u32 s%d, 10" % sT)
        e("s_cselect_b32 s%d, s%d, s%d" % (sT, sT2, sT))

def k_rotation2(e, sK, sT2, sRb2, sCb2):
    e("s_and_b32 s%d, s%d, 3" % (sT2, sCb2))
    e("s_mul_i32 s%d, s%d, 3" % (sT2, sT2))
    e("s_and_b32 s%d, s%d, 7" % (sK, sRb2))
    e("s_add_u32 s%d, s%d, s%d" % (sT2, sT2, sK))
    e("s_lshr_b32 s%d, s%d, 1" % (sK, sK))
    e("s_add_u32 s%d, s%d, s%d" % (sT2, sT2, sK))
    e("s_sub_u32 s%d, s%d, 12" % (sK, sT2))
    e("s_cmp_ge_u32 s%d, 12" % sT2)
    e("s_cselect_b32 s%d, s%d, s%d" % (sK, sK, sT2))
    e("s_lshl_b32 s%d, s%d, 10" % (sK, sK))

def x_src_offsets(a, vXs, vT0, vT1, vT2):
    a("v_lshrrev_b32 v%d, 4, v0" % vT0)
    a("v_lshrrev_b32 v%d, 3, v0" % vT1)
    a("v_and_b32 v%d, 7, v0" % vT2)
    a("v_xor_b32 v%d, v%d, v%d" % (vT2, vT2, vT0))
    a("v_mul_u32_u24 v%d, 1280, v%d" % (vXs, vT1))
    a("v_lshl_add_u32 v%d, v%d, 4, v%d" % (vXs, vT2, vXs))
    a("v_xor_b32 v%d, 64, v%d" % (vXs+1, vXs))
    a("v_add_u32 v%d, %d, v%d" % (vXs+2, 2*(10240-1024), vXs))
    a("v_add_u32 v%d, %d, v%d" % (vXs+3, 3*(10240-1024), vXs+1))
    a("v_add_u32 v%d, %d, v%d" % (vXs+1, 1*(10240-1024), vXs+1))

def emit_loader(a, plan, T=43, prio=3, ROT=True, RELAHEAD=11):
    vT0, vT1, vT2 = 1, 2, 3
    vTag, vZero, vL16 = 4, 6, 7
    vPoll = 8
    vXs, vWs, vCs, vBs, vAs = 20, 24, 36, 40, 44
    vRel, vPubA, vPub, vRelA, vPA = 60, 64, 65, 66, 67
    sRb, sCb, sRb2, sCb2, sT, sT2, sXo, sWo, sCo, sRel, sPub, sNeed, sAll = 40, 41, 42, 43, 44, 45, 46, 47, 48, 49, 50, 51, 52
    sSy = 54
    sRet = 58
    sXs, sW1, sW2, sW2F, sAct, sFl = 60, 64, 68, 72, 76, 4
    sBo, sAo, sFw, sFc = 53, 57, 46, 47
    sKx, sKw = 100, 101
    sy = Sync(a, sFl, P_DBG, vTag, vPoll, sSy, vZero)
    a.c("================ role: loader ================")
    a.stamp(0)
    if a.PROF:
        a("s_mov_b32 s86, 0"); a("s_mov_b32 s87, 0")
    a("s_setprio %d" % getattr(a, "LDPRIO0", 0))
    tile_maps(a, sRb, sCb, None, None, sT)
    for z in range(3):
        a("v_add_u32 v%d, %d, v0" % (vT2, 64*z))
        a("v_mul_u32_u24 v%d, 5462, v%d" % (vWs+z, vT2))
        a("v_lshrrev_b32 v%d, 16, v%d" % (vWs+z, vWs+z))
        a("v_mul_u32_u24 v%d, %d, v%d" % (vWs+z, 3072-192, vWs+z))
        a("v_lshl_add_u32 v%d, v0, 4, v%d" % (vWs+z, vWs+z))
    a("s_mul_i32 s%d, s%d, 192" % (sWo, sCb))
    k_rotation(a, sT, sT2, sRb, sCb)
    a("s_mul_i32 s%d, s%d, %d" % (sKw, sT, 64*3072))
    a("s_add_u32 s%d, s%d, %d" % (sT, sT, plan.NX_OWN))
    a("s_sub_u32 s%d, s%d, 10" % (sT2, sT))
    a("s_cmp_ge_u32 s%d, 10" % sT)
    a("s_cselect_b32 s%d, s%d, s%d" % (sT, sT2, sT))
    a("s_lshl_b32 s%d, s%d, 7" % (sKx, sT))
    a("s_waitcnt lgkmcnt(0)")
    a.srd(sW1, P_W1, 640*1536*2)
    st8 = {"n": 0, "pend": [], "issued": 0}
    def publish(k):
        a("s_max_u32 s%d, s%d, %d" % (sPub, sPub, k))
        a("v_mov_b32 v%d, s%d" % (vPub, sPub))
        a.lds("ds_write_b32 v%d, v%d" % (vPubA, vPub), "pub")
    def after_issue():
        while st8["pend"] and st8["n"] - st8["pend"][0][1] >= T:
            k, last = st8["pend"].pop(0)
            a("s_waitcnt vmcnt(%d)" % (st8["n"] - last))
            publish(k)
    def vm(txt):
        a(txt); st8["n"] += 1
        after_issue()
    def drain():
        while st8["pend"]:
            k, last = st8["pend"].pop(0)
            a("s_waitcnt vmcnt(%d)" % min(63, st8["n"] - last))
            publish(k)
    def rel_read():
        a.lds("ds_read_b128 %s, v%d" % (v(vRel,4), vRelA), "rel")
    def rel_check(need):
        if getattr(a, "NOREL", False): return
        ok = a.newlabel("L_relok")
        a.wait(lg="rel")
        a("v_min3_u32 v%d, v%d, v%d, v%d" % (vRel, vRel, vRel+1, vRel+2))
        a("v_min_u32 v%d, v%d, v%d" % (vRel, vRel, vRel+3))
        a("s_mov_b32 s%d, %d" % (sNeed, need))
        a("v_readfirstlane_b32 s%d, v%d" % (sRel, vRel))
        a("s_mov_b32 s%d, %d" % (sAll, st8["issued"]))
        a("s_cmp_ge_u32 s%d, %d" % (sRel, need))
        a("s_cbranch_scc1 %s" % ok)
        a("s_call_b64 s[%d:%d], L_ld_slow" % (sRet, sRet+1))
        a.label(ok)
    def adv(r, step, wrap):
        return ["s_add_u32 s%d, s%d, %d" % (r, r, step), "s_cmp_ge_u32 s%d, %d" % (r, wrap), "s_cselect_b32 s%d, 0, s%d" % (r, r)]
    def instrs(x):
        out = []
        if x.kind == "C":
            for i in range(8):
                pre = []
                if i % 4 == 0:
                    pre = ["s_mov_b32 m0, %d" % (L_W + 3*12288 + (i//4)*4096), "s_add_u32 s%d, s%d, 20480" % (sCo, sCo) if i else "s_nop 0"]
                out.append((pre, "buffer_load_dwordx4 v%d, s[%d:%d], s%d offen offset:%d lds" % (vCs + i % 4, sW2, sW2+3, sCo, (i % 4)*1024)))
        elif x.kind == "X":
            for w in range(4):
                for i in range(4):
                    pre = []
                    if i == 0:
                        pre = ["s_mov_b32 m0, %d" % (L_X + (x.idx % 3)*16384 + w*4096), ("s_add_u32 s%d, s%d, s%d" % (sT, sXo, sKx)) if w == 0 else ("s_add_u32 s%d, s%d, 40960" % (sT, sT))]
                    if w == 1 and i == 1: pre = adv(sKx, 128, 1280)
                    out.append((pre, "buffer_load_dwordx4 v%d, s[%d:%d], s%d offen offset:%d lds" % (vXs+i, sXs, sXs+3, sT, i*1024)))
        elif x.kind == "W":
            for z in range(12):
                pre = []
                if z % 3 == 0:
                    pre = ["s_mov_b32 m0, %d" % (L_W + (x.idx % 4)*12288 + (z//3)*3072), ("s_add_u32 s%d, s%d, s%d" % (sT, sWo, sKw)) if z == 0 else ("s_add_u32 s%d, s%d, %d" % (sT, sT, 16*3072))]
                if z == 1: pre = adv(sKw, 64*3072, 640*3072)
                out.append((pre, "buffer_load_dwordx4 v%d, s[%d:%d], s%d offen offset:%d lds" % (vWs + z % 3, sW1, sW1+3, sT, (z % 3)*1024)))
        elif x.kind == "B":
            for n, r in enumerate(x.rows):
                for w in range(4):
                    pre = []
                    if w == 0:
                        pre = ["s_mov_b32 m0, %d" % (r*4096), "s_add_u32 s%d, s%d, %d" % (sT, sT, 48*1024)]
                        if n == 0:
                            pre = ["s_add_u32 s%d, s%d, %d" % (sT, sKw, x.idx*1024), "s_sub_u32 s%d, s%d, %d" % (sT2, sT, 12*1024), "s_cmp_ge_u32 s%d, %d" % (sT, 12*1024),
                                   "s_cselect_b32 s%d, s%d, s%d" % (sT, sT2, sT), "s_mov_b32 m0, %d" % (r*4096), "s_add_u32 s%d, s%d, s%d" % (sT, sT, sBo)]
                    out.append((pre, "buffer_load_dwordx4 v%d, s[%d:%d], s%d offen offset:%d sc1 lds" % (vBs+w, sW2F, sW2F+3, sT, w*1024)))
        return out
    items = plan.items
    cur_rel = 0
    for k, x in enumerate(items):
        nxt = items[k+1] if k + 1 < len(items) else None
        if x.kind == "B" and x.idx == 0:
            a("s_waitcnt vmcnt(%d)" % (st8["n"] - st8["pollpos"]))
            okl = a.newlabel("L_w2ok"); sp = a.newlabel("L_w2spin"); ck = a.newlabel("L_w2chk")
            if not getattr(a, "NOPOLL", False):
                a("s_mov_b32 s%d, 0" % (sSy+2))
                a("s_branch %s" % ck)
                a.label(sp)
                a("s_waitcnt vmcnt(0)")
                publish(st8["issued"])
                a("s_sleep %d" % getattr(a, "LSLEEP", 1))
                for t in st8["polltxt"]: a(t)
                a("s_add_u32 s%d, s%d, 1" % (sSy+2, sSy+2))
                a("s_cmp_gt_u32 s%d, 0x%x" % (sSy+2, SPIN_MAX))
                a("s_waitcnt vmcnt(0)")
                a("s_cbranch_scc1 %s" % okl)
                a.label(ck)
                a("v_cmp_eq_u32 vcc, 0, v%d" % vTag)
                for q in range(6):
                    a("v_cmp_ne_u64 s[%d:%d], %s, %s" % (sSy, sSy+1, v(vPoll+2*q,2), v(vTag,2)))
                    a("s_or_b64 vcc, vcc, s[%d:%d]" % (sSy, sSy+1))
                a("s_cbranch_scc1 %s" % sp)
                a.label(okl)
            a.stamp(2)
        if x.kind == "ACT":
            drain()
            a.stamp(3)
            a.vm = []
            sy.poll_issue(vPA, "s%d" % sFc, 0, "pact"); st8["n"] += 1
            sy.poll_check(vPA, "s%d" % sFc, 0, "pact", sleep=getattr(a, "LSLEEP", 1))
            publish(k+1); st8["issued"] = k + 1
            a.stamp(4)
            rel_read()
            continue
        if x.need_rel > cur_rel:
            rel_check(x.need_rel); cur_rel = x.need_rel
        ins = instrs(x)
        for j, (pre, txt) in enumerate(ins):
            if nxt is not None and nxt.need_rel > cur_rel and j == max(0, len(ins) - RELAHEAD): rel_read()
            for p in pre: a(p)
            if j == len(ins) - 1:
                a(txt); st8["n"] += 1
                st8["pend"].append((k+1, st8["n"])); st8["issued"] = k + 1
                after_issue()
            else:
                vm(txt)
        if x.kind == "W" and x.idx in (2, 4, 6, 8): a.stamp(8 + (x.idx-2)//2)
        if a.PROF and x.kind == "B" and x.idx == 0:
            a("s_mov_b32 s92, s86"); a("s_mov_b32 s93, s87")
        if k == 0:
            a("s_mul_i32 s%d, s%d, 13108" % (sT, S_WG))
            a("s_lshr_b32 s%d, s%d, 16" % (sT, sT))
            a("s_mul_i32 s%d, s%d, 5" % (sT2, sT))
            a("s_sub_u32 s%d, s%d, s%d" % (sT2, S_WG, sT2))
            a("s_mul_i32 s%d, s%d, 40960" % (sCo, sT))
            a("s_lshl_b32 s%d, s%d, 8" % (sT2, sT2))
            a("s_add_u32 s%d, s%d, s%d" % (sCo, sCo, sT2))
            a("v_lshrrev_b32 v%d, 4, v0" % vT0)
            a("v_and_b32 v%d, 15, v0" % vT1)
            a("v_mul_u32_u24 v%d, 1280, v%d" % (vCs, vT0))
            a("v_lshl_add_u32 v%d, v%d, 4, v%d" % (vCs, vT1, vCs))
            for i in range(1, 4): a("v_add_u32 v%d, %d, v%d" % (vCs+i, i*(5120-1024), vCs))
            x_src_offsets(a, vXs, vT0, vT1, vT2)
            a("s_mul_i32 s%d, s%d, %d" % (sXo, sRb, 128*1280))
            a.srd(sW2, P_W2, W2F_BYTES)
            a.srd(sXs, P_X, 2048*640*2)
            a("v_lshlrev_b32 v%d, 2, v0" % vPubA)
            a("v_add_u32 v%d, %d, v%d" % (vPubA, C_DUMMY, vPubA))
            a("v_mov_b32 v%d, %d" % (vT0, C_RDY))
            a("v_cmp_eq_u32 vcc, 0, v0")
            a("v_mov_b32 v%d, %d" % (vRelA, C_REL))
            a("s_mov_b32 s%d, 0" % sPub)
            a("v_cndmask_b32 v%d, v%d, v%d, vcc" % (vPubA, vPubA, vT0))
            a.stamp(1)
        if k == getattr(a, 'LDDROP', 2): a("s_setprio %d" % prio)
        if k == 3:
            tile_maps(a, None, None, sRb2, sCb2, sT)
            a.srd_off(sW2F, P_WS, WS_W2F, W2F_BYTES)
            a.srd_off(sFl, P_WS, WS_FLAGS, FLAGS_BYTES)
            a("v_lshlrev_b32 v%d, 4, v0" % vL16)
            a("v_mov_b32 v%d, 0" % vZero)
            for w in range(4):
                a("v_add_u32 v%d, %d, v%d" % (vBs+w, w*11*1024, vL16))
            a("s_mul_i32 s%d, s%d, %d" % (sBo, sCb2, 5*48*1024))
            a("v_min_u32 v%d, %d, v%d" % (vPA, 15*16, vL16))
        if x.kind == "W" and x.idx == 9:
            a("s_mul_i32 s%d, s%d, 5" % (sT2, sCb2))
            a("s_lshr_b32 s%d, s%d, 3" % (sT2, sT2))
            a("s_min_u32 s%d, s%d, 3" % (sT2, sT2))
            a("s_mul_i32 s%d, s%d, 1536" % (sT2, sT2))
            a("s_add_u32 s%d, s%d, %d" % (sCo, sT2, FL_W2F))
            txt = ["global_load_dwordx2 %s, v%d, s[%d:%d] sc1" % (v(vTag,2), vZero, P_DBG, P_DBG+1)]
            txt += ["buffer_load_dwordx4 %s, v%d, s[%d:%d], s%d offen offset:%d sc1" % (v(vPoll+4*q,4), vL16, sFl, sFl+3, sCo, q*1024) for q in range(3)]
            st8["polltxt"] = txt
            for t in txt: vm(t)
            st8["pollpos"] = st8["n"]
            k_rotation2(a, sKw, sT2, sRb2, sCb2)
            a("s_lshl_b32 s%d, s%d, 8" % (sFc, sRb2))
            a("s_add_u32 s%d, s%d, %d" % (sFc, sFc, FL_ACT))
    drain()
    a.stamp(5)
    a.stamp_dump(15, S_WAVE, 68, (200 << 20))
    a("s_endpgm")
    a.label("L_ld_slow")
    if a.PROF: a("s_add_u32 s86, s86, 1")
    a("s_mov_b32 s%d, 0" % (sSy+2))
    a.label("L_ld_slow_loop")
    a("s_cmp_lg_u32 s%d, 3" % (sSy+2))
    a("s_cbranch_scc1 L_ld_slow_nodrain")
    if a.PROF: a("s_add_u32 s87, s87, 1")
    a("s_waitcnt vmcnt(0)")
    a("s_max_u32 s%d, s%d, s%d" % (sPub, sPub, sAll))
    a("v_mov_b32 v%d, s%d" % (vPub, sPub))
    a("ds_write_b32 v%d, v%d" % (vPubA, vPub))
    a.label("L_ld_slow_nodrain")
    rel_read()
    a("s_add_u32 s%d, s%d, 1" % (sSy+2, sSy+2))
    a("s_waitcnt lgkmcnt(0)")
    a("v_min3_u32 v%d, v%d, v%d, v%d" % (vRel, vRel, vRel+1, vRel+2))
    a("v_min_u32 v%d, v%d, v%d" % (vRel, vRel, vRel+3))
    a("s_cmp_gt_u32 s%d, 0x%x" % (sSy+2, SPIN_MAX*16))
    a("v_readfirstlane_b32 s%d, v%d" % (sRel, vRel))
    a("s_cbranch_scc1 L_ld_slow_ret")
    a("s_cmp_lt_u32 s%d, s%d" % (sRel, sNeed))
    a("s_cbranch_scc1 L_ld_slow_loop")
    a.label("L_ld_slow_ret")
    a("s_setpc_b64 s[%d:%d]" % (sRet, sRet+1))
    a.vm = []; a.lg = []
```

```python
from common import *

class Item:
    def __init__(self, kind, idx, rows=None, need_rel=0):
        self.kind, self.idx, self.rows, self.need_rel = kind, idx, rows, need_rel

class Plan:
    def __init__(self, NB_REG=3, NX_OWN=2, ACTPOS=4):
        self.NB_REG, self.NX_OWN = NB_REG, NX_OWN
        self.regB = list(range(4, 4 + NB_REG))
        self.lateB = list(range(8 + NB_REG, 12))
        self.ringB = [s for s in range(12) if s not in self.regB and s not in self.lateB]
        ev = ["X0", "C"]
        for st in range(10):
            if st < 9: ev.append("X%d" % (st+1))
            ev.append("W%d" % st)
        ev += ["B%d" % s for s in self.ringB]
        self.rel = {e: i+1 for i, e in enumerate(ev)}
        it = []
        for st in range(3):
            if st >= NX_OWN: it.append(Item("X", st))
            it.append(Item("W", st))
            if st == 0: it.append(Item("C", 0))
        it.append(Item("W", 3, need_rel=self.rel["C"]))
        for st in range(3, 10):
            if st >= NX_OWN: it.append(Item("X", st, need_rel=self.rel["X%d" % (st-3)]))
            if st + 1 <= 9: it.append(Item("W", st+1, need_rel=self.rel["W%d" % (st-3)]))
        def xrows(st): return [((L_X + (st % 3)*16384)//4096 + i, self.rel["X%d" % st]) for i in range(4)]
        def wrows(st): return [((L_W + (st % 4)*12288)//4096 + i, self.rel["W%d" % st]) for i in range(3)]
        rows = xrows(7) + wrows(6) + xrows(8) + wrows(7) + xrows(9) + wrows(8) + wrows(9)
        self.rowsof = {}
        SROWS = (20, 21, 22)
        for n, s in enumerate(self.ringB):
            o = "B%d" % s
            if n == ACTPOS: it.append(Item("ACT", 0))
            rows.sort(key=lambda r: r[1] + (1000 if (n >= 4 and r[0] in SROWS) else 0))
            take, rows = rows[:5], rows[5:]
            it.append(Item("B", s, rows=[r[0] for r in take], need_rel=max(r[1] for r in take)))
            self.rowsof[o] = [r[0] for r in take]
            assert max(r[1] for r in take) < self.rel[o]
            rows += [(r[0], self.rel[o]) for r in take]
        it.append(Item("S", 0, rows=list(SROWS), need_rel=max(r[1] for r in rows if r[0] in SROWS)))
        self.items = it
        self.rdy = {}
        for i, x in enumerate(it):
            self.rdy[x.kind + ("%d" % x.idx if x.kind in "XWB" else "")] = i + 1
if __name__ == "__main__":
    p = Plan()
    for x in p.items: print(x.kind, x.idx, x.rows, x.need_rel)
    print(p.rel); print(p.rdy)
```

```python
import sys
from asmlib import *
from common import *
from plan import Plan
from loader import emit_loader
from gemm4 import emit_compute
from kc4 import emit_kc
from lnt4 import emit_lnt
NAME = "recurrent_scan__ssm_conv_s4__dense_activation_mish__prompt_kernel"
HDR = open("recurrent_scan__ssm_conv_s4__dense_activation_mish__prompt.s.ref").read().split("; Override launch")[0]
def build(path, prof=False, nopoll=False, noaux=False, T=12, cprio=2, kprio=1, lprio=3, ldprio=0, rot=True, NB_REG=3, NX_OWN=10, norel=False, noch=False, ksleep=16, lsleep=6, **flags):
    a = Asm()
    a.PROF = prof; a.NOPOLL = nopoll; a.NOREL = norel; a.NOCH = noch; a.KSLEEP = ksleep; a.LSLEEP = lsleep
    for k_, v_ in flags.items(): setattr(a, k_, v_)
    plan = Plan(NB_REG, NX_OWN)
    a.raw(HDR.rstrip())
    a.raw("; @launch grid=(256,1,1) block=(512,1,1) lds=%d" % LDS_BYTES)
    a.raw('.amdgcn_target "amdgcn-amd-amdhsa--gfx950"')
    a.raw(".text")
    kernel_begin(a, NAME)
    a("s_cmp_ge_u32 s2, 256")
    a("s_cbranch_scc1 L_end")
    a("s_load_dwordx16 s[8:23], s[0:1], 0")
    a("s_load_dwordx16 s[24:39], s[0:1], 64")
    a("v_lshrrev_b32 v1, 6, v0")
    a("v_and_b32 v0, 63, v0")
    a("v_lshlrev_b32 v2, 2, v0")
    a("v_add_u32 v2, %d, v2" % L_CTL)
    a("v_readfirstlane_b32 s3, v1")
    a("v_mov_b32 v1, 0")
    a("ds_write_b32 v2, v1 offset:%d" % 0)
    a("s_waitcnt lgkmcnt(0)")
    a("s_barrier")
    a("s_cmp_lt_u32 s3, 4")
    a("s_cbranch_scc1 L_compute")
    a("s_cmp_eq_u32 s3, 4")
    a("s_cbranch_scc1 L_loader")
    if noaux: a("s_endpgm")
    a("s_setprio 2")
    a("s_sub_u32 s41, s3, 5")
    a("s_mul_i32 s40, s41, 20480")
    a("s_add_u32 s40, s40, %d" % L_AUX)
    a("s_lshl_b32 s42, s2, 1")
    a("s_add_u32 s42, s42, s41")
    a("s_cmp_lt_u32 s3, 7")
    a("s_cbranch_scc1 L_kc")
    a("s_add_u32 s42, s2, 512")
    a("s_cmp_lt_u32 s2, 128")
    a("s_cbranch_scc1 L_kc")
    a("s_sub_u32 s42, s2, 128")
    emit_lnt(a, 42, 40, lprio)
    a.label("L_kc")
    emit_kc(a, 42, 40, kprio, gate=not getattr(a, 'KNOGATE', False))
    a.label("L_loader")
    emit_loader(a, plan, T, ldprio, rot)
    a.label("L_compute")
    emit_compute(a, plan, cprio)
    a.label("L_end")
    a("s_endpgm")
    a.raw('.section .rodata,"a"')
    a.raw(".p2align 6")
    a.raw(kernel_desc(NAME, 256, 102))
    open(path, "w").write(a.text())
if __name__ == "__main__":
    build("s4.s")
    build("s4_prof.s", prof=True)
    build("s4_np.s", prof=True, nopoll=True, noaux=True)
    build("s4_v1.s", prof=True, CONVPRIO=1)
    build("s4_v2.s", prof=True, NX_OWN=3, T=28)
    build("s4_v3.s", prof=True, CH_X=1, CH_LAG=3)
```

```python
from asmlib import *
from common import *
from sync import Sync
from loader import tile_maps, k_rotation, k_rotation2, x_src_offsets

G2_P = 61440
G2_PW = 3328
G2_PRS = 40

def emit_compute(a, plan, prio=1):
    vT0, vT1, vT2 = 1, 2, 3
    vTag, vZero, vL16, vPoll = 4, 6, 7, 8
    vRelA, vRv, vCtl, vBarA = 12, 13, 14, 15
    vXr, vWr = 16, 20
    vSt, vSo, vCw, vCr = 24, 25, 26, 27
    vB1 = 28
    vC1, vC2, vC3 = 32, 34, 36
    vOne = 36
    vBar = vPoll
    vAcc = 40
    WB = [112, 124, 136]
    vXF = [148, 164]
    vCs4 = [88, 92, 96]
    vP, vAp, vBp = 180, 192, 204
    sRb, sCb, sRb2, sCb2, sT, sT2, sM, sAo, sRdy, sFa, sFs, sFw = 40, 41, 42, 43, 44, 45, 46, 47, 48, 49, 50, 51
    sSy = 52
    sRet = 100
    sK = 56
    sAct, sFl, sStt, sW2F, sOut, sST, sXs = 60, 64, 68, 72, 76, 4, 12
    sA, sB, sK2, sK3 = 16, 20, 25, 10
    W = S_WAVE
    sy = Sync(a, sFl, P_DBG, vTag, vPoll, sSy, vZero)
    a.c("================ role: compute (gemm1 + gemm2) ================")
    a.stamp(0)
    if a.PROF: a("s_mov_b32 s88, 0")
    a("v_lshlrev_b32 v%d, 2, v0" % vT0)
    a("v_add_u32 v%d, %d, v%d" % (vRelA, C_DUMMY, vT0))
    a("v_mov_b32 v%d, 0" % vZero)
    if prio: a("s_setprio %d" % prio)
    a("s_lshl_b32 s%d, s%d, 2" % (sT, W))
    a("s_add_u32 s%d, s%d, %d" % (sT, sT, C_REL))
    a("v_mov_b32 v%d, s%d" % (vT1, sT))
    a("v_cmp_eq_u32 vcc, 0, v0")
    a("v_mov_b32 v%d, %d" % (vCtl, L_CTL))
    a("s_mov_b32 s%d, 0" % sRdy)
    a("v_cndmask_b32 v%d, v%d, v%d, vcc" % (vRelA, vRelA, vT1))
    tile_maps(a, sRb, sCb, None, None, sT)
    vXd = 100
    sXb, sXk, sXm = 16, 17, 18
    x_src_offsets(a, vXd, vT0, vT1, vT2)
    k_rotation(a, sM, sT2, sRb, sCb)
    a("s_lshl2_add_u32 s%d, s%d, s%d" % (sT, sRb, W))
    a("s_waitcnt lgkmcnt(0)")
    a("s_mul_i32 s%d, s%d, 40960" % (sXb, sT))
    a("s_lshl_b32 s%d, s%d, 12" % (sXm, W))
    a("s_lshl_b32 s%d, s%d, 7" % (sXk, sM))
    a.srd(sXs, P_X, 2048*640*2)
    def xdma(st, i):
        if i == 0:
            a("s_add_u32 m0, s%d, %d" % (sXm, L_X + (st % 3)*16384))
            a("s_add_u32 s%d, s%d, s%d" % (sXb+3, sXb, sXk))
        a.vmem("buffer_load_dwordx4 v%d, s[%d:%d], s%d offen offset:%d lds" % (vXd+i, sXs, sXs+3, sXb+3, i*1024), "X%d" % st)
        if i == 0:
            a("s_add_u32 s%d, s%d, 128" % (sXk, sXk)); a("s_cmp_ge_u32 s%d, 1280" % sXk); a("s_cselect_b32 s%d, 0, s%d" % (sXk, sXk))
    for st in range(min(3, plan.NX_OWN)):
        for i in range(4): xdma(st, i)
    TS = getattr(a, "TOUCH", 0)
    if TS:
        a("v_lshlrev_b32 v%d, %d, v0" % (vT2, TS))
        a("s_lshl_b32 s%d, s%d, %d" % (sT, W, TS + 6))
        a("v_add_u32 v%d, s%d, v%d" % (vT2, sT, vT2))
        a("v_add_u32 v%d, %d, v%d" % (vT2, (1 << TS) - 128, vT2))
        a.srd(sOut, P_WS, 32 << 20)
        a.vmem("buffer_load_dword v%d, v%d, s[%d:%d], 0 offen sc1" % (vPoll+2, vT2, sOut, sOut+3), "touch")
        a.srd(sStt, P_OUT, 2048*640*2)
        a.vmem("buffer_load_dword v%d, v%d, s[%d:%d], 0 offen sc1" % (vPoll+3, vT2, sStt, sStt+3), "touch")
    nt = a.newlabel("L_notag")
    a("s_lshl2_add_u32 s%d, s%d, s%d" % (sT, S_WG, W))
    a("s_cmp_lg_u32 s%d, %d" % (sT, 248*4))
    a("s_cbranch_scc1 %s" % nt)
    sy.publish_tag(vPoll)
    a.vm.pop()
    a.label(nt)
    if getattr(a, "NOREL", False): a("s_endpgm")
    ool = []
    st_ = {"peeked": False}
    vPk = 31
    def peek():
        st_["peeked"] = True
        a.lds("ds_read_b32 v%d, v%d" % (vPk, vCtl), "peek")
    def ready(name):
        if name not in plan.rdy:
            a.wait(vm=name); return
        k = plan.rdy[name]
        ok = a.newlabel("L_rok"); sp = a.newlabel("L_rspin")
        if "peek" in a.lg or st_["peeked"]:
            a.wait(lg="peek")
            a("v_readfirstlane_b32 s%d, v%d" % (sRdy, vPk))
            st_["peeked"] = False
        a("s_cmp_ge_u32 s%d, %d" % (sRdy, k))
        a("s_cbranch_scc0 %s" % sp)
        a.label(ok)
        ool.append((sp, ok, k))
    def release(name):
        a("v_mov_b32 v%d, %d" % (vRv, plan.rel[name]))
        a.lds("ds_write_b32 v%d, v%d" % (vRelA, vRv), "rel")
    def bar_arrive(ep):
        a("v_mov_b32 v%d, %d" % (vRv, ep))
        a.lds("ds_write_b32 v%d, v%d offset:16" % (vRelA, vRv), "rel")
    def bar_wait(ep, off=32):
        sp = a.newlabel("L_bspin"); ok = a.newlabel("L_bok")
        a("s_mov_b32 s%d, 0" % (sSy+2))
        a.label(sp)
        a("ds_read_b128 %s, v%d offset:%d" % (v(vBar,4), vCtl, off))
        a("s_add_u32 s%d, s%d, 1" % (sSy+2, sSy+2))
        a("s_cmp_gt_u32 s%d, 0x%x" % (sSy+2, SPIN_MAX*16))
        a("s_waitcnt lgkmcnt(0)")
        a("v_min3_u32 v%d, v%d, v%d, v%d" % (vBar, vBar, vBar+1, vBar+2))
        a("v_min_u32 v%d, v%d, v%d" % (vBar, vBar, vBar+3))
        a("s_cbranch_scc1 %s" % ok)
        a("v_cmp_gt_u32 vcc, %d, v%d" % (ep, vBar))
        a("s_cbranch_vccnz %s" % sp)
        a.label(ok)
        a.lg = []
    tile_maps(a, None, None, sRb2, sCb2, sT)
    a("v_lshlrev_b32 v%d, 4, v0" % vL16)
    a("v_and_b32 v%d, 31, v0" % vT0)
    a("v_lshrrev_b32 v%d, 5, v0" % vT1)
    a("v_lshlrev_b32 v%d, 1, v%d" % (vT2, vT0))
    a("s_mul_i32 s%d, s%d, 192" % (sT, sCb))
    a("v_add_u32 v%d, s%d, v%d" % (vT2, sT, vT2))
    for p in range(3): a.vmem("global_load_ushort v%d, v%d, s[%d:%d] offset:%d" % (vB1+p, vT2, P_B1, P_B1+1, 64*p), "b1")
    a("s_lshl_b32 s%d, s%d, 12" % (sT, W))
    a("s_add_u32 s%d, s%d, %d" % (sT, sT, L_X))
    a("v_bfe_u32 v%d, v0, 1, 3" % vT2)
    a("v_xor_b32 v%d, v%d, v%d" % (vT2, vT2, vT1))
    a("v_lshlrev_b32 v%d, 4, v%d" % (vT2, vT2))
    a("v_lshl_add_u32 v%d, v%d, 7, v%d" % (vT2, vT0, vT2))
    a("v_add_u32 v%d, s%d, v%d" % (vT2, sT, vT2))
    for jl in range(4):
        a("s_add_u32 s%d, s%d, %d" % (sT2, W, jl))
        a("s_and_b32 s%d, s%d, 3" % (sT2, sT2))
        a("s_lshl_b32 s%d, s%d, 5" % (sT2, sT2))
        a("v_xor_b32 v%d, s%d, v%d" % (vXr+jl, sT2, vT2))
    a("v_bfe_u32 v%d, v0, 2, 2" % vT2)
    a("v_lshl_add_u32 v%d, v%d, 3, v%d" % (vT2, vT1, vT2))
    a("v_mul_u32_u24 v%d, 192, v%d" % (vT2, vT2))
    a("v_bfe_u32 v%d, v0, 4, 1" % vSt)
    a("v_lshl_add_u32 v%d, v%d, 5, v%d" % (vT2, vSt, vT2))
    a("v_and_b32 v%d, 3, v0" % vSo)
    a("v_lshl_add_u32 v%d, v%d, 3, v%d" % (vT2, vSo, vT2))
    for jl in range(4):
        a("s_add_u32 s%d, s%d, %d" % (sT2, W, jl))
        a("s_and_b32 s%d, s%d, 3" % (sT2, sT2))
        a("s_mul_i32 s%d, s%d, %d" % (sT2, sT2, 16*192))
        a("v_add_u32 v%d, s%d, v%d" % (vWr+jl, sT2, vT2))
    for r in (vOne, vOne+1): a("v_mov_b32 v%d, 0x%x" % (r, ONES_BF))
    a("v_lshlrev_b32 v%d, 4, v%d" % (vCw, vT1))
    a("v_lshl_add_u32 v%d, v%d, 2, v%d" % (vCw, vSt, vCw))
    a("v_bfe_u32 v%d, v0, 2, 2" % vT2)
    a("v_add_u32 v%d, v%d, v%d" % (vCw, vCw, vT2))
    a("v_lshlrev_b32 v%d, 8, v%d" % (vCw, vCw))
    a("v_lshl_add_u32 v%d, v%d, 3, v%d" % (vCw, vSo, vCw))
    a("s_lshl_b32 s%d, s%d, 6" % (sT, W))
    a("v_add_u32 v%d, s%d, v%d" % (vCw, sT, vCw))
    a("s_mul_i32 s%d, s%d, 13108" % (sT, S_WG))
    a("s_lshr_b32 s%d, s%d, 16" % (sT, sT))
    a("s_mul_i32 s%d, s%d, 5" % (sT2, sT))
    a("s_sub_u32 s%d, s%d, s%d" % (sT2, S_WG, sT2))
    a("s_cmp_ge_u32 s%d, 240" % S_WG)
    a("s_cselect_b32 s%d, 5, s%d" % (sT2, sT2))
    a("s_cselect_b32 s%d, 0, s%d" % (sT, sT))
    a("s_lshl2_add_u32 s%d, s%d, s%d" % (sM, sT2, W))
    a("s_mul_i32 s%d, s%d, %d" % (sM, sM, 2*48*1024))
    a("s_lshl_b32 s%d, s%d, 10" % (sAo, sT))
    a("s_add_u32 s%d, s%d, s%d" % (sM, sM, sAo))
    a("s_mul_i32 s%d, s%d, 48" % (sFw, sT2))
    a("s_add_u32 s%d, s%d, s%d" % (sFw, sFw, sT))
    a("s_lshl2_add_u32 s%d, s%d, s%d" % (sFw, sFw, W))
    a("s_lshl_b32 s%d, s%d, 3" % (sFw, sFw))
    a("s_add_u32 s%d, s%d, %d" % (sFw, sFw, FL_W2F))
    a.srd_off(sW2F, P_WS, WS_W2F, W2F_BYTES)
    a.srd_off(sFl, P_WS, WS_FLAGS, FLAGS_BYTES)
    a.srd_off(sAct, P_WS, WS_ACT, ACT_BYTES)
    a.srd_off(sStt, P_WS, WS_STATS, STATS_BYTES)
    a.srd_off(sST, P_WS, WS_ST, ST_BYTES)
    a("v_mul_u32_u24 v%d, %d, v%d" % (vSt, 48*64, vSt))
    a("v_and_b32 v%d, 15, v0" % vT2)
    a("v_add_u32 v%d, v%d, v%d" % (vSt, vSt, vT2))
    a("v_lshl_add_u32 v%d, v%d, 4, v%d" % (vSt, vT1, vSt))
    a("v_lshlrev_b32 v%d, 4, v%d" % (vSt, vSt))
    a("s_lshl2_add_u32 s%d, s%d, s%d" % (sT2, sRb, W))
    a("s_lshl_b32 s%d, s%d, 9" % (sT, sT2))
    a("v_lshlrev_b32 v%d, 4, v%d" % (vSo, vT0))
    a("v_add_u32 v%d, s%d, v%d" % (vSo, sT, vSo))
    a("s_lshr_b32 s%d, s%d, 1" % (sT, sT2))
    a("s_lshl_b32 s%d, s%d, 5" % (sFa, sT))
    a("s_and_b32 s%d, s%d, 1" % (sT, sT2))
    a("s_add_u32 s%d, s%d, s%d" % (sFa, sFa, sT))
    a("s_lshl_b32 s%d, s%d, 1" % (sT, sCb))
    a("s_add_u32 s%d, s%d, s%d" % (sFa, sFa, sT))
    a("s_lshl_b32 s%d, s%d, 3" % (sFa, sFa))
    a("s_add_u32 s%d, s%d, %d" % (sFa, sFa, FL_ACT))
    a("s_mul_i32 s%d, s%d, 96" % (sT2, sT2))
    a("s_mul_i32 s%d, s%d, 3" % (sAo, sCb))
    a("s_add_u32 s%d, s%d, s%d" % (sAo, sAo, sT2))
    a("s_lshl_b32 s%d, s%d, 10" % (sAo, sAo))
    a("s_mul_i32 s%d, s%d, 640" % (sFs, sCb2))
    a("s_add_u32 s%d, s%d, %d" % (sFs, sFs, FL_S))
    a("s_mov_b32 s%d, %s" % (sK, fhex(LOG2E))); a("s_mov_b32 s%d, %s" % (sK+1, fhex(LOG2E)))
    a("s_mov_b32 s%d, 2.0" % (sK+2)); a("s_mov_b32 s%d, 2.0" % (sK+3))
    for i in range(16): a("v_mov_b32 v%d, 0" % (vAp+i))
    a("v_lshlrev_b32 v%d, 2, v%d" % (vCr, vT0))
    a("v_add_u32 v%d, %d, v%d" % (vCr, C_CS, vCr))
    vXt, vXs_ = 216, 220
    vIt = [224, 240]
    sXt, sFx = 55, 26
    a("v_bfe_u32 v%d, v0, 1, 1" % vXt)
    a("s_lshl_b32 s%d, s%d, 1" % (sT, W))
    a("v_add_u32 v%d, s%d, v%d" % (vXt, sT, vXt))
    a("v_bfe_u32 v%d, v0, 3, 1" % vT2)
    a("v_xor_b32 v%d, v%d, v%d" % (vXt, vXt, vT2))
    a("v_lshlrev_b32 v%d, 4, v%d" % (vXt, vXt))
    a("v_and_b32 v%d, 1, v0" % vT2)
    a("v_lshl_add_u32 v%d, v%d, 3, v%d" % (vXt, vT2, vXt))
    a("v_bfe_u32 v%d, v0, 2, 2" % vT2)
    a("v_lshl_add_u32 v%d, v%d, 7, v%d" % (vXt, vT2, vXt))
    a("v_lshlrev_b32 v%d, 14, v%d" % (vXs_, vT2))
    a("v_lshrrev_b32 v%d, 4, v0" % vT2)
    a("v_lshl_add_u32 v%d, v%d, 12, v%d" % (vXt, vT2, vXt))
    a("v_add_u32 v%d, %d, v%d" % (vXt, L_X, vXt))
    for k in range(1, 4): a("v_xor_b32 v%d, %d, v%d" % (vXt+k, 32*k, vXt))
    a("v_lshl_add_u32 v%d, v%d, 6, v%d" % (vXs_, vT2, vXs_))
    a("v_and_b32 v%d, 3, v0" % vT2)
    a("v_lshl_add_u32 v%d, v%d, 4, v%d" % (vXs_, vT2, vXs_))
    k_rotation(a, sT, sT2, sRb, sCb)
    a("s_cmp_ge_u32 s%d, 10" % sCb)
    a("s_cselect_b32 s%d, 10, s%d" % (sT, sT))
    a("s_lshl2_add_u32 s%d, s%d, s%d" % (sT, sT, W))
    a("s_lshl_b32 s%d, s%d, 16" % (sXt, sT))
    a("s_lshl_b32 s%d, s%d, 8" % (sT2, sRb))
    a("s_add_u32 s%d, s%d, s%d" % (sXt, sXt, sT2))
    a("s_lshl4_add_u32 s%d, s%d, s%d" % (sFx, sT, sRb))
    a("s_lshl_b32 s%d, s%d, 3" % (sFx, sFx))
    a("s_add_u32 s%d, s%d, %d" % (sFx, sFx, FL_XT))
    vCh = 208
    def xreads(st):
        return [("xf%d_%d" % (st, jl), "ds_read_b128 %s, v%d offset:%d" % (v(vXF[st & 1]+4*jl,4), vXr+jl, (st % 3)*16384)) for jl in range(4)]
    def wreads(g_):
        st, jl = g_ // 4, g_ % 4
        buf = WB[g_ % 3]
        return [("wf%d" % g_, "ds_read_b64_tr_b16 %s, v%d offset:%d" % (v(buf+4*p+2*q,2), vWr+jl, L_W + (st % 4)*12288 + q*4*192 + p*64)) for p in range(3) for q in range(2)]
    def w2st(k):
        a.vmem("buffer_store_dwordx4 %s, v%d, s[%d:%d], s%d offen sc1" % (v(vCh+4*k,4), vL16, sW2F, sW2F+3, sM), "chw")
        if k == 0: a("s_add_u32 s%d, s%d, %d" % (sM, sM, 48*1024))
    def xtst(j):
        a.vmem("buffer_store_dwordx4 %s, v%d, s[%d:%d], s%d offen sc1" % (v(vIt[0]+4*j,4), vXs_, sOut, sOut+3, sXt), "chs")
        if j < 3: a("s_add_u32 s%d, s%d, 4096" % (sXt, sXt))
    SW, SX, SG = getattr(a, "CH_W", 0), getattr(a, "CH_X", 2), getattr(a, "CH_LAG", 3)
    a.srd_off(sOut, P_WS, WS_XN, XN_BYTES)
    ready("X0")
    bar_arrive(1)
    a.stamp(10)
    for tag, ins in xreads(0): a.lds(ins, tag)
    ready("W0")
    a.stamp(11)
    bar_wait(1)
    for tag, ins in wreads(0) + wreads(1): a.lds(ins, tag)
    for p in range(4):
        for q in range(2):
            a.lds("ds_read_b64_tr_b16 %s, v%d offset:%d" % (v(vIt[0]+4*p+2*q,2), vXt + 2*(p & 1) + q, (8*p + 4*q)*128), "xt")
    release("X0")
    dpp = []
    for stage_, (masks, perm, x_) in enumerate((((0x55555555, 0xaaaaaaaa), "[1,0,3,2]", 1), ((0x33333333, 0xcccccccc), "[2,3,0,1]", 2))):
        src, dst = vIt[stage_], vIt[1-stage_]
        for mi, m in enumerate(masks):
            for j in range(4):
                if ((j & x_) != 0) != (mi == 1): continue
                dpp.append(["s_mov_b32 vcc_lo, 0x%x" % m, "s_mov_b32 vcc_hi, 0x%x" % m] +
                           ["v_cndmask_b32_dpp v%d, v%d, v%d, vcc quad_perm:%s row_mask:0xf bank_mask:0xf" % (dst+4*j+r, src+4*(j ^ x_)+r, src+4*j+r, perm) for r in range(4)])
    ready("C")
    a.stamp(1)
    for k in range(2):
        for q in range(2):
            a.lds("ds_read_b64_tr_b16 %s, v%d offset:%d" % (v(vCh+4*k+2*q,2), vCw, L_W + 3*12288 + q*8*256 + k*32), "ch")
    release("C")
    a("s_mul_i32 s%d, s%d, 384" % (sT2, W))
    a("v_add_u32 v%d, s%d, v%d" % (vCw, sT2, vCr))
    def emit(t):
        if callable(t): t()
        elif isinstance(t, tuple): a.lds(t[1], t[0])
        else: a(t)
    def step(g_, gaps):
        st, jl = g_ // 4, g_ % 4
        buf = WB[g_ % 3]
        xf = vXF[st & 1] + 4*jl
        a.wait(lg=["wf%d" % g_, "xf%d_%d" % (st, jl)])
        rd = wreads(g_ + 2) if g_ + 2 < 40 else []
        for p in range(3):
            acc = vAcc + 16*p
            HK = getattr(a, "HACK", 0)
            if HK == 3:
                for hh in range(2): a("v_mfma_f32_16x16x32_bf16 %s, %s, %s, %s" % (v(acc+4*hh+8*(jl&1),4), v(buf+4*p,4), v(xf,4), "0" if g_ < 2 else v(acc+4*hh+8*(jl&1),4)))
            elif HK != 1: a("v_mfma_f32_32x32x16_bf16 %s, %s, %s, %s" % (v(acc,16), v(buf+4*p,4), v(xf,4), "0" if g_ == 0 else v(acc,16)))
            for tag, ins in rd[2*p:2*p+2]: a.lds(ins, tag)
            if jl >= 2 and HK == 0:
                a("v_mfma_f32_4x4x4_16b_bf16 %s, %s, %s, %s" % (v(vCs4[p],4), v(vOne,2), v(buf+4*p+2*(jl-2),2), "0" if g_ == 2 else v(vCs4[p],4)))
            for t in gaps[p]: emit(t)
    statld = "buffer_load_dwordx4 %s, v%d, s[%d:%d], 0 offen sc1" % (v(vPoll,4), vSo, sStt, sStt+3)
    for st in range(10):
        gp = [[] for _ in range(12)]
        if st < 9:
            xr = xreads(st+1)
            gp[1] += [lambda: ready("X%d" % (st+1)), xr[0]]
            if plan.rdy["W%d" % (st+1)] > plan.rdy.get("X%d" % (st+1), 0): gp[3] += [peek]
            if st < 8 and ("X%d" % (st+2)) in plan.rdy: gp[10] += [peek]
            gp[2] += [xr[1]]; gp[3] += [xr[2]]; gp[4] += [xr[3]]
            if plan.NX_OWN < 10 or st + 1 >= 7: gp[4] += [lambda: release("X%d" % (st+1))]
        gp[5] += [lambda: release("W%d" % st)]
        if st < 2:
            for gi in (6, 8, 9, 11): gp[gi] += dpp.pop(0)
        if st < 9 and plan.rdy["W%d" % (st+1)] > plan.rdy.get("X%d" % (st+1), 0): gp[5] += [lambda: ready("W%d" % (st+1))]
        if plan.NX_OWN == 10:
            if st + 3 < 10:
                if st == 0: gp[6].append(lambda: bar_wait(1, 16))
                for i in range(4): gp[(6, 7, 9, 10)[i] if st == 0 else (0, 2, 7, 9)[i]].append(lambda i=i: xdma(st+3, i))
        if st == SW:
            gp[6].append(lambda: w2st(0)); gp[9].append(lambda: w2st(1))
        if st == SX:
            for j in range(4): gp[(0, 7, 8, 11)[j]].append(lambda j=j: xtst(j))
        if st == 1: gp[7].append(sy.tag_load)
        if st == max(SW, 0) + SG:
            def sigw():
                sy.tag_check()
                a.wait(vm="chw")
                sy.signal("s%d" % sFw, 0)
            gp[0].insert(0, sigw)
        if st == min(max(SX, 0) + SG, 9):
            def sigx():
                a.wait(vm="chs")
                sy.signal("s%d" % sFx, 0)
                a.srd(sOut, P_OUT, 2048*640*2)
            gp[1 if st < 9 else 11].insert(0, sigx)
        if st == 8: gp[8].append(lambda: a.vmem(statld, "stat"))
        if st in (0, 4): a.stamp({0: 12, 4: 13}[st])
        if st == 4: a.cstamp(14)
        for j in range(4): step(4*st+j, gp[3*j:3*j+3])
    a.stamp(2); a.cstamp(15)
    if a.PROF: a("s_mov_b32 s89, s88")
    sy.granule_check(statld, "stat", vPoll+2)
    a.nop(2)
    for p in range(3): a("v_permlane32_swap_b32 v%d, v%d" % (vCs4[p], vCs4[p]+1))
    for p in range(3): a("v_add_f32 v%d, v%d, v%d" % (vCs4[p], vCs4[p], vCs4[p]+1))
    for p in range(3): a.lds("ds_write_b32 v%d, v%d offset:%d" % (vCw, vCs4[p], p*128), "cw")
    bar_arrive(2)
    a("v_mov_b32 v%d, v%d" % (vBp, vPoll))
    a("v_mov_b32 v%d, v%d" % (vBp+1, vPoll+1))
    a("v_and_b32 v%d, 0xffff0000, v%d" % (vC3, vPoll+1))
    a("v_rcp_f32 v%d, v%d" % (vC3, vC3))
    bar_wait(2)
    for w in range(4):
        for p in range(3):
            a.lds("ds_read_b32 v%d, v%d offset:%d" % (vP+w*3+p, vCr, w*384 + p*128), "cr")
    a("v_mul_f32 v%d, %s, v%d" % (vC1, fhex(LOG2E), vC3))
    a("v_mul_f32 v%d, -2.0, v%d" % (vC2, vC3))
    a("s_mov_b32 exec_hi, 0")
    for p in range(3): a("v_mov_b32 v%d, v%d" % (vAp+4*p+1, vB1+p))
    a.wait(lg="cr")
    for p in range(3):
        a("v_add_f32 v%d, v%d, v%d" % (vP+p, vP+p, vP+3+p))
        a("v_add_f32 v%d, v%d, v%d" % (vP+6+p, vP+6+p, vP+9+p))
    for p in range(3): a("v_add_f32 v%d, v%d, v%d" % (vP+p, vP+p, vP+6+p))
    for p in range(3): a("v_cvt_pk_bf16_f32 v%d, v%d, v%d" % (vP+3+p, vP+p, vP+p))
    for p in range(3): a("v_and_b32 v%d, 0xffff0000, v%d" % (vP+3+p, vP+3+p))
    for p in range(3): a("v_sub_f32 v%d, v%d, v%d" % (vP+3+p, vP+p, vP+3+p))
    for p in range(3): a("v_cvt_pk_bf16_f32 v%d, v%d, v%d" % (vAp+4*p, vP+p, vP+3+p))
    a("s_mov_b32 exec_hi, -1")
    a("s_nop 0")
    for p in range(3):
        acc = vAcc + 16*p
        a("v_mfma_f32_32x32x16_bf16 %s, %s, %s, %s" % (v(acc,16), v(vAp+4*p,4), v(vBp,4), v(acc,16)))
    vRW = 16; vRR, vPW, vPR, vXO, vSO = 19, 20, 21, 22, 23
    vFr, vPA = vBarA, vCr
    a("v_and_b32 v%d, 15, v0" % vT0)
    a("v_lshrrev_b32 v%d, 4, v0" % vT1)
    a("s_lshl2_add_u32 s%d, s%d, s%d" % (sT, sRb2, W))
    a("s_mul_i32 s%d, s%d, %d" % (sT2, sT, 16*1280))
    a("v_mul_u32_u24 v%d, 1280, v%d" % (vXO, vT0))
    a("v_lshl_add_u32 v%d, v%d, 4, v%d" % (vXO, vT1, vXO))
    a("s_mul_i32 s%d, s%d, 160" % (sM, sCb2))
    a("s_add_u32 s%d, s%d, s%d" % (sT2, sT2, sM))
    a("v_add_u32 v%d, s%d, v%d" % (vXO, sT2, vXO))
    a("v_lshlrev_b32 v%d, 12, v%d" % (vSO, vT0))
    a("v_lshl_add_u32 v%d, v%d, 3, v%d" % (vSO, vT1, vSO))
    a("s_mul_i32 s%d, s%d, %d" % (sT2, sCb2, 80*4096))
    a("s_lshl_b32 s%d, s%d, 5" % (sM, sT))
    a("s_add_u32 s%d, s%d, s%d" % (sT2, sT2, sM))
    a("v_add_u32 v%d, s%d, v%d" % (vSO, sT2, vSO))
    a("s_lshl_b32 s%d, s%d, 10" % (sT, W))
    a("v_add_u32 v%d, s%d, v%d" % (vFr, sT, vL16))
    vE = 112; vO = 144
    vFr2 = vCr
    a("v_add_u32 v%d, 65536, v%d" % (vFr2, vFr))
    early = [r for r in range(208, 256, 4)] + [r for r in range(168, 208, 4)] + [r for r in range(104, 144, 4)]
    latef = [r for r in range(144, 168, 4)]
    free = early
    loc = {}
    def pull(name):
        out = []
        for j, row in enumerate(plan.rowsof[name]):
            r = free.pop(0); loc[(name, j)] = r
            base, off = (vFr, row*4096) if row < 16 else (vFr2, (row-16)*4096)
            out.append((name, "ds_read_b128 %s, v%d offset:%d" % (v(r,4), base, off)))
        return out
    def pull_now(nm):
        ready(nm)
        for tag, ins in pull(nm): a.lds(ins, tag)
        release(nm)
    NEP = getattr(a, "NEP", 4)
    for c in range(6):
        A = vAcc + 8*c; E = vE + 16*(c & 1); O = vO + 4*c
        for k in range(4): a("v_pk_mul_f32 %s, %s, %s op_sel_hi:[1,0]" % (v(E+2*k,2), v(A+2*k,2), v(vC1,2)))
        for k in range(8): a("v_exp_f32 v%d, v%d" % (E+k, E+k))
        for k in range(4): a("v_pk_add_f32 %s, %s, s[%d:%d]" % (v(E+8+2*k,2), v(E+2*k,2), sK+2, sK+3))
        for k in range(4): a("v_pk_fma_f32 %s, %s, %s, s[%d:%d]" % (v(E+2*k,2), v(E+2*k,2), v(E+8+2*k,2), sK+2, sK+3))
        for k in range(8): a("v_rcp_f32 v%d, v%d" % (E+k, E+k))
        for k in range(4): a("v_pk_fma_f32 %s, %s, %s, %s op_sel_hi:[1,0,0]" % (v(E+2*k,2), v(E+2*k,2), v(vC2,2), v(vC3,2)))
        for k in range(4): a("v_pk_mul_f32 %s, %s, %s" % (v(E+2*k,2), v(E+2*k,2), v(A+2*k,2)))
        for k in range(4): a("v_cvt_pk_bf16_f32 v%d, v%d, v%d" % (O+k, E+2*k, E+2*k+1))
        a.vmem("buffer_store_dwordx4 %s, v%d, s[%d:%d], s%d offen offset:%d sc1" % (v(O,4), vSt, sAct, sAct+3, sAo, c*512), "st")
    bar_arrive(3)
    a.stamp(3)
    for i in range(1, 4):
        a("s_add_u32 s%d, s%d, %d" % (sT, W, i))
        a("s_and_b32 s%d, s%d, 3" % (sT, sT))
        a("s_mul_i32 s%d, s%d, 15360" % (sT, sT))
        a("s_add_u32 s%d, s%d, %d" % (sT, sT, (i-1)*5120))
        a("v_add_u32 v%d, s%d, v%d" % (vRW+i-1, sT, vL16))
    a("s_mul_i32 s%d, s%d, 15360" % (sT, W))
    a("v_add_u32 v%d, s%d, v%d" % (vRR, sT, vL16))
    a("s_mul_i32 s%d, s%d, %d" % (sT, W, G2_PW))
    a("s_add_u32 s%d, s%d, %d" % (sT, sT, G2_P))
    a("v_mul_u32_u24 v%d, %d, v%d" % (vPW, G2_PRS, vT0))
    a("v_lshl_add_u32 v%d, v%d, 3, v%d" % (vPW, vT1, vPW))
    a("v_add_u32 v%d, s%d, v%d" % (vPW, sT, vPW))
    a("v_lshrrev_b32 v%d, 2, v%d" % (vT0, vT0))
    a("v_lshl_add_u32 v%d, v%d, 3, v%d" % (vT0, vT1, vT0))
    a("v_mul_u32_u24 v%d, %d, v%d" % (vPR, G2_PRS, vT0))
    a("v_and_b32 v%d, 3, v0" % vT0)
    a("v_lshl_add_u32 v%d, v%d, 3, v%d" % (vPR, vT0, vPR))
    a("v_add_u32 v%d, s%d, v%d" % (vPR, sT, vPR))
    vPA = vT2
    a("v_min_u32 v%d, %d, v%d" % (vPA, 39*16, vL16))
    a("v_mov_b32 v%d, v%d" % (vT1, vFr2))
    vFr2 = vT1
    vAcc2 = 24
    vZero2 = vPoll + 3
    k_rotation2(a, sK2, sT2, sRb2, sCb2)
    a("s_mul_i32 s%d, s%d, %d" % (sT2, W, 12*1024))
    for i in range(4):
        a("s_add_u32 s%d, s%d, %d" % (sT, W, i))
        a("s_and_b32 s%d, s%d, 3" % (sT, sT))
        a("s_lshl2_add_u32 s%d, s%d, s%d" % (sT, sRb2, sT))
        a("s_mul_i32 s%d, s%d, %d" % (sT, sT, 48*1024))
        a("s_add_u32 s%d, s%d, s%d" % (sA+i, sT, sT2))
    a("s_mul_i32 s%d, s%d, %d" % (sT, sCb2, 5*48*1024))
    a("s_add_u32 s%d, s%d, s%d" % (sB, sT, sT2))
    for n in range(1, 5): a("s_add_u32 s%d, s%d, %d" % (sB+n, sB, n*48*1024))
    vKo = [vT0, vZero2]
    def koff(s_, reg):
        a("s_add_u32 s%d, s%d, %d" % (sK3, sK2, s_*1024))
        a("s_sub_u32 s%d, s%d, %d" % (sK3+1, sK3, 12*1024))
        a("s_cmp_ge_u32 s%d, %d" % (sK3, 12*1024))
        a("s_cselect_b32 s%d, s%d, s%d" % (sK3, sK3+1, sK3))
        a("v_add_u32 v%d, s%d, v%d" % (reg, sK3, vL16))
    pull_now("B0")
    a.wait(vm="all")
    sy.signal("s%d" % sFa, 0)
    a.stamp(4)
    free += latef
    for s_ in plan.regB:
        koff(s_, vKo[0])
        for n in range(5):
            r = free.pop(0); loc[("B%d" % s_, n)] = r
            a.vmem("buffer_load_dwordx4 %s, v%d, s[%d:%d], s%d offen sc1" % (v(r,4), vKo[0], sW2F, sW2F+3, sB+n), "B%d" % s_)
    ready("ACT")
    a.stamp(5)
    G = [(s_, i) for s_ in range(12) for i in range(4)]
    def issue_a():
        s_, i = G.pop(0)
        if i == 0: koff(s_, vKo[0])
        r = free.pop(0); loc[("A%d" % s_, i)] = r
        a.vmem("buffer_load_dwordx4 %s, v%d, s[%d:%d], s%d offen sc1" % (v(r,4), vKo[0], sAct, sAct+3, sA+i), "A%d" % s_)
    while G and len(free) > 5: issue_a()
    vX = None
    def peek2():
        nonlocal vPk
        vPk = vZero2
        peek()
    for s_ in range(12):
        side = []
        nb = s_ + 1 < 12 and (s_+1) in plan.ringB
        pl = pull("B%d" % (s_+1)) if nb else []
        keep = 5 if (s_ + 2 < 12 and (s_+2) in plan.ringB and s_ == 0 and False) else 0
        na = min(len(G), len(free) - keep)
        if nb: side.append(peek2)
        side += [issue_a]*min(na, 3); na -= min(na, 3)
        if nb:
            side.append(lambda: ready("B%d" % (s_+1)))
            side += pl
            side.append(lambda: release("B%d" % (s_+1)))
        side += [issue_a]*na
        if s_ == 9:
            vX = [free.pop(-1) for _ in range(3)]
            for k in range(3):
                side.append(lambda k=k: a.vmem("buffer_load_dwordx4 %s, v%d, s[%d:%d], 0 offen offset:%d" % (v(vX[k],4), vXO, sXs, sXs+3, 64*k), "x"))
        if s_ == 10: side.append(lambda: sy.poll_issue(vPA, "s%d" % sFs, 0, "ps"))
        if s_ == 11:
            side.append(lambda: bar_arrive(4))
            vS = [free.pop(0) for _ in range(3)]
            def sload():
                sy.poll_check(vPA, "s%d" % sFs, 0, "ps", sleep=getattr(a, "KSLEEP", 1))
                for n in range(5):
                    a("s_mov_b32 s%d, %d" % (sT, n*16*4096))
                    a.vmem("buffer_load_dwordx2 %s, v%d, s[%d:%d], s%d offen sc1" % (v(vS[n//2] + 2*(n%2),2), vSO, sST, sST+3, sT), "s")
        a.wait(lg="B%d" % s_, vm=["A%d" % s_, "B%d" % s_])
        if getattr(a, "P2ST", False) and s_ in (0, 2, 4, 6, 8, 10): a.stamp(10 + s_//2)
        order = [1, 2, 3, 0] if s_ == 11 else [0, 1, 2, 3]
        for i in order:
            for n in range(5):
                acc = vAcc2 + (i*5+n)*4
                a("v_mfma_f32_16x16x32_bf16 %s, %s, %s, %s" % (v(acc,4), v(loc[("A%d" % s_,i)],4), v(loc[("B%d" % s_,n)],4), "0" if s_ == 0 else v(acc,4)))
                if side: emit(side.pop(0))
        assert not side
        for i in range(4): free.append(loc[("A%d" % s_, i)])
        for n in range(5): free.append(loc[("B%d" % s_, n)])
    assert not G
    a.stamp(6)
    sload()
    bar_wait(4)
    for i in range(1, 4):
        for n in range(5):
            a.lds("ds_write_b128 v%d, %s offset:%d" % (vRW+i-1, v(vAcc2+(i*5+n)*4,4), n*1024), "rw")
    bar_arrive(5)
    vXu = [free.pop(0) for _ in range(6)]
    for k in range(3):
        for j in range(4):
            u = vXu[2*k + j//2] + 2*(j % 2)
            a("v_lshlrev_b32 v%d, 16, v%d" % (u, vX[k]+j))
            a("v_and_b32 v%d, 0xffff0000, v%d" % (u+1, vX[k]+j))
    bar_wait(5)
    vR = [free.pop(0) for _ in range(15)]
    for n in range(5):
        for sl in range(3):
            a.lds("ds_read_b128 %s, v%d offset:%d" % (v(vR[n*3+sl],4), vRR, sl*5120 + n*1024), "rr%d" % n)
    vE = [vAcc2 + 20 + 4*i for i in range(8)]
    vU = [vAcc2 + 52 + 4*i for i in range(5)]
    a.wait(vm="s")
    for n in range(5):
        S = vS[n//2] + 2*(n%2); U = vU[n]
        a("v_lshlrev_b32 v%d, 16, v%d" % (U+0, S))
        a("v_and_b32 v%d, 0xffff0000, v%d" % (U+1, S))
        a("v_lshlrev_b32 v%d, 16, v%d" % (U+2, S+1))
        a("v_and_b32 v%d, 0xffff0000, v%d" % (U+3, S+1))
    for n in range(5):
        a.wait(lg="rr%d" % n)
        acc = vAcc2 + n*4; E = vE[n]; U = vU[n]
        for h in range(2):
            a("v_pk_add_f32 %s, %s, %s" % (v(vR[n*3]+2*h,2), v(vR[n*3]+2*h,2), v(vR[n*3+1]+2*h,2)))
            a("v_pk_add_f32 %s, %s, %s" % (v(acc+2*h,2), v(acc+2*h,2), v(vR[n*3+2]+2*h,2)))
        for h in range(2):
            a("v_pk_add_f32 %s, %s, %s" % (v(acc+2*h,2), v(acc+2*h,2), v(vR[n*3]+2*h,2)))
        for h in range(2):
            a("v_pk_mul_f32 %s, %s, s[%d:%d] neg_lo:[0,1] neg_hi:[0,1]" % (v(E+2*h,2), v(acc+2*h,2), sK, sK+1))
        for r in range(4): a("v_exp_f32 v%d, v%d" % (E+r, E+r))
        for h in range(2):
            a("v_pk_mul_f32 %s, %s, %s" % (v(acc+2*h,2), v(acc+2*h,2), v(U+2*h,2)))
        for r in range(4): a("v_add_f32 v%d, 1.0, v%d" % (E+r, E+r))
        for r in range(4): a("v_rcp_f32 v%d, v%d" % (E+r, E+r))
        a("s_nop 0")
        for h in range(2):
            a("v_pk_mul_f32 %s, %s, %s" % (v(acc+2*h,2), v(acc+2*h,2), v(E+2*h,2)))
        a("v_cvt_pk_bf16_f32 v%d, v%d, v%d" % (E, acc, acc+1))
        a("v_cvt_pk_bf16_f32 v%d, v%d, v%d" % (E+1, acc+2, acc+3))
        a.lds("ds_write_b64 v%d, %s offset:%d" % (vPW, v(E,2), n*16*G2_PRS), "pw")
    vPq = vE[5:8]
    for k in range(3):
        for q in range(2):
            a.lds("ds_read_b64_tr_b16 %s, v%d offset:%d" % (v(vPq[k]+2*q,2), vPR, (32*k + 4*q)*G2_PRS), "pr%d" % k)
    for k in range(3):
        a.wait(lg="pr%d" % k)
        Wp = (vR[2*k], vR[2*k+1])
        for j in range(4):
            a("v_lshlrev_b32 v%d, 16, v%d" % (Wp[j//2] + 2*(j%2), vPq[k]+j))
            a("v_and_b32 v%d, 0xffff0000, v%d" % (Wp[j//2] + 2*(j%2) + 1, vPq[k]+j))
        for j in range(4):
            u = vXu[2*k + j//2] + 2*(j % 2)
            a("v_pk_add_f32 %s, %s, %s" % (v(u,2), v(u,2), v(Wp[j//2] + 2*(j%2),2)))
        for j in range(4):
            u = vXu[2*k + j//2] + 2*(j % 2)
            a("v_cvt_pk_bf16_f32 v%d, v%d, v%d" % (vX[k]+j, u, u+1))
        if k == 2: a("s_mov_b32 exec_hi, 0")
        a.vmem("buffer_store_dwordx4 %s, v%d, s[%d:%d], 0 offen offset:%d %s" % (v(vX[k],4), vXO, sOut, sOut+3, 64*k, getattr(a, "OUTSC", "")), "st")
    a.stamp(7)
    a.stamp_dump(16, S_WAVE, 24, (200 << 20))
    a("s_endpgm")
    for sp, ok, k in ool:
        a.label(sp)
        a("s_mov_b32 s%d, %d" % (sSy, k))
        a("s_call_b64 s[%d:%d], L_c_spin" % (sRet, sRet+1))
        a("s_branch %s" % ok)
    a.label("L_c_spin")
    a("s_mov_b32 s%d, 0" % (sSy+2))
    a.label("L_c_spin_loop")
    if a.PROF: a("s_add_u32 s88, s88, 1")
    a("ds_read_b32 v%d, v%d" % (vRv, vCtl))
    a("s_add_u32 s%d, s%d, 1" % (sSy+2, sSy+2))
    a("s_cmp_gt_u32 s%d, 0x%x" % (sSy+2, SPIN_MAX*16))
    a("s_waitcnt lgkmcnt(0)")
    a("v_readfirstlane_b32 s%d, v%d" % (sRdy, vRv))
    a("s_cbranch_scc1 L_c_spin_ret")
    a("s_cmp_lt_u32 s%d, s%d" % (sRdy, sSy))
    a("s_cbranch_scc1 L_c_spin_loop")
    a.label("L_c_spin_ret")
    a("s_setpc_b64 s[%d:%d]" % (sRet, sRet+1))
    a.vm = []; a.lg = []
```

```python
import sys
from asmlib import *
from common import *
from plan import Plan
from loader import emit_loader
from gemm4 import emit_compute
from kc4 import emit_kc
from lnt4 import emit_lnt
NAME = "recurrent_scan__ssm_conv_s4__dense_activation_mish__prompt_kernel"
HDR = open("recurrent_scan__ssm_conv_s4__dense_activation_mish__prompt.s.ref").read().split("; Override launch")[0]
def build(path, prof=False, nopoll=False, noaux=False, T=12, cprio=1, kprio=2, lprio=3, ldprio=0, rot=True, NB_REG=3, NX_OWN=10, norel=False, noch=False, ksleep=16, lsleep=6, **flags):
    a = Asm()
    a.PROF = prof; a.NOPOLL = nopoll; a.NOREL = norel; a.NOCH = noch; a.KSLEEP = ksleep; a.LSLEEP = lsleep
    for k_, v_ in flags.items(): setattr(a, k_, v_)
    plan = Plan(NB_REG, NX_OWN)
    a.raw(HDR.rstrip())
    a.raw("; @launch grid=(256,1,1) block=(512,1,1) lds=%d" % LDS_BYTES)
    a.raw('.amdgcn_target "amdgcn-amd-amdhsa--gfx950"')
    a.raw(".text")
    kernel_begin(a, NAME)
    a("s_cmp_ge_u32 s2, 256")
    a("s_cbranch_scc1 L_end")
    if prof:
        a("s_memrealtime s[94:95]"); a("s_waitcnt lgkmcnt(0)")
    if not getattr(a, "LATEARG", True):
        a("s_load_dwordx16 s[8:23], s[0:1], 0")
        a("s_load_dwordx16 s[24:39], s[0:1], 64")
    a("v_lshrrev_b32 v1, 6, v0")
    if getattr(a, "CODEPF", False):
        a("s_cmp_ge_u32 s2, 32")
        a("s_cbranch_scc1 L_nopf")
        a("s_getpc_b64 s[4:5]")
        a("v_lshlrev_b32 v2, 6, v0")
        a("global_load_dword v255, v2, s[4:5]")
        a.label("L_nopf")
    a("v_and_b32 v0, 63, v0")
    a("v_lshlrev_b32 v2, 2, v0")
    a("v_add_u32 v2, %d, v2" % L_CTL)
    a("v_readfirstlane_b32 s3, v1")
    a("v_mov_b32 v1, 0")
    a("ds_write_b32 v2, v1")
    a("s_waitcnt lgkmcnt(0)")
    if getattr(a, "LATEARG", True):
        a("s_load_dwordx16 s[8:23], s[0:1], 0")
        a("s_load_dwordx16 s[24:39], s[0:1], 64")
    a("s_barrier")
    a("s_cmp_lt_u32 s3, 4")
    a("s_cbranch_scc1 L_compute")
    a("s_cmp_eq_u32 s3, 4")
    a("s_cbranch_scc1 L_loader")
    if noaux: a("s_endpgm")
    a("s_setprio 3")
    a("s_sub_u32 s41, s3, 5")
    a("s_mul_i32 s40, s41, 20480")
    a("s_add_u32 s40, s40, %d" % L_AUX)
    a("s_lshl_b32 s42, s2, 1")
    a("s_add_u32 s42, s42, s41")
    a("s_cmp_lt_u32 s3, 7")
    a("s_cbranch_scc1 L_kc")
    a("s_add_u32 s42, s2, 512")
    a("s_cmp_lt_u32 s2, 128")
    a("s_cbranch_scc1 L_kc")
    a("s_sub_u32 s42, s2, 128")
    emit_lnt(a, 42, 40, lprio)
    a.label("L_kc")
    emit_kc(a, 42, 40, kprio, gate=not getattr(a, 'KNOGATE', False))
    a.label("L_loader")
    emit_loader(a, plan, T, ldprio, rot)
    a.label("L_compute")
    emit_compute(a, plan, cprio)
    a.label("L_end")
    a("s_endpgm")
    a.raw('.section .rodata,"a"')
    a.raw(".p2align 6")
    a.raw(kernel_desc(NAME, 256, 102))
    open(path, "w").write(a.text())
if __name__ == "__main__":
    build("s4.s")
    build("s4_prof.s", prof=True)
    build("s4_np.s", prof=True, nopoll=True, noaux=True)
    build("s4_v1.s", CODEPF=True)
    build("s4_v2.s", TOUCH=21)
    build("s4_v3.s", CODEPF=True, TOUCH=21, LDPRIO0=3, LDDROP=0)
```

```python
from asmlib import *
from common import *
from sync import Sync
from loader import tile_maps, k_rotation, k_rotation2, x_src_offsets

G2_P = 61440
G2_PW = 3328
G2_PRS = 40

def emit_compute(a, plan, prio=1):
    vT0, vT1, vT2 = 1, 2, 3
    vTag, vZero, vL16, vPoll = 4, 6, 7, 8
    vRelA, vRv, vCtl, vBarA = 12, 13, 14, 15
    vXr, vWr = 16, 20
    vSt, vSo, vCw, vCr = 24, 25, 26, 27
    vB1 = 28
    vC1, vC2, vC3 = 32, 34, 36
    vOne = 36
    vBar = vPoll
    vAcc = 40
    WB = [112, 124, 136]
    vXF = [148, 164]
    vCs4 = [88, 92, 96]
    vP, vAp, vBp = 180, 192, 204
    sRb, sCb, sRb2, sCb2, sT, sT2, sM, sAo, sRdy, sFa, sFs, sFw = 40, 41, 42, 43, 44, 45, 46, 47, 48, 49, 50, 51
    sSy = 52
    sRet = 100
    sK = 56
    sAct, sFl, sStt, sW2F, sOut, sST, sXs = 60, 64, 68, 72, 76, 4, 12
    sA, sB, sK2, sK3 = 16, 20, 25, 10
    W = S_WAVE
    sy = Sync(a, sFl, P_DBG, vTag, vPoll, sSy, vZero)
    a.c("================ role: compute (gemm1 + gemm2) ================")
    a.stamp(0)
    if a.PROF: a("s_mov_b32 s88, 0")
    a("v_lshlrev_b32 v%d, 2, v0" % vT0)
    a("v_add_u32 v%d, %d, v%d" % (vRelA, C_DUMMY, vT0))
    a("v_mov_b32 v%d, 0" % vZero)
    if prio: a("s_setprio %d" % prio)
    a("s_lshl_b32 s%d, s%d, 2" % (sT, W))
    a("s_add_u32 s%d, s%d, %d" % (sT, sT, C_REL))
    a("v_mov_b32 v%d, s%d" % (vT1, sT))
    a("v_cmp_eq_u32 vcc, 0, v0")
    a("v_mov_b32 v%d, %d" % (vCtl, L_CTL))
    a("s_mov_b32 s%d, 0" % sRdy)
    a("v_cndmask_b32 v%d, v%d, v%d, vcc" % (vRelA, vRelA, vT1))
    tile_maps(a, sRb, sCb, None, None, sT)
    vXd = 100
    sXb, sXk, sXm = 16, 17, 18
    x_src_offsets(a, vXd, vT0, vT1, vT2)
    k_rotation(a, sM, sT2, sRb, sCb)
    a("s_lshl2_add_u32 s%d, s%d, s%d" % (sT, sRb, W))
    a("s_waitcnt lgkmcnt(0)")
    a("s_mul_i32 s%d, s%d, 40960" % (sXb, sT))
    a("s_lshl_b32 s%d, s%d, 12" % (sXm, W))
    a("s_lshl_b32 s%d, s%d, 7" % (sXk, sM))
    a.srd(sXs, P_X, 2048*640*2)
    def xdma(st, i):
        if i == 0:
            a("s_add_u32 m0, s%d, %d" % (sXm, L_X + (st % 3)*16384))
            a("s_add_u32 s%d, s%d, s%d" % (sXb+3, sXb, sXk))
        a.vmem("buffer_load_dwordx4 v%d, s[%d:%d], s%d offen offset:%d lds" % (vXd+i, sXs, sXs+3, sXb+3, i*1024), "X%d" % st)
        if i == 0:
            a("s_add_u32 s%d, s%d, 128" % (sXk, sXk)); a("s_cmp_ge_u32 s%d, 1280" % sXk); a("s_cselect_b32 s%d, 0, s%d" % (sXk, sXk))
    for st in range(min(3, plan.NX_OWN)):
        for i in range(4): xdma(st, i)
    TS = getattr(a, "TOUCH", 0)
    if TS:
        a("v_lshlrev_b32 v%d, %d, v0" % (vT2, TS))
        a("s_lshl_b32 s%d, s%d, %d" % (sT, W, TS + 6))
        a("v_add_u32 v%d, s%d, v%d" % (vT2, sT, vT2))
        a("v_add_u32 v%d, %d, v%d" % (vT2, (1 << TS) - 128, vT2))
        a.srd(sOut, P_WS, 32 << 20)
        a.vmem("buffer_load_dword v%d, v%d, s[%d:%d], 0 offen sc1" % (vPoll+2, vT2, sOut, sOut+3), "touch")
        a.srd(sStt, P_OUT, 2048*640*2)
        a.vmem("buffer_load_dword v%d, v%d, s[%d:%d], 0 offen sc1" % (vPoll+3, vT2, sStt, sStt+3), "touch")
    if getattr(a, "NOREL", False): a("s_endpgm")
    ool = []
    st_ = {"peeked": False}
    vPk = 31
    def peek():
        st_["peeked"] = True
        a.lds("ds_read_b32 v%d, v%d" % (vPk, vCtl), "peek")
    def ready(name):
        if name not in plan.rdy:
            a.wait(vm=name); return
        k = plan.rdy[name]
        ok = a.newlabel("L_rok"); sp = a.newlabel("L_rspin")
        if "peek" in a.lg or st_["peeked"]:
            a.wait(lg="peek")
            a("v_readfirstlane_b32 s%d, v%d" % (sRdy, vPk))
            st_["peeked"] = False
        a("s_cmp_ge_u32 s%d, %d" % (sRdy, k))
        a("s_cbranch_scc0 %s" % sp)
        a.label(ok)
        ool.append((sp, ok, k))
    def release(name):
        a("v_mov_b32 v%d, %d" % (vRv, plan.rel[name]))
        a.lds("ds_write_b32 v%d, v%d" % (vRelA, vRv), "rel")
    def bar_arrive(ep):
        a("v_mov_b32 v%d, %d" % (vRv, ep))
        a.lds("ds_write_b32 v%d, v%d offset:16" % (vRelA, vRv), "rel")
    def bar_wait(ep, off=32):
        sp = a.newlabel("L_bspin"); ok = a.newlabel("L_bok")
        a("s_mov_b32 s%d, 0" % (sSy+2))
        a.label(sp)
        a("ds_read_b128 %s, v%d offset:%d" % (v(vBar,4), vCtl, off))
        a("s_add_u32 s%d, s%d, 1" % (sSy+2, sSy+2))
        a("s_cmp_gt_u32 s%d, 0x%x" % (sSy+2, SPIN_MAX*16))
        a("s_waitcnt lgkmcnt(0)")
        a("v_min3_u32 v%d, v%d, v%d, v%d" % (vBar, vBar, vBar+1, vBar+2))
        a("v_min_u32 v%d, v%d, v%d" % (vBar, vBar, vBar+3))
        a("s_cbranch_scc1 %s" % ok)
        a("v_cmp_gt_u32 vcc, %d, v%d" % (ep, vBar))
        a("s_cbranch_vccnz %s" % sp)
        a.label(ok)
        a.lg = []
    tile_maps(a, None, None, sRb2, sCb2, sT)
    a("v_lshlrev_b32 v%d, 4, v0" % vL16)
    a("v_and_b32 v%d, 31, v0" % vT0)
    a("v_lshrrev_b32 v%d, 5, v0" % vT1)
    a("v_lshlrev_b32 v%d, 1, v%d" % (vT2, vT0))
    a("s_mul_i32 s%d, s%d, 192" % (sT, sCb))
    a("v_add_u32 v%d, s%d, v%d" % (vT2, sT, vT2))
    for p in range(3): a.vmem("global_load_ushort v%d, v%d, s[%d:%d] offset:%d" % (vB1+p, vT2, P_B1, P_B1+1, 64*p), "b1")
    a("s_lshl_b32 s%d, s%d, 12" % (sT, W))
    a("s_add_u32 s%d, s%d, %d" % (sT, sT, L_X))
    a("v_bfe_u32 v%d, v0, 1, 3" % vT2)
    a("v_xor_b32 v%d, v%d, v%d" % (vT2, vT2, vT1))
    a("v_lshlrev_b32 v%d, 4, v%d" % (vT2, vT2))
    a("v_lshl_add_u32 v%d, v%d, 7, v%d" % (vT2, vT0, vT2))
    a("v_add_u32 v%d, s%d, v%d" % (vT2, sT, vT2))
    for jl in range(4):
        a("s_add_u32 s%d, s%d, %d" % (sT2, W, jl))
        a("s_and_b32 s%d, s%d, 3" % (sT2, sT2))
        a("s_lshl_b32 s%d, s%d, 5" % (sT2, sT2))
        a("v_xor_b32 v%d, s%d, v%d" % (vXr+jl, sT2, vT2))
    a("v_bfe_u32 v%d, v0, 2, 2" % vT2)
    a("v_lshl_add_u32 v%d, v%d, 3, v%d" % (vT2, vT1, vT2))
    a("v_mul_u32_u24 v%d, 192, v%d" % (vT2, vT2))
    a("v_bfe_u32 v%d, v0, 4, 1" % vSt)
    a("v_lshl_add_u32 v%d, v%d, 5, v%d" % (vT2, vSt, vT2))
    a("v_and_b32 v%d, 3, v0" % vSo)
    a("v_lshl_add_u32 v%d, v%d, 3, v%d" % (vT2, vSo, vT2))
    for jl in range(4):
        a("s_add_u32 s%d, s%d, %d" % (sT2, W, jl))
        a("s_and_b32 s%d, s%d, 3" % (sT2, sT2))
        a("s_mul_i32 s%d, s%d, %d" % (sT2, sT2, 16*192))
        a("v_add_u32 v%d, s%d, v%d" % (vWr+jl, sT2, vT2))
    for r in (vOne, vOne+1): a("v_mov_b32 v%d, 0x%x" % (r, ONES_BF))
    a("v_lshlrev_b32 v%d, 4, v%d" % (vCw, vT1))
    a("v_lshl_add_u32 v%d, v%d, 2, v%d" % (vCw, vSt, vCw))
    a("v_bfe_u32 v%d, v0, 2, 2" % vT2)
    a("v_add_u32 v%d, v%d, v%d" % (vCw, vCw, vT2))
    a("v_lshlrev_b32 v%d, 8, v%d" % (vCw, vCw))
    a("v_lshl_add_u32 v%d, v%d, 3, v%d" % (vCw, vSo, vCw))
    a("s_lshl_b32 s%d, s%d, 6" % (sT, W))
    a("v_add_u32 v%d, s%d, v%d" % (vCw, sT, vCw))
    a("s_mul_i32 s%d, s%d, 13108" % (sT, S_WG))
    a("s_lshr_b32 s%d, s%d, 16" % (sT, sT))
    a("s_mul_i32 s%d, s%d, 5" % (sT2, sT))
    a("s_sub_u32 s%d, s%d, s%d" % (sT2, S_WG, sT2))
    a("s_cmp_ge_u32 s%d, 240" % S_WG)
    a("s_cselect_b32 s%d, 5, s%d" % (sT2, sT2))
    a("s_cselect_b32 s%d, 0, s%d" % (sT, sT))
    a("s_lshl2_add_u32 s%d, s%d, s%d" % (sM, sT2, W))
    a("s_mul_i32 s%d, s%d, %d" % (sM, sM, 2*48*1024))
    a("s_lshl_b32 s%d, s%d, 10" % (sAo, sT))
    a("s_add_u32 s%d, s%d, s%d" % (sM, sM, sAo))
    a("s_mul_i32 s%d, s%d, 48" % (sFw, sT2))
    a("s_add_u32 s%d, s%d, s%d" % (sFw, sFw, sT))
    a("s_lshl2_add_u32 s%d, s%d, s%d" % (sFw, sFw, W))
    a("s_lshl_b32 s%d, s%d, 3" % (sFw, sFw))
    a("s_add_u32 s%d, s%d, %d" % (sFw, sFw, FL_W2F))
    a.srd_off(sW2F, P_WS, WS_W2F, W2F_BYTES)
    a.srd_off(sFl, P_WS, WS_FLAGS, FLAGS_BYTES)
    a.srd_off(sAct, P_WS, WS_ACT, ACT_BYTES)
    a.srd_off(sStt, P_WS, WS_STATS, STATS_BYTES)
    a.srd_off(sST, P_WS, WS_ST, ST_BYTES)
    a("v_mul_u32_u24 v%d, %d, v%d" % (vSt, 48*64, vSt))
    a("v_and_b32 v%d, 15, v0" % vT2)
    a("v_add_u32 v%d, v%d, v%d" % (vSt, vSt, vT2))
    a("v_lshl_add_u32 v%d, v%d, 4, v%d" % (vSt, vT1, vSt))
    a("v_lshlrev_b32 v%d, 4, v%d" % (vSt, vSt))
    a("s_lshl2_add_u32 s%d, s%d, s%d" % (sT2, sRb, W))
    a("s_lshl_b32 s%d, s%d, 9" % (sT, sT2))
    a("v_lshlrev_b32 v%d, 4, v%d" % (vSo, vT0))
    a("v_add_u32 v%d, s%d, v%d" % (vSo, sT, vSo))
    a("s_lshr_b32 s%d, s%d, 1" % (sT, sT2))
    a("s_lshl_b32 s%d, s%d, 5" % (sFa, sT))
    a("s_and_b32 s%d, s%d, 1" % (sT, sT2))
    a("s_add_u32 s%d, s%d, s%d" % (sFa, sFa, sT))
    a("s_lshl_b32 s%d, s%d, 1" % (sT, sCb))
    a("s_add_u32 s%d, s%d, s%d" % (sFa, sFa, sT))
    a("s_lshl_b32 s%d, s%d, 3" % (sFa, sFa))
    a("s_add_u32 s%d, s%d, %d" % (sFa, sFa, FL_ACT))
    a("s_mul_i32 s%d, s%d, 96" % (sT2, sT2))
    a("s_mul_i32 s%d, s%d, 3" % (sAo, sCb))
    a("s_add_u32 s%d, s%d, s%d" % (sAo, sAo, sT2))
    a("s_lshl_b32 s%d, s%d, 10" % (sAo, sAo))
    a("s_mul_i32 s%d, s%d, 640" % (sFs, sCb2))
    a("s_add_u32 s%d, s%d, %d" % (sFs, sFs, FL_S))
    a("s_mov_b32 s%d, %s" % (sK, fhex(LOG2E))); a("s_mov_b32 s%d, %s" % (sK+1, fhex(LOG2E)))
    a("s_mov_b32 s%d, 2.0" % (sK+2)); a("s_mov_b32 s%d, 2.0" % (sK+3))
    for i in range(16): a("v_mov_b32 v%d, 0" % (vAp+i))
    a("v_lshlrev_b32 v%d, 2, v%d" % (vCr, vT0))
    a("v_add_u32 v%d, %d, v%d" % (vCr, C_CS, vCr))
    vXt, vXs_ = 216, 220
    vIt = [224, 240]
    sXt, sFx = 55, 26
    a("v_bfe_u32 v%d, v0, 1, 1" % vXt)
    a("s_lshl_b32 s%d, s%d, 1" % (sT, W))
    a("v_add_u32 v%d, s%d, v%d" % (vXt, sT, vXt))
    a("v_bfe_u32 v%d, v0, 3, 1" % vT2)
    a("v_xor_b32 v%d, v%d, v%d" % (vXt, vXt, vT2))
    a("v_lshlrev_b32 v%d, 4, v%d" % (vXt, vXt))
    a("v_and_b32 v%d, 1, v0" % vT2)
    a("v_lshl_add_u32 v%d, v%d, 3, v%d" % (vXt, vT2, vXt))
    a("v_bfe_u32 v%d, v0, 2, 2" % vT2)
    a("v_lshl_add_u32 v%d, v%d, 7, v%d" % (vXt, vT2, vXt))
    a("v_lshlrev_b32 v%d, 14, v%d" % (vXs_, vT2))
    a("v_lshrrev_b32 v%d, 4, v0" % vT2)
    a("v_lshl_add_u32 v%d, v%d, 12, v%d" % (vXt, vT2, vXt))
    a("v_add_u32 v%d, %d, v%d" % (vXt, L_X, vXt))
    for k in range(1, 4): a("v_xor_b32 v%d, %d, v%d" % (vXt+k, 32*k, vXt))
    a("v_lshl_add_u32 v%d, v%d, 6, v%d" % (vXs_, vT2, vXs_))
    a("v_and_b32 v%d, 3, v0" % vT2)
    a("v_lshl_add_u32 v%d, v%d, 4, v%d" % (vXs_, vT2, vXs_))
    k_rotation(a, sT, sT2, sRb, sCb)
    a("s_cmp_ge_u32 s%d, 10" % sCb)
    a("s_cselect_b32 s%d, 10, s%d" % (sT, sT))
    a("s_lshl2_add_u32 s%d, s%d, s%d" % (sT, sT, W))
    a("s_lshl_b32 s%d, s%d, 16" % (sXt, sT))
    a("s_lshl_b32 s%d, s%d, 8" % (sT2, sRb))
    a("s_add_u32 s%d, s%d, s%d" % (sXt, sXt, sT2))
    a("s_lshl4_add_u32 s%d, s%d, s%d" % (sFx, sT, sRb))
    a("s_lshl_b32 s%d, s%d, 3" % (sFx, sFx))
    a("s_add_u32 s%d, s%d, %d" % (sFx, sFx, FL_XT))
    vCh = 208
    def xreads(st):
        return [("xf%d_%d" % (st, jl), "ds_read_b128 %s, v%d offset:%d" % (v(vXF[st & 1]+4*jl,4), vXr+jl, (st % 3)*16384)) for jl in range(4)]
    def wreads(g_):
        st, jl = g_ // 4, g_ % 4
        buf = WB[g_ % 3]
        return [("wf%d" % g_, "ds_read_b64_tr_b16 %s, v%d offset:%d" % (v(buf+4*p+2*q,2), vWr+jl, L_W + (st % 4)*12288 + q*4*192 + p*64)) for p in range(3) for q in range(2)]
    def w2st(k):
        a.vmem("buffer_store_dwordx4 %s, v%d, s[%d:%d], s%d offen sc1" % (v(vCh+4*k,4), vL16, sW2F, sW2F+3, sM), "chw")
        if k == 0: a("s_add_u32 s%d, s%d, %d" % (sM, sM, 48*1024))
    def xtst(j):
        a.vmem("buffer_store_dwordx4 %s, v%d, s[%d:%d], s%d offen sc1" % (v(vIt[0]+4*j,4), vXs_, sOut, sOut+3, sXt), "chs")
        if j < 3: a("s_add_u32 s%d, s%d, 4096" % (sXt, sXt))
    SW, SX, SG = getattr(a, "CH_W", 0), getattr(a, "CH_X", 2), getattr(a, "CH_LAG", 3)
    a.srd_off(sOut, P_WS, WS_XN, XN_BYTES)
    ready("X0")
    bar_arrive(1)
    a.stamp(10)
    for tag, ins in xreads(0): a.lds(ins, tag)
    ready("W0")
    a.stamp(11)
    bar_wait(1)
    for tag, ins in wreads(0) + wreads(1): a.lds(ins, tag)
    for p in range(4):
        for q in range(2):
            a.lds("ds_read_b64_tr_b16 %s, v%d offset:%d" % (v(vIt[0]+4*p+2*q,2), vXt + 2*(p & 1) + q, (8*p + 4*q)*128), "xt")
    release("X0")
    dpp = []
    for stage_, (masks, perm, x_) in enumerate((((0x55555555, 0xaaaaaaaa), "[1,0,3,2]", 1), ((0x33333333, 0xcccccccc), "[2,3,0,1]", 2))):
        src, dst = vIt[stage_], vIt[1-stage_]
        for mi, m in enumerate(masks):
            for j in range(4):
                if ((j & x_) != 0) != (mi == 1): continue
                dpp.append(["s_mov_b32 vcc_lo, 0x%x" % m, "s_mov_b32 vcc_hi, 0x%x" % m] +
                           ["v_cndmask_b32_dpp v%d, v%d, v%d, vcc quad_perm:%s row_mask:0xf bank_mask:0xf" % (dst+4*j+r, src+4*(j ^ x_)+r, src+4*j+r, perm) for r in range(4)])
    ready("C")
    a.stamp(1)
    for k in range(2):
        for q in range(2):
            a.lds("ds_read_b64_tr_b16 %s, v%d offset:%d" % (v(vCh+4*k+2*q,2), vCw, L_W + 3*12288 + q*8*256 + k*32), "ch")
    release("C")
    a("s_mul_i32 s%d, s%d, 384" % (sT2, W))
    a("v_add_u32 v%d, s%d, v%d" % (vCw, sT2, vCr))
    def emit(t):
        if callable(t): t()
        elif isinstance(t, tuple): a.lds(t[1], t[0])
        else: a(t)
    def step(g_, gaps):
        st, jl = g_ // 4, g_ % 4
        buf = WB[g_ % 3]
        xf = vXF[st & 1] + 4*jl
        a.wait(lg=["wf%d" % g_, "xf%d_%d" % (st, jl)])
        rd = wreads(g_ + 2) if g_ + 2 < 40 else []
        for p in range(3):
            acc = vAcc + 16*p
            HK = getattr(a, "HACK", 0)
            if HK == 3:
                for hh in range(2): a("v_mfma_f32_16x16x32_bf16 %s, %s, %s, %s" % (v(acc+4*hh+8*(jl&1),4), v(buf+4*p,4), v(xf,4), "0" if g_ < 2 else v(acc+4*hh+8*(jl&1),4)))
            elif HK != 1: a("v_mfma_f32_32x32x16_bf16 %s, %s, %s, %s" % (v(acc,16), v(buf+4*p,4), v(xf,4), "0" if g_ == 0 else v(acc,16)))
            for tag, ins in rd[2*p:2*p+2]: a.lds(ins, tag)
            if HK == 0 and ((jl >= 2) if st < 9 else (jl < 2)):
                a("v_mfma_f32_4x4x4_16b_bf16 %s, %s, %s, %s" % (v(vCs4[p],4), v(vOne,2), v(buf+4*p+2*(jl & 1),2), "0" if g_ == 2 else v(vCs4[p],4)))
            for t in gaps[p]: emit(t)
    statld = "buffer_load_dwordx4 %s, v%d, s[%d:%d], 0 offen sc1" % (v(vPoll,4), vSo, sStt, sStt+3)
    for st in range(10):
        gp = [[] for _ in range(12)]
        if st < 9:
            xr = xreads(st+1)
            gp[1] += [lambda: ready("X%d" % (st+1)), xr[0]]
            if plan.rdy["W%d" % (st+1)] > plan.rdy.get("X%d" % (st+1), 0): gp[3] += [peek]
            if st < 8 and ("X%d" % (st+2)) in plan.rdy: gp[10] += [peek]
            gp[2] += [xr[1]]; gp[3] += [xr[2]]; gp[4] += [xr[3]]
            if plan.NX_OWN < 10 or st + 1 >= 7: gp[4] += [lambda: release("X%d" % (st+1))]
        gp[5] += [lambda: release("W%d" % st)]
        if st < 2:
            for gi in (6, 8, 9, 11): gp[gi] += dpp.pop(0)
        if st < 9 and plan.rdy["W%d" % (st+1)] > plan.rdy.get("X%d" % (st+1), 0): gp[5] += [lambda: ready("W%d" % (st+1))]
        if plan.NX_OWN == 10:
            if st == 0:
                gp[2].append(lambda: bar_wait(1, 16))
                for i in range(4): gp[(2, 3, 5, 6)[i]].append(lambda i=i: xdma(3, i))
            if st + 4 < 10:
                gp[7].append(lambda: a.wait(lg="xf%d_3" % (st+1)))
                for i in range(4): gp[(7, 8, 10, 11)[i]].append(lambda i=i: xdma(st+4, i))
        if st == SW:
            gp[6].append(lambda: w2st(0)); gp[9].append(lambda: w2st(1))
        if st == SX:
            for j in range(4): gp[(0, 7, 8, 11)[j]].append(lambda j=j: xtst(j))
        if st == 1: gp[7].append(sy.tag_load)
        if st == max(SW, 0) + SG:
            def sigw():
                sy.tag_check()
                a.wait(vm="chw")
                sy.signal("s%d" % sFw, 0)
            gp[0].insert(0, sigw)
        if st == min(max(SX, 0) + SG, 9):
            def sigx():
                a.wait(vm="chs")
                sy.signal("s%d" % sFx, 0)
                a.srd(sOut, P_OUT, 2048*640*2)
            gp[1 if st < 9 else 11].insert(0, sigx)
        if st == 7: gp[8].append(lambda: a.vmem(statld, "stat"))
        if st == 9:
            def statprep():
                sy.granule_check(statld, "stat", vPoll+2)
                a("v_mov_b32 v%d, v%d" % (vBp, vPoll))
                a("v_mov_b32 v%d, v%d" % (vBp+1, vPoll+1))
            gp[1].append(statprep)
            gp[6] += ["s_nop 1", "v_and_b32 v%d, 0xffff0000, v%d" % (vC3, vBp+1), "v_rcp_f32 v%d, v%d" % (vC3, vC3)]
            gp[7] += ["v_permlane32_swap_b32 v%d, v%d" % (vCs4[p], vCs4[p]+1) for p in range(3)]
            gp[7] += ["v_add_f32 v%d, v%d, v%d" % (vCs4[p], vCs4[p], vCs4[p]+1) for p in range(3)]
            gp[7] += [("cw", "ds_write_b32 v%d, v%d offset:%d" % (vCw, vCs4[p], p*128)) for p in range(3)]
            gp[7] += [lambda: bar_arrive(2)]
            gp[9] += [lambda: bar_wait(2)]
            gp[9] += [("cr", "ds_read_b32 v%d, v%d offset:%d" % (vP+w*3+p, vCr, w*384 + p*128)) for w in range(4) for p in range(3)]
        if st in (0, 4): a.stamp({0: 12, 4: 13}[st])
        if st == 4: a.cstamp(14)
        for j in range(4): step(4*st+j, gp[3*j:3*j+3])
    a.stamp(2); a.cstamp(15)
    if a.PROF: a("s_mov_b32 s89, s88")
    a("v_mul_f32 v%d, %s, v%d" % (vC1, fhex(LOG2E), vC3))
    a("v_mul_f32 v%d, -2.0, v%d" % (vC2, vC3))
    a("s_mov_b32 exec_hi, 0")
    for p in range(3): a("v_mov_b32 v%d, v%d" % (vAp+4*p+1, vB1+p))
    a.wait(lg="cr")
    for p in range(3):
        a("v_add_f32 v%d, v%d, v%d" % (vP+p, vP+p, vP+3+p))
        a("v_add_f32 v%d, v%d, v%d" % (vP+6+p, vP+6+p, vP+9+p))
    for p in range(3): a("v_add_f32 v%d, v%d, v%d" % (vP+p, vP+p, vP+6+p))
    for p in range(3): a("v_cvt_pk_bf16_f32 v%d, v%d, v%d" % (vP+3+p, vP+p, vP+p))
    for p in range(3): a("v_and_b32 v%d, 0xffff0000, v%d" % (vP+3+p, vP+3+p))
    for p in range(3): a("v_sub_f32 v%d, v%d, v%d" % (vP+3+p, vP+p, vP+3+p))
    for p in range(3): a("v_cvt_pk_bf16_f32 v%d, v%d, v%d" % (vAp+4*p, vP+p, vP+3+p))
    a("s_mov_b32 exec_hi, -1")
    a("s_nop 0")
    for p in range(3):
        acc = vAcc + 16*p
        a("v_mfma_f32_32x32x16_bf16 %s, %s, %s, %s" % (v(acc,16), v(vAp+4*p,4), v(vBp,4), v(acc,16)))
    vRW = 16; vRR, vPW, vPR, vXO, vSO = 19, 20, 21, 22, 23
    vFr, vPA = vBarA, vCr
    a("v_and_b32 v%d, 15, v0" % vT0)
    a("v_lshrrev_b32 v%d, 4, v0" % vT1)
    a("s_lshl2_add_u32 s%d, s%d, s%d" % (sT, sRb2, W))
    a("s_mul_i32 s%d, s%d, %d" % (sT2, sT, 16*1280))
    a("v_mul_u32_u24 v%d, 1280, v%d" % (vXO, vT0))
    a("v_lshl_add_u32 v%d, v%d, 4, v%d" % (vXO, vT1, vXO))
    a("s_mul_i32 s%d, s%d, 160" % (sM, sCb2))
    a("s_add_u32 s%d, s%d, s%d" % (sT2, sT2, sM))
    a("v_add_u32 v%d, s%d, v%d" % (vXO, sT2, vXO))
    a("v_lshlrev_b32 v%d, 12, v%d" % (vSO, vT0))
    a("v_lshl_add_u32 v%d, v%d, 3, v%d" % (vSO, vT1, vSO))
    a("s_mul_i32 s%d, s%d, %d" % (sT2, sCb2, 80*4096))
    a("s_lshl_b32 s%d, s%d, 5" % (sM, sT))
    a("s_add_u32 s%d, s%d, s%d" % (sT2, sT2, sM))
    a("v_add_u32 v%d, s%d, v%d" % (vSO, sT2, vSO))
    a("s_lshl_b32 s%d, s%d, 10" % (sT, W))
    a("v_add_u32 v%d, s%d, v%d" % (vFr, sT, vL16))
    vE = 112; vO = 144
    vFr2 = vCr
    a("v_add_u32 v%d, 65536, v%d" % (vFr2, vFr))
    early = [r for r in range(208, 256, 4)] + [r for r in range(168, 208, 4)] + [r for r in range(104, 144, 4)]
    latef = [r for r in range(144, 168, 4)]
    free = early
    loc = {}
    def pull(name):
        out = []
        for j, row in enumerate(plan.rowsof[name]):
            r = free.pop(0); loc[(name, j)] = r
            base, off = (vFr, row*4096) if row < 16 else (vFr2, (row-16)*4096)
            out.append((name, "ds_read_b128 %s, v%d offset:%d" % (v(r,4), base, off)))
        return out
    def pull_now(nm):
        ready(nm)
        for tag, ins in pull(nm): a.lds(ins, tag)
        release(nm)
    NEP = getattr(a, "NEP", 4)
    for c in range(6):
        A = vAcc + 8*c; E = vE + 16*(c & 1); O = vO + 4*c
        for k in range(4): a("v_pk_mul_f32 %s, %s, %s op_sel_hi:[1,0]" % (v(E+2*k,2), v(A+2*k,2), v(vC1,2)))
        for k in range(8): a("v_exp_f32 v%d, v%d" % (E+k, E+k))
        for k in range(4): a("v_pk_add_f32 %s, %s, s[%d:%d]" % (v(E+8+2*k,2), v(E+2*k,2), sK+2, sK+3))
        for k in range(4): a("v_pk_fma_f32 %s, %s, %s, s[%d:%d]" % (v(E+2*k,2), v(E+2*k,2), v(E+8+2*k,2), sK+2, sK+3))
        for k in range(8): a("v_rcp_f32 v%d, v%d" % (E+k, E+k))
        for k in range(4): a("v_pk_fma_f32 %s, %s, %s, %s op_sel_hi:[1,0,0]" % (v(E+2*k,2), v(E+2*k,2), v(vC2,2), v(vC3,2)))
        for k in range(4): a("v_pk_mul_f32 %s, %s, %s" % (v(E+2*k,2), v(E+2*k,2), v(A+2*k,2)))
        for k in range(4): a("v_cvt_pk_bf16_f32 v%d, v%d, v%d" % (O+k, E+2*k, E+2*k+1))
        a.vmem("buffer_store_dwordx4 %s, v%d, s[%d:%d], s%d offen offset:%d sc1" % (v(O,4), vSt, sAct, sAct+3, sAo, c*512), "st")
    bar_arrive(3)
    a.stamp(3)
    for i in range(1, 4):
        a("s_add_u32 s%d, s%d, %d" % (sT, W, i))
        a("s_and_b32 s%d, s%d, 3" % (sT, sT))
        a("s_mul_i32 s%d, s%d, 15360" % (sT, sT))
        a("s_add_u32 s%d, s%d, %d" % (sT, sT, (i-1)*5120))
        a("v_add_u32 v%d, s%d, v%d" % (vRW+i-1, sT, vL16))
    a("s_mul_i32 s%d, s%d, 15360" % (sT, W))
    a("v_add_u32 v%d, s%d, v%d" % (vRR, sT, vL16))
    a("s_mul_i32 s%d, s%d, %d" % (sT, W, G2_PW))
    a("s_add_u32 s%d, s%d, %d" % (sT, sT, G2_P))
    a("v_mul_u32_u24 v%d, %d, v%d" % (vPW, G2_PRS, vT0))
    a("v_lshl_add_u32 v%d, v%d, 3, v%d" % (vPW, vT1, vPW))
    a("v_add_u32 v%d, s%d, v%d" % (vPW, sT, vPW))
    a("v_lshrrev_b32 v%d, 2, v%d" % (vT0, vT0))
    a("v_lshl_add_u32 v%d, v%d, 3, v%d" % (vT0, vT1, vT0))
    a("v_mul_u32_u24 v%d, %d, v%d" % (vPR, G2_PRS, vT0))
    a("v_and_b32 v%d, 3, v0" % vT0)
    a("v_lshl_add_u32 v%d, v%d, 3, v%d" % (vPR, vT0, vPR))
    a("v_add_u32 v%d, s%d, v%d" % (vPR, sT, vPR))
    vPA = vT2
    a("v_min_u32 v%d, %d, v%d" % (vPA, 39*16, vL16))
    a("v_mov_b32 v%d, v%d" % (vT1, vFr2))
    vFr2 = vT1
    vAcc2 = 24
    vZero2 = vPoll + 3
    k_rotation2(a, sK2, sT2, sRb2, sCb2)
    a("s_mul_i32 s%d, s%d, %d" % (sT2, W, 12*1024))
    for i in range(4):
        a("s_add_u32 s%d, s%d, %d" % (sT, W, i))
        a("s_and_b32 s%d, s%d, 3" % (sT, sT))
        a("s_lshl2_add_u32 s%d, s%d, s%d" % (sT, sRb2, sT))
        a("s_mul_i32 s%d, s%d, %d" % (sT, sT, 48*1024))
        a("s_add_u32 s%d, s%d, s%d" % (sA+i, sT, sT2))
    a("s_mul_i32 s%d, s%d, %d" % (sT, sCb2, 5*48*1024))
    a("s_add_u32 s%d, s%d, s%d" % (sB, sT, sT2))
    for n in range(1, 5): a("s_add_u32 s%d, s%d, %d" % (sB+n, sB, n*48*1024))
    vKo = [vT0, vZero2]
    def koff(s_, reg):
        a("s_add_u32 s%d, s%d, %d" % (sK3, sK2, s_*1024))
        a("s_sub_u32 s%d, s%d, %d" % (sK3+1, sK3, 12*1024))
        a("s_cmp_ge_u32 s%d, %d" % (sK3, 12*1024))
        a("s_cselect_b32 s%d, s%d, s%d" % (sK3, sK3+1, sK3))
        a("v_add_u32 v%d, s%d, v%d" % (reg, sK3, vL16))
    a.wait(vm="all")
    sy.signal("s%d" % sFa, 0)
    a.stamp(4)
    pull_now("B0")
    free += latef
    if getattr(a, "BLATE", False): ready("ACT")
    for s_ in plan.regB:
        koff(s_, vKo[0])
        for n in range(5):
            r = free.pop(0); loc[("B%d" % s_, n)] = r
            a.vmem("buffer_load_dwordx4 %s, v%d, s[%d:%d], s%d offen sc1" % (v(r,4), vKo[0], sW2F, sW2F+3, sB+n), "B%d" % s_)
    ready("ACT")
    a.stamp(5)
    G = [(s_, i) for s_ in range(12) for i in range(4)]
    def issue_a():
        s_, i = G.pop(0)
        if i == 0: koff(s_, vKo[0])
        r = free.pop(0); loc[("A%d" % s_, i)] = r
        a.vmem("buffer_load_dwordx4 %s, v%d, s[%d:%d], s%d offen sc1" % (v(r,4), vKo[0], sAct, sAct+3, sA+i), "A%d" % s_)
    while G and len(free) > 5: issue_a()
    vX = None
    def peek2():
        nonlocal vPk
        vPk = vZero2
        peek()
    for s_ in range(12):
        side = []
        nb = s_ + 1 < 12 and (s_+1) in plan.ringB
        pl = pull("B%d" % (s_+1)) if nb else []
        keep = 5 if (s_ + 2 < 12 and (s_+2) in plan.ringB and s_ == 0 and False) else 0
        keep = {8: 1, 9: 3, 10: 3}.get(s_, 0)
        na = max(0, min(len(G), len(free) - keep))
        if nb: side.append(peek2)
        side += [issue_a]*min(na, 3); na -= min(na, 3)
        if nb:
            side.append(lambda: ready("B%d" % (s_+1)))
            side += pl
            side.append(lambda: release("B%d" % (s_+1)))
        side += [issue_a]*na
        if s_ == 9:
            vX = [free.pop(-1) for _ in range(3)]
            for k in range(3):
                side.append(lambda k=k: a.vmem("buffer_load_dwordx4 %s, v%d, s[%d:%d], 0 offen offset:%d" % (v(vX[k],4), vXO, sXs, sXs+3, 64*k), "x"))
        if s_ == 8:
            vPs = free.pop(-1)
            side.append(lambda: sy.poll_issue(vPA, "s%d" % sFs, 0, "ps", vPs))
        if s_ == 10:
            vS = [free.pop(-1) for _ in range(3)]
            def sload():
                sy.poll_check(vPA, "s%d" % sFs, 0, "ps", vPs, sleep=getattr(a, "KSLEEP", 1))
                for n in range(5):
                    a("s_mov_b32 s%d, %d" % (sT, n*16*4096))
                    a.vmem("buffer_load_dwordx2 %s, v%d, s[%d:%d], s%d offen sc1" % (v(vS[n//2] + 2*(n%2),2), vSO, sST, sST+3, sT), "s")
            side.append(sload)
        if s_ == 11:
            side.append(lambda: bar_arrive(4))
        a.wait(lg="B%d" % s_, vm=["A%d" % s_, "B%d" % s_])
        if getattr(a, "P2ST", False) and s_ in (0, 2, 4, 6, 8, 10): a.stamp(10 + s_//2)
        order = [1, 2, 3, 0] if s_ == 11 else [0, 1, 2, 3]
        for i in order:
            for n in range(5):
                acc = vAcc2 + (i*5+n)*4
                a("v_mfma_f32_16x16x32_bf16 %s, %s, %s, %s" % (v(acc,4), v(loc[("A%d" % s_,i)],4), v(loc[("B%d" % s_,n)],4), "0" if s_ == 0 else v(acc,4)))
                if side: emit(side.pop(0))
        assert not side
        for i in range(4): free.append(loc[("A%d" % s_, i)])
        for n in range(5): free.append(loc[("B%d" % s_, n)])
    assert not G
    a.stamp(6)
    bar_wait(4)
    for i in range(1, 4):
        for n in range(5):
            a.lds("ds_write_b128 v%d, %s offset:%d" % (vRW+i-1, v(vAcc2+(i*5+n)*4,4), n*1024), "rw")
    bar_arrive(5)
    vXu = [free.pop(0) for _ in range(6)]
    a.wait(vm="x")
    for k in range(3):
        for j in range(4):
            u = vXu[2*k + j//2] + 2*(j % 2)
            a("v_lshlrev_b32 v%d, 16, v%d" % (u, vX[k]+j))
            a("v_and_b32 v%d, 0xffff0000, v%d" % (u+1, vX[k]+j))
    bar_wait(5)
    vR = [free.pop(0) for _ in range(15)]
    for n in range(5):
        for sl in range(3):
            a.lds("ds_read_b128 %s, v%d offset:%d" % (v(vR[n*3+sl],4), vRR, sl*5120 + n*1024), "rr%d" % n)
    vE = [vAcc2 + 20 + 4*i for i in range(8)]
    vU = [vAcc2 + 52 + 4*i for i in range(5)]
    a.wait(vm="s")
    for n in range(5):
        S = vS[n//2] + 2*(n%2); U = vU[n]
        a("v_lshlrev_b32 v%d, 16, v%d" % (U+0, S))
        a("v_and_b32 v%d, 0xffff0000, v%d" % (U+1, S))
        a("v_lshlrev_b32 v%d, 16, v%d" % (U+2, S+1))
        a("v_and_b32 v%d, 0xffff0000, v%d" % (U+3, S+1))
    for n in range(5):
        a.wait(lg="rr%d" % n)
        acc = vAcc2 + n*4; E = vE[n]; U = vU[n]
        for h in range(2):
            a("v_pk_add_f32 %s, %s, %s" % (v(vR[n*3]+2*h,2), v(vR[n*3]+2*h,2), v(vR[n*3+1]+2*h,2)))
            a("v_pk_add_f32 %s, %s, %s" % (v(acc+2*h,2), v(acc+2*h,2), v(vR[n*3+2]+2*h,2)))
        for h in range(2):
            a("v_pk_add_f32 %s, %s, %s" % (v(acc+2*h,2), v(acc+2*h,2), v(vR[n*3]+2*h,2)))
        for h in range(2):
            a("v_pk_mul_f32 %s, %s, s[%d:%d] neg_lo:[0,1] neg_hi:[0,1]" % (v(E+2*h,2), v(acc+2*h,2), sK, sK+1))
        for r in range(4): a("v_exp_f32 v%d, v%d" % (E+r, E+r))
        for h in range(2):
            a("v_pk_mul_f32 %s, %s, %s" % (v(acc+2*h,2), v(acc+2*h,2), v(U+2*h,2)))
        for r in range(4): a("v_add_f32 v%d, 1.0, v%d" % (E+r, E+r))
        for r in range(4): a("v_rcp_f32 v%d, v%d" % (E+r, E+r))
        a("s_nop 0")
        for h in range(2):
            a("v_pk_mul_f32 %s, %s, %s" % (v(acc+2*h,2), v(acc+2*h,2), v(E+2*h,2)))
        a("v_cvt_pk_bf16_f32 v%d, v%d, v%d" % (E, acc, acc+1))
        a("v_cvt_pk_bf16_f32 v%d, v%d, v%d" % (E+1, acc+2, acc+3))
        a.lds("ds_write_b64 v%d, %s offset:%d" % (vPW, v(E,2), n*16*G2_PRS), "pw")
    vPq = vE[5:8]
    for k in range(3):
        for q in range(2):
            a.lds("ds_read_b64_tr_b16 %s, v%d offset:%d" % (v(vPq[k]+2*q,2), vPR, (32*k + 4*q)*G2_PRS), "pr%d" % k)
    for k in range(3):
        a.wait(lg="pr%d" % k)
        Wp = (vR[2*k], vR[2*k+1])
        for j in range(4):
            a("v_lshlrev_b32 v%d, 16, v%d" % (Wp[j//2] + 2*(j%2), vPq[k]+j))
            a("v_and_b32 v%d, 0xffff0000, v%d" % (Wp[j//2] + 2*(j%2) + 1, vPq[k]+j))
        for j in range(4):
            u = vXu[2*k + j//2] + 2*(j % 2)
            a("v_pk_add_f32 %s, %s, %s" % (v(u,2), v(u,2), v(Wp[j//2] + 2*(j%2),2)))
        for j in range(4):
            u = vXu[2*k + j//2] + 2*(j % 2)
            a("v_cvt_pk_bf16_f32 v%d, v%d, v%d" % (vX[k]+j, u, u+1))
        if k == 2: a("s_mov_b32 exec_hi, 0")
        a.vmem("buffer_store_dwordx4 %s, v%d, s[%d:%d], 0 offen offset:%d %s" % (v(vX[k],4), vXO, sOut, sOut+3, 64*k, getattr(a, "OUTSC", "")), "st")
    a.stamp(7)
    a.stamp_dump(16, S_WAVE, 24, (200 << 20))
    a("s_endpgm")
    for sp, ok, k in ool:
        a.label(sp)
        a("s_mov_b32 s%d, %d" % (sSy, k))
        a("s_call_b64 s[%d:%d], L_c_spin" % (sRet, sRet+1))
        a("s_branch %s" % ok)
    a.label("L_c_spin")
    a("s_mov_b32 s%d, 0" % (sSy+2))
    a.label("L_c_spin_loop")
    if a.PROF: a("s_add_u32 s88, s88, 1")
    a("ds_read_b32 v%d, v%d" % (vRv, vCtl))
    a("s_add_u32 s%d, s%d, 1" % (sSy+2, sSy+2))
    a("s_cmp_gt_u32 s%d, 0x%x" % (sSy+2, SPIN_MAX*16))
    a("s_waitcnt lgkmcnt(0)")
    a("v_readfirstlane_b32 s%d, v%d" % (sRdy, vRv))
    a("s_cbranch_scc1 L_c_spin_ret")
    a("s_cmp_lt_u32 s%d, s%d" % (sRdy, sSy))
    a("s_cbranch_scc1 L_c_spin_loop")
    a.label("L_c_spin_ret")
    a("s_setpc_b64 s[%d:%d]" % (sRet, sRet+1))
    a.vm = []; a.lg = []
```

```python
from asmlib import *
from common import *
from sync import Sync

def emit_lnt(a, sI, sL, prio=2):
    vT0, vT1, vT2 = 1, 2, 3
    vTag, vZero, vL16, vPoll = 4, 6, 7, 8
    vOff = 12
    vWr = 16
    vRd = 18
    vSo = 22
    vS = 24
    vG = 32
    vRs, vMr = 48, 56
    vU = 64
    vX = 80
    vO = 160
    sT, sOne = 44, 45
    sSy = 48
    sXN, sFl, sSt = 52, 56, 60
    sy = Sync(a, sFl, P_DBG, vTag, vPoll, sSy, vZero)
    a.c("================ role: LN + transpose ================")
    a.stamp(0)
    if getattr(a, "NOLNT", False): a("s_endpgm")
    a("s_setprio %d" % prio)
    a("v_lshrrev_b32 v%d, 4, v0" % vT0)
    a("v_and_b32 v%d, 15, v0" % vT1)
    a("v_mul_u32_u24 v%d, 1280, v%d" % (vOff, vT0))
    a("v_lshl_add_u32 v%d, v%d, 4, v%d" % (vOff, vT1, vOff))
    a("s_mul_i32 s%d, s%d, 20480" % (sT, sI))
    a("v_add_u32 v%d, s%d, v%d" % (vOff, sT, vOff))
    for j in range(1, 4): a("v_add_u32 v%d, %d, v%d" % (vOff+j, j*5120, vOff))
    a("v_mov_b32 v%d, 0" % vZero)
    a("s_waitcnt lgkmcnt(0)")
    nt = a.newlabel("L_notag")
    a("s_cmp_lg_u32 s%d, 0" % sI)
    a("s_cbranch_scc1 %s" % nt)
    sy.publish_tag(vPoll)
    a.vm.pop()
    a.label(nt)
    for j in range(4):
        for c in range(5):
            a.vmem("global_load_dwordx4 %s, v%d, s[%d:%d] offset:%d" % (v(vX+(j*5+c)*4,4), vOff+j, P_X, P_X+1, c*256), "x%d" % j)
    a.srd_off(sXN, P_WS, WS_SF, SF_BYTES)
    a.srd_off(sFl, P_WS, WS_FLAGS, FLAGS_BYTES)
    a.srd_off(sSt, P_WS, WS_STATS, STATS_BYTES)
    a("s_mov_b32 s%d, 0x%x" % (sOne, ONES_BF))
    a("v_lshlrev_b32 v%d, 4, v0" % vL16)
    a("v_lshl_add_u32 v%d, v%d, 2, v%d" % (vSo, vT1, vT0))
    a("s_lshl_b32 s%d, s%d, 4" % (sSy, sI))
    a("v_add_u32 v%d, s%d, v%d" % (vSo, sSy, vSo))
    a("v_lshlrev_b32 v%d, 2, v%d" % (vSo+1, vSo))
    a("v_lshlrev_b32 v%d, 4, v%d" % (vSo, vSo))
    for i in range(8): a("v_mov_b32 v%d, 0" % (vS+i))
    for j in range(4):
        a.wait(vm="x%d" % j)
        if j == 0: a.stamp(1)
        if j == 3: sy.tag_load()
        for k in range(20):
            r = vX + j*20 + k
            a("v_dot2_f32_bf16 v%d, v%d, s%d, v%d" % (vS+2*j, r, sOne, vS+2*j))
            a("v_dot2_f32_bf16 v%d, v%d, v%d, v%d" % (vS+2*j+1, r, r, vS+2*j+1))
    a.nop(3)
    for sh in (8, 4, 2, 1):
        for i in range(8):
            a("v_add_f32_dpp v%d, v%d, v%d row_ror:%d row_mask:0xf bank_mask:0xf" % (vS+i, vS+i, vS+i, sh))
    for j in range(1, 4):
        a("v_cmp_eq_u32 vcc, %d, v%d" % (j, vT1))
        a("s_nop 1")
        a("v_cndmask_b32 v%d, v%d, v%d, vcc" % (vS, vS, vS+2*j))
        a("v_cndmask_b32 v%d, v%d, v%d, vcc" % (vS+1, vS+1, vS+2*j+1))
    m, q = vS, vS+1
    a("v_mul_f32 v%d, %s, v%d" % (m, fhex(1.0/640), m))
    a("v_mul_f32 v%d, %s, v%d" % (q, fhex(1.0/640), q))
    a("v_fma_f32 v%d, -v%d, v%d, v%d" % (q, m, m, q))
    a("v_max_f32 v%d, 0, v%d" % (q, q))
    a("v_cvt_pk_bf16_f32 v%d, -v%d, -v%d" % (vG, m, m))
    a("v_cvt_pk_bf16_f32 v%d, v%d, v%d" % (q, q, q))
    a("v_and_b32 v%d, 0xffff0000, v%d" % (q, q))
    a("v_add_f32 v%d, %s, v%d" % (q, fhex(1e-5), q))
    a("v_cvt_pk_bf16_f32 v%d, v%d, v%d" % (q, q, q))
    a("v_and_b32 v%d, 0xffff0000, v%d" % (q, q))
    a("v_sqrt_f32 v%d, v%d" % (q, q))
    a("v_and_b32 v%d, 0xffff0000, v%d" % (m, vG))
    a("v_cvt_pk_bf16_f32 v%d, v%d, v%d" % (vG+1, q, q))
    a("v_and_b32 v%d, 0xffff0000, v%d" % (q, vG+1))
    a("v_rcp_f32 v%d, v%d" % (vRs, q))
    sy.tag_check()
    a("v_mov_b32 v%d, v%d" % (vG+2, vTag))
    a("v_mov_b32 v%d, v%d" % (vG+3, vTag+1))
    a("v_mul_f32 v%d, v%d, v%d" % (vRs+1, m, vRs))
    a("s_mov_b32 exec_lo, 0x000f000f")
    a("s_mov_b32 exec_hi, 0x000f000f")
    a.vmem("buffer_store_dwordx4 %s, v%d, s[%d:%d], 0 offen sc1" % (v(vG,4), vSo, sSt, sSt+3), "st")
    a("s_mov_b32 s%d, 8192" % sT)
    a.vmem("buffer_store_dword v%d, v%d, s[%d:%d], 0 offen sc1" % (vRs, vSo+1, sXN, sXN+3), "st")
    a.vmem("buffer_store_dword v%d, v%d, s[%d:%d], s%d offen sc1" % (vRs+1, vSo+1, sXN, sXN+3, sT), "st")
    a("s_mov_b64 exec, -1")
    a.stamp(2); a.stamp(3)
    a.wait(vm="all")
    a("s_lshl_b32 s%d, s%d, 3" % (sT, sI))
    sy.signal("s%d" % sT, FL_LNT)
    a.stamp(4)
    a.stamp_dump(5, S_WAVE, 80, (200 << 20))
    a("s_endpgm")
    a.vm = []; a.lg = []
```

```python
import sys
from asmlib import *
from common import *
from plan import Plan
from loader import emit_loader
from gemm4 import emit_compute
from kc4 import emit_kc
from lnt4 import emit_lnt
NAME = "recurrent_scan__ssm_conv_s4__dense_activation_mish__prompt_kernel"
HDR = open("recurrent_scan__ssm_conv_s4__dense_activation_mish__prompt.s.ref").read().split("; Override launch")[0]
def build(path, prof=False, nopoll=False, noaux=False, T=12, cprio=1, kprio=2, lprio=3, ldprio=0, rot=True, NB_REG=3, NX_OWN=10, norel=False, noch=False, ksleep=16, lsleep=6, **flags):
    a = Asm()
    a.PROF = prof; a.NOPOLL = nopoll; a.NOREL = norel; a.NOCH = noch; a.KSLEEP = ksleep; a.LSLEEP = lsleep
    for k_, v_ in flags.items(): setattr(a, k_, v_)
    plan = Plan(NB_REG, NX_OWN)
    a.raw(HDR.rstrip())
    a.raw("; @launch grid=(256,1,1) block=(512,1,1) lds=%d" % LDS_BYTES)
    a.raw('.amdgcn_target "amdgcn-amd-amdhsa--gfx950"')
    a.raw(".text")
    kernel_begin(a, NAME)
    a("s_cmp_ge_u32 s2, 256")
    a("s_cbranch_scc1 L_end")
    if prof:
        a("s_memrealtime s[94:95]"); a("s_waitcnt lgkmcnt(0)")
    if not getattr(a, "LATEARG", True):
        a("s_load_dwordx16 s[8:23], s[0:1], 0")
        a("s_load_dwordx16 s[24:39], s[0:1], 64")
    a("v_lshrrev_b32 v1, 6, v0")
    if getattr(a, "CODEPF", False):
        a("s_cmp_ge_u32 s2, 32")
        a("s_cbranch_scc1 L_nopf")
        a("s_getpc_b64 s[4:5]")
        a("v_lshlrev_b32 v2, 6, v0")
        a("global_load_dword v255, v2, s[4:5]")
        a.label("L_nopf")
    a("v_and_b32 v0, 63, v0")
    a("v_lshlrev_b32 v2, 2, v0")
    a("v_add_u32 v2, %d, v2" % L_CTL)
    a("v_readfirstlane_b32 s3, v1")
    a("v_mov_b32 v1, 0")
    a("ds_write_b32 v2, v1")
    a("s_waitcnt lgkmcnt(0)")
    if getattr(a, "LATEARG", True):
        a("s_load_dwordx16 s[8:23], s[0:1], 0")
        a("s_load_dwordx16 s[24:39], s[0:1], 64")
    a("s_barrier")
    a("s_cmp_lt_u32 s3, 4")
    a("s_cbranch_scc1 L_compute")
    a("s_cmp_eq_u32 s3, 4")
    a("s_cbranch_scc1 L_loader")
    if noaux: a("s_endpgm")
    a("s_setprio 3")
    a("s_sub_u32 s41, s3, 5")
    a("s_mul_i32 s40, s41, 20480")
    a("s_add_u32 s40, s40, %d" % L_AUX)
    a("s_lshl_b32 s42, s2, 1")
    a("s_add_u32 s42, s42, s41")
    a("s_cmp_lt_u32 s3, 7")
    a("s_cbranch_scc1 L_kc")
    a("s_add_u32 s42, s2, 512")
    a("s_cmp_lt_u32 s2, 128")
    a("s_cbranch_scc1 L_kc")
    a("s_sub_u32 s42, s2, 128")
    emit_lnt(a, 42, 40, lprio)
    a.label("L_kc")
    emit_kc(a, 42, 40, kprio, gate=not getattr(a, 'KNOGATE', False))
    a.label("L_loader")
    emit_loader(a, plan, T, ldprio, rot)
    a.label("L_compute")
    emit_compute(a, plan, cprio)
    a.label("L_end")
    a("s_endpgm")
    a.raw('.section .rodata,"a"')
    a.raw(".p2align 6")
    a.raw(kernel_desc(NAME, 256, 102))
    open(path, "w").write(a.text())
if __name__ == "__main__":
    build("s4.s")
    build("s4_prof.s", prof=True)
    build("s4_np.s", prof=True, nopoll=True, noaux=True)
    build("s4_v1.s", BLATE=True)
    build("s4_v2.s", BLATE=True, prof=True)
    build("s4_v3.s", lsleep=12)
    build("s4_v4.s", KNOGATE=True)
```

```python
from asmlib import *
from common import *
from sync import Sync
from loader import tile_maps, k_rotation, k_rotation2, x_src_offsets

G2_P = 61440
G2_PW = 3072
G2_PRS = 176

def emit_compute(a, plan, prio=1):
    vT0, vT1, vT2 = 1, 2, 3
    vTag, vZero, vL16, vPoll = 4, 6, 7, 8
    vRelA, vRv, vCtl, vBarA = 12, 13, 14, 15
    vXr, vWr = 16, 20
    vSt, vSo, vCw, vCr = 24, 25, 26, 27
    vB1 = 28
    vC1, vC2, vC3 = 32, 34, 36
    vOne = 36
    vBar = vPoll
    vAcc = 40
    WB = [112, 124, 136]
    vXF = [148, 164]
    vCs4 = [88, 92, 96]
    vP, vAp, vBp = 180, 192, 204
    sRb, sCb, sRb2, sCb2, sT, sT2, sM, sAo, sRdy, sFa, sFs, sFw = 40, 41, 42, 43, 44, 45, 46, 47, 48, 49, 50, 51
    sSy = 52
    sRet = 100
    sK = 56
    sAct, sFl, sStt, sW2F, sOut, sST, sXs = 60, 64, 68, 72, 76, 4, 12
    sA, sB, sK2, sK3 = 16, 20, 25, 10
    W = S_WAVE
    sy = Sync(a, sFl, P_DBG, vTag, vPoll, sSy, vZero)
    a.c("================ role: compute (gemm1 + gemm2) ================")
    a.stamp(0)
    if a.PROF: a("s_mov_b32 s88, 0")
    a("v_lshlrev_b32 v%d, 2, v0" % vT0)
    a("v_add_u32 v%d, %d, v%d" % (vRelA, C_DUMMY, vT0))
    a("v_mov_b32 v%d, 0" % vZero)
    if prio: a("s_setprio %d" % prio)
    a("s_lshl_b32 s%d, s%d, 2" % (sT, W))
    a("s_add_u32 s%d, s%d, %d" % (sT, sT, C_REL))
    a("v_mov_b32 v%d, s%d" % (vT1, sT))
    a("v_cmp_eq_u32 vcc, 0, v0")
    a("v_mov_b32 v%d, %d" % (vCtl, L_CTL))
    a("s_mov_b32 s%d, 0" % sRdy)
    a("v_cndmask_b32 v%d, v%d, v%d, vcc" % (vRelA, vRelA, vT1))
    tile_maps(a, sRb, sCb, None, None, sT)
    vXd = 100
    sXb, sXk, sXm = 16, 17, 18
    x_src_offsets(a, vXd, vT0, vT1, vT2)
    k_rotation(a, sM, sT2, sRb, sCb)
    a("s_lshl2_add_u32 s%d, s%d, s%d" % (sT, sRb, W))
    a("s_waitcnt lgkmcnt(0)")
    a("s_mul_i32 s%d, s%d, 40960" % (sXb, sT))
    a("s_lshl_b32 s%d, s%d, 12" % (sXm, W))
    a("s_lshl_b32 s%d, s%d, 7" % (sXk, sM))
    a.srd(sXs, P_X, 2048*640*2)
    def xdma(st, i):
        if i == 0:
            a("s_add_u32 m0, s%d, %d" % (sXm, L_X + (st % 3)*16384))
            a("s_add_u32 s%d, s%d, s%d" % (sXb+3, sXb, sXk))
        a.vmem("buffer_load_dwordx4 v%d, s[%d:%d], s%d offen offset:%d lds" % (vXd+i, sXs, sXs+3, sXb+3, i*1024), "X%d" % st)
        if i == 0:
            a("s_add_u32 s%d, s%d, 128" % (sXk, sXk)); a("s_cmp_ge_u32 s%d, 1280" % sXk); a("s_cselect_b32 s%d, 0, s%d" % (sXk, sXk))
    for st in range(min(3, plan.NX_OWN)):
        for i in range(4): xdma(st, i)
    TS = getattr(a, "TOUCH", 0)
    if TS:
        a("v_lshlrev_b32 v%d, %d, v0" % (vT2, TS))
        a("s_lshl_b32 s%d, s%d, %d" % (sT, W, TS + 6))
        a("v_add_u32 v%d, s%d, v%d" % (vT2, sT, vT2))
        a("v_add_u32 v%d, %d, v%d" % (vT2, (1 << TS) - 128, vT2))
        a.srd(sOut, P_WS, 32 << 20)
        a.vmem("buffer_load_dword v%d, v%d, s[%d:%d], 0 offen sc1" % (vPoll+2, vT2, sOut, sOut+3), "touch")
        a.srd(sStt, P_OUT, 2048*640*2)
        a.vmem("buffer_load_dword v%d, v%d, s[%d:%d], 0 offen sc1" % (vPoll+3, vT2, sStt, sStt+3), "touch")
    if getattr(a, "NOREL", False): a("s_endpgm")
    ool = []
    st_ = {"peeked": False}
    vPk = 31
    def peek():
        st_["peeked"] = True
        a.lds("ds_read_b32 v%d, v%d" % (vPk, vCtl), "peek")
    def ready(name):
        if name not in plan.rdy:
            a.wait(vm=name); return
        k = plan.rdy[name]
        ok = a.newlabel("L_rok"); sp = a.newlabel("L_rspin")
        if "peek" in a.lg or st_["peeked"]:
            a.wait(lg="peek")
            a("v_readfirstlane_b32 s%d, v%d" % (sRdy, vPk))
            st_["peeked"] = False
        a("s_cmp_ge_u32 s%d, %d" % (sRdy, k))
        a("s_cbranch_scc0 %s" % sp)
        a.label(ok)
        ool.append((sp, ok, k))
    def release(name):
        a("v_mov_b32 v%d, %d" % (vRv, plan.rel[name]))
        a.lds("ds_write_b32 v%d, v%d" % (vRelA, vRv), "rel")
    def bar_arrive(ep):
        a("v_mov_b32 v%d, %d" % (vRv, ep))
        a.lds("ds_write_b32 v%d, v%d offset:16" % (vRelA, vRv), "rel")
    def bar_wait(ep, off=32):
        sp = a.newlabel("L_bspin"); ok = a.newlabel("L_bok")
        a("s_mov_b32 s%d, 0" % (sSy+2))
        a.label(sp)
        a("ds_read_b128 %s, v%d offset:%d" % (v(vBar,4), vCtl, off))
        a("s_add_u32 s%d, s%d, 1" % (sSy+2, sSy+2))
        a("s_cmp_gt_u32 s%d, 0x%x" % (sSy+2, SPIN_MAX*16))
        a("s_waitcnt lgkmcnt(0)")
        a("v_min3_u32 v%d, v%d, v%d, v%d" % (vBar, vBar, vBar+1, vBar+2))
        a("v_min_u32 v%d, v%d, v%d" % (vBar, vBar, vBar+3))
        a("s_cbranch_scc1 %s" % ok)
        a("v_cmp_gt_u32 vcc, %d, v%d" % (ep, vBar))
        a("s_cbranch_vccnz %s" % sp)
        a.label(ok)
        a.lg = []
    tile_maps(a, None, None, sRb2, sCb2, sT)
    a("v_lshlrev_b32 v%d, 4, v0" % vL16)
    a("v_and_b32 v%d, 31, v0" % vT0)
    a("v_lshrrev_b32 v%d, 5, v0" % vT1)
    a("v_lshlrev_b32 v%d, 1, v%d" % (vT2, vT0))
    a("s_mul_i32 s%d, s%d, 192" % (sT, sCb))
    a("v_add_u32 v%d, s%d, v%d" % (vT2, sT, vT2))
    for p in range(3): a.vmem("global_load_ushort v%d, v%d, s[%d:%d] offset:%d" % (vB1+p, vT2, P_B1, P_B1+1, 64*p), "b1")
    a("s_lshl_b32 s%d, s%d, 12" % (sT, W))
    a("s_add_u32 s%d, s%d, %d" % (sT, sT, L_X))
    a("v_bfe_u32 v%d, v0, 1, 3" % vT2)
    a("v_xor_b32 v%d, v%d, v%d" % (vT2, vT2, vT1))
    a("v_lshlrev_b32 v%d, 4, v%d" % (vT2, vT2))
    a("v_lshl_add_u32 v%d, v%d, 7, v%d" % (vT2, vT0, vT2))
    a("v_add_u32 v%d, s%d, v%d" % (vT2, sT, vT2))
    for jl in range(4):
        a("s_add_u32 s%d, s%d, %d" % (sT2, W, jl))
        a("s_and_b32 s%d, s%d, 3" % (sT2, sT2))
        a("s_lshl_b32 s%d, s%d, 5" % (sT2, sT2))
        a("v_xor_b32 v%d, s%d, v%d" % (vXr+jl, sT2, vT2))
    a("v_bfe_u32 v%d, v0, 2, 2" % vT2)
    a("v_lshl_add_u32 v%d, v%d, 3, v%d" % (vT2, vT1, vT2))
    a("v_mul_u32_u24 v%d, 192, v%d" % (vT2, vT2))
    a("v_bfe_u32 v%d, v0, 4, 1" % vSt)
    a("v_lshl_add_u32 v%d, v%d, 5, v%d" % (vT2, vSt, vT2))
    a("v_and_b32 v%d, 3, v0" % vSo)
    a("v_lshl_add_u32 v%d, v%d, 3, v%d" % (vT2, vSo, vT2))
    for jl in range(4):
        a("s_add_u32 s%d, s%d, %d" % (sT2, W, jl))
        a("s_and_b32 s%d, s%d, 3" % (sT2, sT2))
        a("s_mul_i32 s%d, s%d, %d" % (sT2, sT2, 16*192))
        a("v_add_u32 v%d, s%d, v%d" % (vWr+jl, sT2, vT2))
    for r in (vOne, vOne+1): a("v_mov_b32 v%d, 0x%x" % (r, ONES_BF))
    a("v_lshlrev_b32 v%d, 4, v%d" % (vCw, vT1))
    a("v_lshl_add_u32 v%d, v%d, 2, v%d" % (vCw, vSt, vCw))
    a("v_bfe_u32 v%d, v0, 2, 2" % vT2)
    a("v_add_u32 v%d, v%d, v%d" % (vCw, vCw, vT2))
    a("v_lshlrev_b32 v%d, 8, v%d" % (vCw, vCw))
    a("v_lshl_add_u32 v%d, v%d, 3, v%d" % (vCw, vSo, vCw))
    a("s_lshl_b32 s%d, s%d, 6" % (sT, W))
    a("v_add_u32 v%d, s%d, v%d" % (vCw, sT, vCw))
    a("s_mul_i32 s%d, s%d, 13108" % (sT, S_WG))
    a("s_lshr_b32 s%d, s%d, 16" % (sT, sT))
    a("s_mul_i32 s%d, s%d, 5" % (sT2, sT))
    a("s_sub_u32 s%d, s%d, s%d" % (sT2, S_WG, sT2))
    a("s_cmp_ge_u32 s%d, 240" % S_WG)
    a("s_cselect_b32 s%d, 5, s%d" % (sT2, sT2))
    a("s_cselect_b32 s%d, 0, s%d" % (sT, sT))
    a("s_lshl2_add_u32 s%d, s%d, s%d" % (sM, sT2, W))
    a("s_mul_i32 s%d, s%d, %d" % (sM, sM, 2*48*1024))
    a("s_lshl_b32 s%d, s%d, 10" % (sAo, sT))
    a("s_add_u32 s%d, s%d, s%d" % (sM, sM, sAo))
    a("s_mul_i32 s%d, s%d, 48" % (sFw, sT2))
    a("s_add_u32 s%d, s%d, s%d" % (sFw, sFw, sT))
    a("s_lshl2_add_u32 s%d, s%d, s%d" % (sFw, sFw, W))
    a("s_lshl_b32 s%d, s%d, 3" % (sFw, sFw))
    a("s_add_u32 s%d, s%d, %d" % (sFw, sFw, FL_W2F))
    a.srd_off(sW2F, P_WS, WS_W2F, W2F_BYTES)
    a.srd_off(sFl, P_WS, WS_FLAGS, FLAGS_BYTES)
    a.srd_off(sAct, P_WS, WS_ACT, ACT_BYTES)
    a.srd_off(sStt, P_WS, WS_STATS, STATS_BYTES)
    a.srd_off(sST, P_WS, WS_ST, ST_BYTES)
    a("v_mul_u32_u24 v%d, %d, v%d" % (vSt, 48*64, vSt))
    a("v_and_b32 v%d, 15, v0" % vT2)
    a("v_add_u32 v%d, v%d, v%d" % (vSt, vSt, vT2))
    a("v_lshl_add_u32 v%d, v%d, 4, v%d" % (vSt, vT1, vSt))
    a("v_lshlrev_b32 v%d, 4, v%d" % (vSt, vSt))
    a("s_lshl2_add_u32 s%d, s%d, s%d" % (sT2, sRb, W))
    a("s_lshl_b32 s%d, s%d, 9" % (sT, sT2))
    a("v_lshlrev_b32 v%d, 4, v%d" % (vSo, vT0))
    a("v_add_u32 v%d, s%d, v%d" % (vSo, sT, vSo))
    a("s_lshr_b32 s%d, s%d, 1" % (sT, sT2))
    a("s_lshl_b32 s%d, s%d, 5" % (sFa, sT))
    a("s_and_b32 s%d, s%d, 1" % (sT, sT2))
    a("s_add_u32 s%d, s%d, s%d" % (sFa, sFa, sT))
    a("s_lshl_b32 s%d, s%d, 1" % (sT, sCb))
    a("s_add_u32 s%d, s%d, s%d" % (sFa, sFa, sT))
    a("s_lshl_b32 s%d, s%d, 3" % (sFa, sFa))
    a("s_add_u32 s%d, s%d, %d" % (sFa, sFa, FL_ACT))
    a("s_mul_i32 s%d, s%d, 96" % (sT2, sT2))
    a("s_mul_i32 s%d, s%d, 3" % (sAo, sCb))
    a("s_add_u32 s%d, s%d, s%d" % (sAo, sAo, sT2))
    a("s_lshl_b32 s%d, s%d, 10" % (sAo, sAo))
    a("s_mov_b32 s%d, %s" % (sK, fhex(LOG2E))); a("s_mov_b32 s%d, %s" % (sK+1, fhex(LOG2E)))
    a("s_mov_b32 s%d, 2.0" % (sK+2)); a("s_mov_b32 s%d, 2.0" % (sK+3))
    for i in range(16): a("v_mov_b32 v%d, 0" % (vAp+i))
    a("v_lshlrev_b32 v%d, 2, v%d" % (vCr, vT0))
    a("v_add_u32 v%d, %d, v%d" % (vCr, C_CS, vCr))
    vXt, vXs_ = 216, 220
    vIt = [224, 240]
    sXt, sFx = 55, 26
    a("v_bfe_u32 v%d, v0, 1, 1" % vXt)
    a("s_lshl_b32 s%d, s%d, 1" % (sT, W))
    a("v_add_u32 v%d, s%d, v%d" % (vXt, sT, vXt))
    a("v_bfe_u32 v%d, v0, 3, 1" % vT2)
    a("v_xor_b32 v%d, v%d, v%d" % (vXt, vXt, vT2))
    a("v_lshlrev_b32 v%d, 4, v%d" % (vXt, vXt))
    a("v_and_b32 v%d, 1, v0" % vT2)
    a("v_lshl_add_u32 v%d, v%d, 3, v%d" % (vXt, vT2, vXt))
    a("v_bfe_u32 v%d, v0, 2, 2" % vT2)
    a("v_lshl_add_u32 v%d, v%d, 7, v%d" % (vXt, vT2, vXt))
    a("v_lshlrev_b32 v%d, 14, v%d" % (vXs_, vT2))
    a("v_lshrrev_b32 v%d, 4, v0" % vT2)
    a("v_lshl_add_u32 v%d, v%d, 12, v%d" % (vXt, vT2, vXt))
    a("v_add_u32 v%d, %d, v%d" % (vXt, L_X, vXt))
    for k in range(1, 4): a("v_xor_b32 v%d, %d, v%d" % (vXt+k, 32*k, vXt))
    a("v_lshl_add_u32 v%d, v%d, 6, v%d" % (vXs_, vT2, vXs_))
    a("v_and_b32 v%d, 3, v0" % vT2)
    a("v_lshl_add_u32 v%d, v%d, 4, v%d" % (vXs_, vT2, vXs_))
    k_rotation(a, sT, sT2, sRb, sCb)
    a("s_cmp_ge_u32 s%d, 10" % sCb)
    a("s_cselect_b32 s%d, 10, s%d" % (sT, sT))
    a("s_lshl2_add_u32 s%d, s%d, s%d" % (sT, sT, W))
    a("s_lshl_b32 s%d, s%d, 16" % (sXt, sT))
    a("s_lshl_b32 s%d, s%d, 8" % (sT2, sRb))
    a("s_add_u32 s%d, s%d, s%d" % (sXt, sXt, sT2))
    a("s_lshl4_add_u32 s%d, s%d, s%d" % (sFx, sT, sRb))
    a("s_lshl_b32 s%d, s%d, 3" % (sFx, sFx))
    a("s_add_u32 s%d, s%d, %d" % (sFx, sFx, FL_XT))
    vCh = 208
    def xreads(st):
        return [("xf%d_%d" % (st, jl), "ds_read_b128 %s, v%d offset:%d" % (v(vXF[st & 1]+4*jl,4), vXr+jl, (st % 3)*16384)) for jl in range(4)]
    def wreads(g_):
        st, jl = g_ // 4, g_ % 4
        buf = WB[g_ % 3]
        return [("wf%d" % g_, "ds_read_b64_tr_b16 %s, v%d offset:%d" % (v(buf+4*p+2*q,2), vWr+jl, L_W + (st % 4)*12288 + q*4*192 + p*64)) for p in range(3) for q in range(2)]
    def w2st(k):
        a.vmem("buffer_store_dwordx4 %s, v%d, s[%d:%d], s%d offen sc1" % (v(vCh+4*k,4), vL16, sW2F, sW2F+3, sM), "chw")
        if k == 0: a("s_add_u32 s%d, s%d, %d" % (sM, sM, 48*1024))
    def xtst(j):
        a.vmem("buffer_store_dwordx4 %s, v%d, s[%d:%d], s%d offen sc1" % (v(vIt[0]+4*j,4), vXs_, sOut, sOut+3, sXt), "chs")
        if j < 3: a("s_add_u32 s%d, s%d, 4096" % (sXt, sXt))
    SW, SX, SG = getattr(a, "CH_W", 0), getattr(a, "CH_X", 2), getattr(a, "CH_LAG", 3)
    a.srd_off(sOut, P_WS, WS_XN, XN_BYTES)
    ready("X0")
    bar_arrive(1)
    a.stamp(10)
    for tag, ins in xreads(0): a.lds(ins, tag)
    ready("W0")
    a.stamp(11)
    for tag, ins in wreads(0) + wreads(1): a.lds(ins, tag)
    def xt_chore():
        bar_wait(1)
        for p in range(4):
            for q in range(2):
                a.lds("ds_read_b64_tr_b16 %s, v%d offset:%d" % (v(vIt[0]+4*p+2*q,2), vXt + 2*(p & 1) + q, (8*p + 4*q)*128), "xt")
        release("X0")
    dpp = []
    for stage_, (masks, perm, x_) in enumerate((((0x55555555, 0xaaaaaaaa), "[1,0,3,2]", 1), ((0x33333333, 0xcccccccc), "[2,3,0,1]", 2))):
        src, dst = vIt[stage_], vIt[1-stage_]
        for mi, m in enumerate(masks):
            for j in range(4):
                if ((j & x_) != 0) != (mi == 1): continue
                dpp.append(["s_mov_b32 vcc_lo, 0x%x" % m, "s_mov_b32 vcc_hi, 0x%x" % m] +
                           ["v_cndmask_b32_dpp v%d, v%d, v%d, vcc quad_perm:%s row_mask:0xf bank_mask:0xf" % (dst+4*j+r, src+4*(j ^ x_)+r, src+4*j+r, perm) for r in range(4)])
    def c_chore():
        ready("C")
        for k in range(2):
            for q in range(2):
                a.lds("ds_read_b64_tr_b16 %s, v%d offset:%d" % (v(vCh+4*k+2*q,2), vCw, L_W + 3*12288 + q*8*256 + k*32), "ch")
        release("C")
        a("s_mul_i32 s%d, s%d, 384" % (sT2, W))
        a("v_add_u32 v%d, s%d, v%d" % (vCw, sT2, vCr))
    a.stamp(1)
    def emit(t):
        if callable(t): t()
        elif isinstance(t, tuple): a.lds(t[1], t[0])
        else: a(t)
    def step(g_, gaps):
        st, jl = g_ // 4, g_ % 4
        buf = WB[g_ % 3]
        xf = vXF[st & 1] + 4*jl
        a.wait(lg=["wf%d" % g_, "xf%d_%d" % (st, jl)])
        rd = wreads(g_ + 2) if g_ + 2 < 40 else []
        for p in range(3):
            acc = vAcc + 16*p
            HK = getattr(a, "HACK", 0)
            if HK == 3:
                for hh in range(2): a("v_mfma_f32_16x16x32_bf16 %s, %s, %s, %s" % (v(acc+4*hh+8*(jl&1),4), v(buf+4*p,4), v(xf,4), "0" if g_ < 2 else v(acc+4*hh+8*(jl&1),4)))
            elif HK != 1: a("v_mfma_f32_32x32x16_bf16 %s, %s, %s, %s" % (v(acc,16), v(buf+4*p,4), v(xf,4), "0" if g_ == 0 else v(acc,16)))
            for tag, ins in rd[2*p:2*p+2]: a.lds(ins, tag)
            if HK == 0 and ((jl >= 2) if st < 9 else (jl < 2)):
                a("v_mfma_f32_4x4x4_16b_bf16 %s, %s, %s, %s" % (v(vCs4[p],4), v(vOne,2), v(buf+4*p+2*(jl & 1),2), "0" if g_ == 2 else v(vCs4[p],4)))
            for t in gaps[p]: emit(t)
    statld = "buffer_load_dwordx4 %s, v%d, s[%d:%d], 0 offen sc1" % (v(vPoll,4), vSo, sStt, sStt+3)
    for st in range(10):
        gp = [[] for _ in range(12)]
        if st < 9:
            xr = xreads(st+1)
            gp[1] += [lambda: ready("X%d" % (st+1)), xr[0]]
            if plan.rdy["W%d" % (st+1)] > plan.rdy.get("X%d" % (st+1), 0): gp[3] += [peek]
            if st < 8 and ("X%d" % (st+2)) in plan.rdy: gp[10] += [peek]
            gp[2] += [xr[1]]; gp[3] += [xr[2]]; gp[4] += [xr[3]]
            if plan.NX_OWN < 10 or st + 1 >= 7: gp[4] += [lambda: release("X%d" % (st+1))]
        gp[5] += [lambda: release("W%d" % st)]
        if st < 2:
            for gi in (6, 8, 9, 11): gp[gi] += dpp.pop(0)
        if st < 9 and plan.rdy["W%d" % (st+1)] > plan.rdy.get("X%d" % (st+1), 0): gp[5] += [lambda: ready("W%d" % (st+1))]
        if plan.NX_OWN == 10:
            if st == 0:
                gp[0] += [xt_chore]
                gp[2] += [c_chore]
                gp[4].append(lambda: bar_wait(1, 16))
                for i in range(4): gp[(4, 5, 6, 6)[i]].append(lambda i=i: xdma(3, i))
            if st + 4 < 10:
                gp[7].append(lambda: a.wait(lg="xf%d_3" % (st+1)))
                for i in range(4): gp[(7, 8, 10, 11)[i]].append(lambda i=i: xdma(st+4, i))
        if st == SW:
            gp[6].append(lambda: w2st(0)); gp[9].append(lambda: w2st(1))
        if st == SX:
            for j in range(4): gp[(0, 7, 8, 11)[j]].append(lambda j=j: xtst(j))
        if st == 1: gp[7].append(sy.tag_load)
        if st == max(SW, 0) + SG:
            def sigw():
                sy.tag_check()
                a.wait(vm="chw")
                sy.signal("s%d" % sFw, 0)
            gp[0].insert(0, sigw)
        if st == min(max(SX, 0) + SG, 9):
            def sigx():
                a.wait(vm="chs")
                sy.signal("s%d" % sFx, 0)
                a.srd(sOut, P_OUT, 2048*640*2)
            gp[1 if st < 9 else 11].insert(0, sigx)
        if st == 7: gp[8].append(lambda: a.vmem(statld, "stat"))
        if st == 9:
            def statprep():
                sy.granule_check(statld, "stat", vPoll+2)
                a("v_mov_b32 v%d, v%d" % (vBp, vPoll))
                a("v_mov_b32 v%d, v%d" % (vBp+1, vPoll+1))
            gp[1].append(statprep)
            gp[6] += ["s_nop 1", "v_and_b32 v%d, 0xffff0000, v%d" % (vC3, vBp+1), "v_rcp_f32 v%d, v%d" % (vC3, vC3)]
            gp[7] += ["v_permlane32_swap_b32 v%d, v%d" % (vCs4[p], vCs4[p]+1) for p in range(3)]
            gp[7] += ["v_add_f32 v%d, v%d, v%d" % (vCs4[p], vCs4[p], vCs4[p]+1) for p in range(3)]
            gp[7] += [("cw", "ds_write_b32 v%d, v%d offset:%d" % (vCw, vCs4[p], p*128)) for p in range(3)]
            gp[7] += [lambda: bar_arrive(2)]
            gp[9] += [lambda: bar_wait(2)]
            gp[9] += [("cr", "ds_read_b32 v%d, v%d offset:%d" % (vP+w*3+p, vCr, w*384 + p*128)) for w in range(4) for p in range(3)]
        if st in (0, 4): a.stamp({0: 12, 4: 13}[st])
        if st == 4: a.cstamp(14)
        for j in range(4): step(4*st+j, gp[3*j:3*j+3])
    a.stamp(2); a.cstamp(15)
    if a.PROF: a("s_mov_b32 s89, s88")
    a("v_mul_f32 v%d, %s, v%d" % (vC1, fhex(LOG2E), vC3))
    a("v_mul_f32 v%d, -2.0, v%d" % (vC2, vC3))
    a("s_mov_b32 exec_hi, 0")
    for p in range(3): a("v_mov_b32 v%d, v%d" % (vAp+4*p+1, vB1+p))
    a.wait(lg="cr")
    for p in range(3):
        a("v_add_f32 v%d, v%d, v%d" % (vP+p, vP+p, vP+3+p))
        a("v_add_f32 v%d, v%d, v%d" % (vP+6+p, vP+6+p, vP+9+p))
    for p in range(3): a("v_add_f32 v%d, v%d, v%d" % (vP+p, vP+p, vP+6+p))
    for p in range(3): a("v_cvt_pk_bf16_f32 v%d, v%d, v%d" % (vP+3+p, vP+p, vP+p))
    for p in range(3): a("v_and_b32 v%d, 0xffff0000, v%d" % (vP+3+p, vP+3+p))
    for p in range(3): a("v_sub_f32 v%d, v%d, v%d" % (vP+3+p, vP+p, vP+3+p))
    for p in range(3): a("v_cvt_pk_bf16_f32 v%d, v%d, v%d" % (vAp+4*p, vP+p, vP+3+p))
    a("s_mov_b32 exec_hi, -1")
    a("s_nop 0")
    for p in range(3):
        acc = vAcc + 16*p
        a("v_mfma_f32_32x32x16_bf16 %s, %s, %s, %s" % (v(acc,16), v(vAp+4*p,4), v(vBp,4), v(acc,16)))
    vRW = 16; vRR, vPW, vPR, vXO, vSO = 19, 20, 21, 22, 23
    vFr, vPA = vBarA, vCr
    a("v_and_b32 v%d, 15, v0" % vT0)
    a("v_lshrrev_b32 v%d, 4, v0" % vT1)
    a("s_lshl2_add_u32 s%d, s%d, s%d" % (sT, sRb2, W))
    a("s_mul_i32 s%d, s%d, %d" % (sT2, sT, 16*1280))
    a("s_mul_i32 s%d, s%d, 160" % (sM, sCb2))
    a("s_add_u32 s%d, s%d, s%d" % (sFs, sT2, sM))
    a("v_lshrrev_b32 v%d, 2, v0" % vSO)
    a("v_lshlrev_b32 v%d, 7, v%d" % (vSO, vSO))
    a("v_and_b32 v%d, 3, v0" % vXO)
    a("v_lshl_add_u32 v%d, v%d, 3, v%d" % (vSO, vXO, vSO))
    a("s_lshl_b32 s%d, s%d, 5" % (sM, W))
    a("s_add_u32 s%d, s%d, %d" % (sM, sM, 20*4096))
    a("v_add_u32 v%d, s%d, v%d" % (vSO, sM, vSO))
    a("s_lshl_b32 s%d, s%d, 10" % (sT, W))
    a("v_add_u32 v%d, s%d, v%d" % (vFr, sT, vL16))
    vE = 112; vO = 144
    vFr2 = vCr
    a("v_add_u32 v%d, 65536, v%d" % (vFr2, vFr))
    early = [r for r in range(208, 256, 4)] + [r for r in range(168, 208, 4)] + [r for r in range(104, 144, 4)]
    latef = [r for r in range(144, 168, 4)]
    free = early
    loc = {}
    def pull(name):
        out = []
        for j, row in enumerate(plan.rowsof[name]):
            r = free.pop(0); loc[(name, j)] = r
            base, off = (vFr, row*4096) if row < 16 else (vFr2, (row-16)*4096)
            out.append((name, "ds_read_b128 %s, v%d offset:%d" % (v(r,4), base, off)))
        return out
    def pull_now(nm):
        ready(nm)
        for tag, ins in pull(nm): a.lds(ins, tag)
        release(nm)
    NEP = getattr(a, "NEP", 4)
    for c in range(6):
        A = vAcc + 8*c; E = vE + 16*(c & 1); O = vO + 4*c
        for k in range(4): a("v_pk_mul_f32 %s, %s, %s op_sel_hi:[1,0]" % (v(E+2*k,2), v(A+2*k,2), v(vC1,2)))
        for k in range(8): a("v_exp_f32 v%d, v%d" % (E+k, E+k))
        for k in range(4): a("v_pk_add_f32 %s, %s, s[%d:%d]" % (v(E+8+2*k,2), v(E+2*k,2), sK+2, sK+3))
        for k in range(4): a("v_pk_fma_f32 %s, %s, %s, s[%d:%d]" % (v(E+2*k,2), v(E+2*k,2), v(E+8+2*k,2), sK+2, sK+3))
        for k in range(8): a("v_rcp_f32 v%d, v%d" % (E+k, E+k))
        for k in range(4): a("v_pk_fma_f32 %s, %s, %s, %s op_sel_hi:[1,0,0]" % (v(E+2*k,2), v(E+2*k,2), v(vC2,2), v(vC3,2)))
        for k in range(4): a("v_pk_mul_f32 %s, %s, %s" % (v(E+2*k,2), v(E+2*k,2), v(A+2*k,2)))
        for k in range(4): a("v_cvt_pk_bf16_f32 v%d, v%d, v%d" % (O+k, E+2*k, E+2*k+1))
        a.vmem("buffer_store_dwordx4 %s, v%d, s[%d:%d], s%d offen offset:%d sc1" % (v(O,4), vSt, sAct, sAct+3, sAo, c*512), "st")
    bar_arrive(3)
    a.stamp(3)
    for i in range(1, 4):
        a("s_add_u32 s%d, s%d, %d" % (sT, W, i))
        a("s_and_b32 s%d, s%d, 3" % (sT, sT))
        a("s_mul_i32 s%d, s%d, 15360" % (sT, sT))
        a("s_add_u32 s%d, s%d, %d" % (sT, sT, (i-1)*5120))
        a("v_add_u32 v%d, s%d, v%d" % (vRW+i-1, sT, vL16))
    a("s_mul_i32 s%d, s%d, 15360" % (sT, W))
    a("v_add_u32 v%d, s%d, v%d" % (vRR, sT, vL16))
    a("s_mul_i32 s%d, s%d, %d" % (sT, W, G2_PW))
    a("s_add_u32 s%d, s%d, %d" % (sT, sT, G2_P))
    a("v_mul_u32_u24 v%d, %d, v%d" % (vPW, G2_PRS, vT0))
    a("v_lshl_add_u32 v%d, v%d, 3, v%d" % (vPW, vT1, vPW))
    a("v_add_u32 v%d, s%d, v%d" % (vPW, sT, vPW))
    a("s_mov_b32 s%d, s%d" % (sFw, sT))
    a("v_mov_b32 v%d, v%d" % (vT1, vFr2))
    vFr2 = vT1
    vAcc2 = 24
    vZero2 = vPoll + 3
    k_rotation2(a, sK2, sT2, sRb2, sCb2)
    a("s_mul_i32 s%d, s%d, %d" % (sT2, W, 12*1024))
    for i in range(4):
        a("s_add_u32 s%d, s%d, %d" % (sT, W, i))
        a("s_and_b32 s%d, s%d, 3" % (sT, sT))
        a("s_lshl2_add_u32 s%d, s%d, s%d" % (sT, sRb2, sT))
        a("s_mul_i32 s%d, s%d, %d" % (sT, sT, 48*1024))
        a("s_add_u32 s%d, s%d, s%d" % (sA+i, sT, sT2))
    a("s_mul_i32 s%d, s%d, %d" % (sT, sCb2, 5*48*1024))
    a("s_add_u32 s%d, s%d, s%d" % (sB, sT, sT2))
    for n in range(1, 5): a("s_add_u32 s%d, s%d, %d" % (sB+n, sB, n*48*1024))
    vKo = [vT0, vZero2]
    def koff(s_, reg):
        a("s_add_u32 s%d, s%d, %d" % (sK3, sK2, s_*1024))
        a("s_sub_u32 s%d, s%d, %d" % (sK3+1, sK3, 12*1024))
        a("s_cmp_ge_u32 s%d, %d" % (sK3, 12*1024))
        a("s_cselect_b32 s%d, s%d, s%d" % (sK3, sK3+1, sK3))
        a("v_add_u32 v%d, s%d, v%d" % (reg, sK3, vL16))
    a.wait(vm="all")
    sy.signal("s%d" % sFa, 0)
    a.stamp(4)
    pull_now("B0")
    free += latef
    if getattr(a, "BLATE", False): ready("ACT")
    for s_ in plan.regB:
        koff(s_, vKo[0])
        for n in range(5):
            r = free.pop(0); loc[("B%d" % s_, n)] = r
            a.vmem("buffer_load_dwordx4 %s, v%d, s[%d:%d], s%d offen sc1" % (v(r,4), vKo[0], sW2F, sW2F+3, sB+n), "B%d" % s_)
    ready("ACT")
    a.stamp(5)
    G = [(s_, i) for s_ in range(12) for i in range(4)]
    def issue_a():
        s_, i = G.pop(0)
        if i == 0: koff(s_, vKo[0])
        r = free.pop(0); loc[("A%d" % s_, i)] = r
        a.vmem("buffer_load_dwordx4 %s, v%d, s[%d:%d], s%d offen sc1" % (v(r,4), vKo[0], sAct, sAct+3, sA+i), "A%d" % s_)
    while G and len(free) > 5: issue_a()
    vX = None
    def peek2():
        nonlocal vPk
        vPk = vZero2
        peek()
    for s_ in range(12):
        side = []
        nb = s_ + 1 < 12 and (s_+1) in plan.ringB
        pl = pull("B%d" % (s_+1)) if nb else []
        keep = 5 if (s_ + 2 < 12 and (s_+2) in plan.ringB and s_ == 0 and False) else 0
        keep = {9: 5}.get(s_, 0)
        na = max(0, min(len(G), len(free) - keep))
        if nb: side.append(peek2)
        side += [issue_a]*min(na, 3); na -= min(na, 3)
        if nb:
            side.append(lambda: ready("B%d" % (s_+1)))
            side += pl
            side.append(lambda: release("B%d" % (s_+1)))
        side += [issue_a]*na
        if s_ == 9:
            vX = [free.pop(-1) for _ in range(3)]
            vQ = [free.pop(-1) for _ in range(2)]
            def xld(k):
                a("v_add_u32 v%d, %d, v0" % (vT2, 64*k))
                a("v_mul_u32_u24 v%d, 6554, v%d" % (vPR, vT2))
                a("v_lshrrev_b32 v%d, 16, v%d" % (vPR, vPR))
                a("v_lshlrev_b32 v%d, 4, v%d" % (vT2, vT2))
                a("v_mad_u32_u24 v%d, v%d, %s, v%d" % (vQ[1]+k, vPR, "16", vT2))
                a("v_mul_u32_u24 v%d, %d, v%d" % (vPR, 1280-160, vPR))
                a("v_add_u32 v%d, v%d, v%d" % (vQ[0]+k, vPR, vT2))
                a("v_add_u32 v%d, s%d, v%d" % (vQ[1]+k, sFw, vQ[1]+k))
                a.vmem("buffer_load_dwordx4 %s, v%d, s[%d:%d], s%d offen" % (v(vX[k],4), vQ[0]+k, sXs, sXs+3, sFs), "x")
            for k in range(3): side.append(lambda k=k: xld(k))
        if s_ == 11:
            side.append(lambda: bar_arrive(4))
        a.wait(lg="B%d" % s_, vm=["A%d" % s_, "B%d" % s_])
        if getattr(a, "P2ST", False) and s_ in (0, 2, 4, 6, 8, 10): a.stamp(10 + s_//2)
        order = [1, 2, 3, 0] if s_ == 11 else [0, 1, 2, 3]
        for i in order:
            for n in range(5):
                acc = vAcc2 + (i*5+n)*4
                a("v_mfma_f32_16x16x32_bf16 %s, %s, %s, %s" % (v(acc,4), v(loc[("B%d" % s_,n)],4), v(loc[("A%d" % s_,i)],4), "0" if s_ == 0 else v(acc,4)))
                if side: emit(side.pop(0))
        assert not side
        for i in range(4): free.append(loc[("A%d" % s_, i)])
        for n in range(5): free.append(loc[("B%d" % s_, n)])
    assert not G
    a.stamp(6)
    bar_wait(4)
    for i in range(1, 4):
        for n in range(5):
            a.lds("ds_write_b128 v%d, %s offset:%d" % (vRW+i-1, v(vAcc2+(i*5+n)*4,4), n*1024), "rw")
    bar_arrive(5)
    vXu = [free.pop(0) for _ in range(6)]
    a.wait(vm="x")
    for k in range(3):
        for j in range(4):
            u = vXu[2*k + j//2] + 2*(j % 2)
            a("v_lshlrev_b32 v%d, 16, v%d" % (u, vX[k]+j))
            a("v_and_b32 v%d, 0xffff0000, v%d" % (u+1, vX[k]+j))
    vS = [free.pop(0) for _ in range(3)]
    ready("S")
    for n in range(5):
        a.lds("ds_read_b64_tr_b16 %s, v%d offset:%d" % (v(vS[n//2] + 2*(n%2),2), vSO, n*16*128), "s")
    bar_wait(5)
    vR = [free.pop(0) for _ in range(15)]
    for n in range(5):
        for sl in range(3):
            a.lds("ds_read_b128 %s, v%d offset:%d" % (v(vR[n*3+sl],4), vRR, sl*5120 + n*1024), "rr%d" % n)
    vE = [vAcc2 + 20 + 4*i for i in range(8)]
    vU = [vAcc2 + 52 + 4*i for i in range(5)]
    for n in range(5):
        S = vS[n//2] + 2*(n%2); U = vU[n]
        a("v_lshlrev_b32 v%d, 16, v%d" % (U+0, S))
        a("v_and_b32 v%d, 0xffff0000, v%d" % (U+1, S))
        a("v_lshlrev_b32 v%d, 16, v%d" % (U+2, S+1))
        a("v_and_b32 v%d, 0xffff0000, v%d" % (U+3, S+1))
    for n in range(5):
        a.wait(lg="rr%d" % n)
        acc = vAcc2 + n*4; E = vE[n]; U = vU[n]
        for h in range(2):
            a("v_pk_add_f32 %s, %s, %s" % (v(vR[n*3]+2*h,2), v(vR[n*3]+2*h,2), v(vR[n*3+1]+2*h,2)))
            a("v_pk_add_f32 %s, %s, %s" % (v(acc+2*h,2), v(acc+2*h,2), v(vR[n*3+2]+2*h,2)))
        for h in range(2):
            a("v_pk_add_f32 %s, %s, %s" % (v(acc+2*h,2), v(acc+2*h,2), v(vR[n*3]+2*h,2)))
        for h in range(2):
            a("v_pk_mul_f32 %s, %s, s[%d:%d] neg_lo:[0,1] neg_hi:[0,1]" % (v(E+2*h,2), v(acc+2*h,2), sK, sK+1))
        for r in range(4): a("v_exp_f32 v%d, v%d" % (E+r, E+r))
        for h in range(2):
            a("v_pk_mul_f32 %s, %s, %s" % (v(acc+2*h,2), v(acc+2*h,2), v(U+2*h,2)))
        for r in range(4): a("v_add_f32 v%d, 1.0, v%d" % (E+r, E+r))
        for r in range(4): a("v_rcp_f32 v%d, v%d" % (E+r, E+r))
        a("s_nop 0")
        for h in range(2):
            a("v_pk_mul_f32 %s, %s, %s" % (v(acc+2*h,2), v(acc+2*h,2), v(E+2*h,2)))
        a("v_cvt_pk_bf16_f32 v%d, v%d, v%d" % (E, acc, acc+1))
        a("v_cvt_pk_bf16_f32 v%d, v%d, v%d" % (E+1, acc+2, acc+3))
        a.lds("ds_write_b64 v%d, %s offset:%d" % (vPW, v(E,2), n*32), "pw")
    vPq = vE[5:8]
    for k in range(3):
        a.lds("ds_read_b128 %s, v%d" % (v(vPq[k],4), vQ[1]+k), "pr%d" % k)
    for k in range(3):
        a.wait(lg="pr%d" % k)
        Wp = (vR[2*k], vR[2*k+1])
        for j in range(4):
            a("v_lshlrev_b32 v%d, 16, v%d" % (Wp[j//2] + 2*(j%2), vPq[k]+j))
            a("v_and_b32 v%d, 0xffff0000, v%d" % (Wp[j//2] + 2*(j%2) + 1, vPq[k]+j))
        for j in range(4):
            u = vXu[2*k + j//2] + 2*(j % 2)
            a("v_pk_add_f32 %s, %s, %s" % (v(u,2), v(u,2), v(Wp[j//2] + 2*(j%2),2)))
        for j in range(4):
            u = vXu[2*k + j//2] + 2*(j % 2)
            a("v_cvt_pk_bf16_f32 v%d, v%d, v%d" % (vX[k]+j, u, u+1))
        if k == 2: a("s_mov_b32 exec_hi, 0")
        a.vmem("buffer_store_dwordx4 %s, v%d, s[%d:%d], s%d offen" % (v(vX[k],4), vQ[0]+k, sOut, sOut+3, sFs), "st")
    a.stamp(7)
    a.stamp_dump(16, S_WAVE, 24, (200 << 20))
    a("s_endpgm")
    for sp, ok, k in ool:
        a.label(sp)
        a("s_mov_b32 s%d, %d" % (sSy, k))
        a("s_call_b64 s[%d:%d], L_c_spin" % (sRet, sRet+1))
        a("s_branch %s" % ok)
    a.label("L_c_spin")
    a("s_mov_b32 s%d, 0" % (sSy+2))
    a.label("L_c_spin_loop")
    if a.PROF: a("s_add_u32 s88, s88, 1")
    a("ds_read_b32 v%d, v%d" % (vRv, vCtl))
    a("s_add_u32 s%d, s%d, 1" % (sSy+2, sSy+2))
    a("s_cmp_gt_u32 s%d, 0x%x" % (sSy+2, SPIN_MAX*16))
    a("s_waitcnt lgkmcnt(0)")
    a("v_readfirstlane_b32 s%d, v%d" % (sRdy, vRv))
    a("s_cbranch_scc1 L_c_spin_ret")
    a("s_cmp_ge_u32 s%d, s%d" % (sRdy, sSy))
    a("s_cbranch_scc1 L_c_spin_ret")
    if getattr(a, "CSLEEP", 0): a("s_sleep %d" % a.CSLEEP)
    a("s_branch L_c_spin_loop")
    a.label("L_c_spin_ret")
    a("s_setpc_b64 s[%d:%d]" % (sRet, sRet+1))
    a.vm = []; a.lg = []
```

```python
from asmlib import *
from common import *
from sync import Sync
import numpy as np

ROWB = 272
CV_UB = 9216 + 512

def pmul(dR, dI, R, I, WR, WI, t1, t2, bx=False, bw=False, halves=(0, 1)):
    f = []; s_ = []
    inplace = (dR == R)
    for h in halves:
        r, i = (R, I) if bx else (R+h, I+h)
        wr, wi = (WR, WI) if bw else (WR+h, WI+h)
        if inplace:
            f.append("v_mul_f32 v%d, v%d, v%d" % (t1+h, i, wi))
            f.append("v_mul_f32 v%d, v%d, v%d" % (dI+h, i, wr))
            s_.append("v_fmac_f32 v%d, v%d, v%d" % (dI+h, r, wi))
            s_.append("v_fma_f32 v%d, v%d, v%d, -v%d" % (dR+h, r, wr, t1+h))
        else:
            f.append("v_mul_f32 v%d, v%d, v%d" % (dR+h, r, wr))
            f.append("v_mul_f32 v%d, v%d, v%d" % (dI+h, r, wi))
            s_.append("v_fma_f32 v%d, -v%d, v%d, v%d" % (dR+h, i, wi, dR+h))
            s_.append("v_fmac_f32 v%d, v%d, v%d" % (dI+h, i, wr))
    return f, s_

def pkmul(dR, dI, R, I, WR, WI, t1, t2, bx=False, bw=False):
    h0 = 0 if bx else 1; h1 = 0 if bw else 1
    m = " op_sel_hi:[%d,%d]" % (h0, h1) if (bx or bw) else ""
    f = " op_sel_hi:[%d,%d,1]" % (h0, h1) if (bx or bw) else ""
    return (["v_pk_mul_f32 %s, %s, %s%s" % (v(t1,2), v(R,2), v(WR,2), m),
             "v_pk_mul_f32 %s, %s, %s%s" % (v(t2,2), v(R,2), v(WI,2), m)],
            ["v_pk_fma_f32 %s, %s, %s, %s%s neg_lo:[0,1,0] neg_hi:[0,1,0]" % (v(dR,2), v(I,2), v(WI,2), v(t1,2), f),
             "v_pk_fma_f32 %s, %s, %s, %s%s" % (v(dI,2), v(I,2), v(WR,2), v(t2,2), f)])

def emit_kc(a, sD, sL, prio=0, gate=True):
    vT0, vT1, vOff = 1, 2, 3
    vDt, vFrag = 4, 5
    vP = 6
    vWA = 24
    vD = 40
    vFA = 56; vFB = 88
    XR, XI = 120, 130
    MR, MI = 140, 148
    YR, YI = 156, 158
    W2R, W2I, W16R, W16I, M2R, M2I = 160, 162, 164, 166, 168, 170
    TA, TB, TC, TD = 172, 174, 176, 178
    ZR, ZI = 180, 182
    vC = 184
    vS = 192
    vDs, vZero, vPA, vL16, vUg = 204, 205, 206, 207, 240
    vTag, vPoll = 242, 244
    sT, sU, sCnt, sFo = 44, 45, 46, 47
    sSy = 48
    sFl, sXN, sST, sSF = 52, 56, 60, 64
    sFx = 51
    vPoll2 = 248
    sy = Sync(a, sFl, P_DBG, vTag, vPoll, sSy, vZero)
    a.c("================ role: kgen + conv ================")
    a.stamp(0)
    for i in range(18): a("v_mov_b32 v%d, 0" % (vP+i))
    a("v_mov_b32 v%d, 0" % vDt); a("v_mov_b32 v%d, 0" % vDs); a("v_mov_b32 v%d, 0" % vZero)
    a("s_mul_i32 s%d, s%d, 384" % (sT, sD))
    a("v_lshlrev_b32 v%d, 1, v0" % vOff)
    a("v_add_u32 v%d, s%d, v%d" % (vOff, sT, vOff))
    a("s_lshl_b32 s%d, s%d, 1" % (sT, sD))
    a("v_mov_b32 v%d, s%d" % (vT1, sT))
    a("s_waitcnt lgkmcnt(0)")
    a.vmem("global_load_short_d16_hi v%d, v%d, s[%d:%d]" % (vDt, vT1, P_LOGDT, P_LOGDT+1), "dt")
    for st in range(3):
        for k in range(6):
            a.vmem("global_load_short_d16_hi v%d, v%d, s[%d:%d] offset:%d" % (vP+st*6+k, vOff, P_ARE+2*k, P_ARE+2*k+1, 128*st), "p")
    a.vmem("global_load_short_d16_hi v%d, v%d, s[%d:%d]" % (vDs, vT1, P_DSKIP, P_DSKIP+1), "p")
    if getattr(a, "NOKC", False): a("s_endpgm")
    a("s_setprio %d" % prio)
    a.srd_off(sFl, P_WS, WS_FLAGS, FLAGS_BYTES)
    a.srd_off(sXN, P_WS, WS_XN, XN_BYTES)
    a.srd_off(sST, P_WS, WS_ST, ST_BYTES)
    a("s_lshl_b32 s%d, s%d, 12" % (sU, sD))
    a("s_lshl_b32 s%d, s%d, 3" % (sFo, sD))
    a("s_add_u32 s%d, s%d, %d" % (sFo, sFo, FL_S))
    a("v_lshlrev_b32 v%d, 2, v0" % vT0)
    a("v_add_u32 v%d, s%d, v%d" % (vWA, sL, vT0))
    for g in range(1, 16): a("v_add_u32 v%d, %d, v%d" % (vWA+g, g*4*ROWB, vWA))
    a("v_and_b32 v%d, 31, v0" % vT0)
    a("v_mul_u32_u24 v%d, %d, v%d" % (vFrag, ROWB, vT0))
    a("v_lshrrev_b32 v%d, 5, v0" % vT0)
    a("v_lshl_add_u32 v%d, v%d, 4, v%d" % (vFrag, vT0, vFrag))
    a("v_add_u32 v%d, s%d, v%d" % (vFrag, sL, vFrag))
    a("v_lshlrev_b32 v%d, 4, v0" % vL16)
    a("v_lshlrev_b32 v%d, 3, v0" % vUg)
    a("v_min_u32 v%d, 112, v%d" % (vPA, vL16))
    a("s_lshr_b32 s%d, s%d, 4" % (sFx, sD))
    a("s_lshl_b32 s%d, s%d, 7" % (sFx, sFx))
    a("s_add_u32 s%d, s%d, %d" % (sFx, sFx, FL_XT))
    a.srd_off(sSF, P_WS, WS_SF, SF_BYTES)
    for i in range(80): a("v_mov_b32 v%d, 0" % (vD+i))
    Lhi = np.float32(LOG2E); Llo = np.float32(LOG2E - float(Lhi))
    a.wait(vm="dt")
    a.stamp(1); a.cstamp(9)
    a("v_mul_f32 v%d, %s, v%d" % (vS, fhex(Lhi), vDt))
    a("s_mov_b32 s%d, %s" % (sT, fhex(Lhi)))
    a("v_fma_f32 v%d, v%d, s%d, -v%d" % (vS+1, vDt, sT, vS))
    a("v_fmamk_f32 v%d, v%d, %s, v%d" % (vS+1, vDt, fhex(Llo), vS+1))
    a("v_exp_f32 v%d, v%d" % (vS, vS))
    a("v_mul_f32 v%d, %s, v%d" % (vS+1, fhex(0.6931471805599453), vS+1))
    a("v_fma_f32 v%d, v%d, v%d, v%d" % (vS, vS, vS+1, vS))
    a("v_cvt_pk_bf16_f32 v%d, v%d, v%d" % (vDt, vS, vS))
    a("v_and_b32 v%d, 0xffff0000, v%d" % (vDt, vDt))
    a.wait(vm="all")
    a("s_mov_b32 s%d, 0" % sCnt)
    def wr2(row0, r0, r1):
        g, o = row0 // 4, row0 % 4
        return "ds_write2_b32 v%d, v%d, v%d offset0:%d offset1:%d" % (vWA+g, r0, r1, o*68, (o+1)*68)
    def xrow(h, q): return 8*(q >> 2) + 4*h + (q & 3)
    mfmas = ["v_mfma_f32_32x32x16_bf16 %s, %s, %s, %s" % (v(vD,16), v(vFA+4*kk,4), v(vFB+4*kk,4), v(vD,16)) for kk in range(8)]
    P = vP
    setup = []; e = setup.append
    aL, bL = vS, vS+1
    e("v_mul_f32 v%d, v%d, v%d" % (aL, vDt, P+0))
    e("v_mul_f32 v%d, v%d, v%d" % (bL, vDt, P+1))
    e("v_mul_f32 v%d, %s, v%d" % (aL, fhex(LOG2E), aL))
    e("v_mul_f32 v%d, %s, v%d" % (bL, fhex(INV2PI), bL))
    e("v_mul_f32 v%d, v%d, v%d" % (TA, vDt, P+2))
    e("v_mul_f32 v%d, v%d, v%d" % (TB, vDt, P+3))
    e("v_mul_f32 v%d, v%d, v%d" % (XR, P+4, TA))
    e("v_mul_f32 v%d, v%d, v%d" % (XI, P+4, TB))
    e("v_fma_f32 v%d, -v%d, v%d, v%d" % (XR, P+5, TB, XR))
    e("v_fmac_f32 v%d, v%d, v%d" % (XI, P+5, TA))
    evs = [(1.0, TC, TD), (8.0, YR+1, YI+1), (256.0, MR, MI)]
    for j, (l, dr, di) in enumerate(evs):
        m, p, r = vS+2+3*j, vS+3+3*j, vS+4+3*j
        if l == 1.0:
            e("v_exp_f32 v%d, v%d" % (m, aL))
            e("v_rndne_f32 v%d, v%d" % (r, bL))
            e("v_sub_f32 v%d, v%d, v%d" % (p, bL, r))
        else:
            e("v_mul_f32 v%d, %s, v%d" % (m, fhex(l), aL))
            e("v_mul_f32 v%d, %s, v%d" % (p, fhex(l), bL))
            e("v_exp_f32 v%d, v%d" % (m, m))
            e("v_rndne_f32 v%d, v%d" % (r, p))
            e("v_sub_f32 v%d, v%d, v%d" % (p, p, r))
    for i in range(12): e("v_mov_b32 v%d, v%d" % (P+i, P+6+i))
    def gen_body(pk):
        body = []; e = body.append
        for j, (l, dr, di) in enumerate(evs):
            p = vS+3+3*j
            e("v_cos_f32 v%d, v%d" % (dr, p))
            e("v_sin_f32 v%d, v%d" % (di, p))
        e("v_mov_b32 v%d, 1.0" % YR); e("v_mov_b32 v%d, 0" % YI)
        for j, (l, dr, di) in enumerate(evs):
            m = vS+2+3*j
            e("v_mul_f32 v%d, v%d, v%d" % (dr, dr, m))
            e("v_mul_f32 v%d, v%d, v%d" % (di, di, m))
        def square(dr, di, r, i):
            e("v_mul_f32 v%d, v%d, v%d" % (dr, r, r))
            e("v_mul_f32 v%d, v%d, v%d" % (di, r, i))
            e("v_fma_f32 v%d, -v%d, v%d, v%d" % (dr, i, i, dr))
            e("v_add_f32 v%d, v%d, v%d" % (di, di, di))
        square(W16R, W16I, YR+1, YI+1)
        square(W2R, W2I, TC, TD)
        m2r, m2i = (M2R, M2I) if pk else (MR+1, MI+1)
        square(m2r, m2i, MR, MI)
        e("v_mul_f32 v%d, v%d, v%d" % (XR+1, XR, TC))
        e("v_mul_f32 v%d, v%d, v%d" % (XI+1, XR, TD))
        e("v_fma_f32 v%d, -v%d, v%d, v%d" % (XR+1, XI, TD, XR+1))
        e("v_fmac_f32 v%d, v%d, v%d" % (XI+1, XI, TC))
        if pk:
            e("v_mov_b32 v%d, v%d" % (MR+1, M2R)); e("v_mov_b32 v%d, v%d" % (MI+1, M2I))
        def mul2(*args, halves=(0, 1), **kw):
            return pkmul(*args, **kw) if pk else pmul(*args, halves=halves, **kw)
        sidec = []
        for k_ in range(4): sidec.append(mul2(XR+2*k_+2, XI+2*k_+2, XR+2*k_, XI+2*k_, W2R, W2I, TC, TD, bw=True, halves=(0, 1) if k_ < 3 else (0,)))
        for k_ in range(3): sidec.append(mul2(MR+2*k_+2, MI+2*k_+2, MR+2*k_, MI+2*k_, m2r, m2i, TC, TD, bw=True, halves=(0, 1) if k_ < 2 else (0,)))
        for pr in range(16):
            c0 = vC + 2*(pr & 1)
            e("v_cvt_pk_bf16_f32 v%d, v%d, v%d" % (c0, YR, YI))
            e("v_cvt_pk_bf16_f32 v%d, v%d, v%d" % (c0+1, YR+1, YI+1))
            y = mul2(YR, YI, YR, YI, W16R, W16I, TA, TB, bw=True) if pr < 15 else ([], [])
            sc = sidec.pop(0) if sidec else ([], [])
            for t in y[0] + sc[0]: e(t)
            e(wr2(32 + 2*pr, c0, c0+1))
            for t in y[1] + sc[1]: e(t)
        def cvx(dst, r, i): e("v_cvt_pk_bf16_f32 v%d, v%d, -v%d" % (dst, r, i))
        for q in range(0, 8, 2):
            c0 = vC + 4 + (q & 2)
            cvx(c0, XR+q, XI+q); cvx(c0+1, XR+q+1, XI+q+1)
            e(wr2(xrow(0, q), c0, c0+1))
        G = {}
        pool = list(range(vS, vS+12)) + list(range(vC, vC+8))
        def put(row0, n0, n1): e(wr2(row0, G[n0], G[n1]))
        def keep(names):
            for h, nm in enumerate(names):
                if nm is not None:
                    G[nm] = pool.pop(0); cvx(G[nm], ZR+h, ZI+h)
        G[8] = pool.pop(0); cvx(G[8], XR+8, XI+8)
        if pk:
            def prod(xi, mp, names):
                f, s_ = pkmul(ZR, ZI, XR+xi, XI+xi, MR+2*mp, MI+2*mp, TA, TB, bx=True)
                for t in f + s_: e(t)
                keep(names)
            prod(0, 0, (256, 512)); put(xrow(1,0), 256, 256); put(xrow(0,8), 8, 512)
            prod(4, 0, (260, 516)); put(xrow(1,4), 260, 260)
            prod(8, 0, (264, 520)); put(xrow(0,10), 516, 520)
            e("v_mov_b32 v%d, v%d" % (XR+3, XR+6)); e("v_mov_b32 v%d, v%d" % (XI+3, XI+6))
            f, s_ = pkmul(ZR, ZI, XR+2, XI+2, MR, MI, TA, TB, bw=True)
            for t in f + s_: e(t)
            keep((258, 262))
            put(xrow(1,2), 258, 260); put(xrow(1,6), 262, 264)
            prod(0, 1, (768, 1024)); put(xrow(1,8), 264, 768)
            prod(4, 1, (772, None))
            prod(8, 1, (776, 1032)); put(xrow(1,10), 772, 776); put(xrow(0,12), 1024, 1032)
            prod(0, 2, (1280, 1536))
            prod(8, 2, (1288, 1544)); put(xrow(0,14), 1280, 1288); put(xrow(1,12), 1536, 1544)
            e("v_mov_b32 v%d, v%d" % (XR+1, XR+8)); e("v_mov_b32 v%d, v%d" % (XI+1, XI+8))
            f, s_ = pkmul(ZR, ZI, XR, XI, MR+6, MI+6, TA, TB, bw=True)
            for t in f + s_: e(t)
            keep((1792, 1800))
            put(xrow(1,14), 1792, 1800)
        else:
            def prod2(p0, p1):
                fs = []; ss = []
                for h, p in enumerate((p0, p1)):
                    if p is None: continue
                    f, s_ = pmul(ZR+h, ZI+h, XR+p[0], XI+p[0], MR+p[1]-1, MI+p[1]-1, TA, TB, halves=(0,))
                    fs += f; ss += s_
                for t in fs + ss: e(t)
                keep([p[2] if p else None for p in (p0, p1)])
            prod2((0,1,256), (0,2,512)); put(xrow(1,0), 256, 256); put(xrow(0,8), 8, 512)
            prod2((2,1,258), (4,1,260)); put(xrow(1,2), 258, 260); put(xrow(1,4), 260, 260)
            prod2((6,1,262), (8,1,264)); put(xrow(1,6), 262, 264)
            prod2((4,2,516), (8,2,520)); put(xrow(0,10), 516, 520)
            prod2((0,3,768), None); put(xrow(1,8), 264, 768)
            prod2((4,3,772), (8,3,776)); put(xrow(1,10), 772, 776)
            prod2((0,4,1024), (8,4,1032)); put(xrow(0,12), 1024, 1032)
            prod2((0,5,1280), (8,5,1288)); put(xrow(0,14), 1280, 1288)
            prod2((0,6,1536), (8,6,1544)); put(xrow(1,12), 1536, 1544)
            prod2((0,7,1792), (8,7,1800)); put(xrow(1,14), 1792, 1800)
        return body
    NPK = getattr(a, "NPK", 0)
    for pk, upto in ((True, NPK), (False, 3)):
        if (pk and NPK == 0) or (not pk and NPK == 3): continue
        lp = a.newlabel("L_kgen")
        a.label(lp)
        for t in setup: a(t)
        a("s_waitcnt lgkmcnt(0)")
        mf = list(mfmas)
        for cnt, t in enumerate(gen_body(pk)):
            if mf and cnt % (4 if pk else 12) == 0: a(mf.pop(0))
            a(t)
        assert not mf
        for kk in range(8):
            a("ds_read_b128 %s, v%d offset:%d" % (v(vFA+4*kk,4), vFrag, 32*kk))
            a("ds_read_b128 %s, v%d offset:%d" % (v(vFB+4*kk,4), vFrag, 32*kk + 32*ROWB))
        a("s_add_u32 s%d, s%d, 1" % (sCnt, sCnt))
        a("s_cmp_lt_u32 s%d, %d" % (sCnt, upto))
        a("s_cbranch_scc1 %s" % lp)
    a.stamp(2); a.cstamp(10)
    sy.tag_load()
    sy.poll_issue(vL16, "0", FL_LNT, "lnt")
    sy.poll_issue(vPA, "s%d" % sFx, 0, "xt", vPoll2)
    vOA, vOC, vOT = vS, vS+1, vS+2
    a("v_sub_u32 v%d, 1008, v%d" % (vOA, vL16))
    a("v_add_u32 v%d, s%d, v%d" % (vOA, sL, vOA))
    a("v_and_b32 v%d, 0x1f0, v%d" % (vOC, vL16))
    a("v_add_u32 v%d, s%d, v%d" % (vS+3, sL, vOC))
    a("v_lshrrev_b32 v%d, 5, v0" % vT1)
    a("v_lshl_add_u32 v%d, v%d, 10, v%d" % (vOC, vT1, vOC))
    a("v_sub_u32 v%d, 1520, v%d" % (vOC, vOC))
    a("v_add_u32 v%d, s%d, v%d" % (vOC, sL, vOC))
    a("v_cmp_eq_u32 vcc, 0, v0")
    a("v_and_b32 v%d, 1, v0" % vT0)
    a("v_lshlrev_b32 v%d, 4, v%d" % (vOT, vT0))
    a("v_cndmask_b32 v%d, 0, v%d, vcc" % (vDs, vDs))
    a("v_bfe_u32 v%d, v0, 1, 1" % vT1)
    a("v_mul_u32_u24 v%d, %d, v%d" % (vT1, RO_OFF, vT1))
    a("v_add3_u32 v%d, v%d, v%d, s%d" % (vOT, vOT, vT1, sL))
    a("s_waitcnt lgkmcnt(0)")
    for t in mfmas[:4]: a(t)
    sy.tag_check()
    sy.poll_check(vL16, "0", FL_LNT, "lnt", sleep=getattr(a, "KSLEEP", 2))
    sy.poll_check(vPA, "s%d" % sFx, 0, "xt", vPoll2, sleep=getattr(a, "KSLEEP", 2))
    vXu, vSf = 120, 136
    for i in range(8):
        if i < 4: a(mfmas[4+i])
        a.vmem("buffer_load_dwordx2 %s, v%d, s[%d:%d], s%d offen offset:%d sc1" % (v(vXu+2*i,2), vUg, sXN, sXN+3, sU, i*512), "u%d" % i)
        dst = vSf + 8*i if i < 7 else 208
        for h in range(2):
            a("s_mov_b32 s%d, %d" % (sT, i*1024 + h*8192))
            a.vmem("buffer_load_dwordx4 %s, v%d, s[%d:%d], s%d offen sc1" % (v(dst+4*h,4), vL16, sSF, sSF+3, sT), "u%d" % i)
    vA, vB = vWA, vWA+4
    vZr = vWA+8
    for i in range(4): a("v_mov_b32 v%d, 0" % (vZr+i))
    a("ds_write_b128 v%d, %s offset:9216" % (vS+3, v(vZr,4)))
    a("v_and_b32 v%d, 15, v0" % vT0)
    a("v_lshrrev_b32 v%d, 4, v0" % vT1)
    a("v_lshlrev_b32 v%d, 3, v%d" % (vA, vT1))
    a("v_sub_u32 v%d, v%d, v%d" % (vA, vA, vT0))
    a("v_lshlrev_b32 v%d, 1, v%d" % (vA, vA))
    a("v_and_b32 v%d, 1, v0" % (vA+1))
    a("v_cmp_eq_u32 vcc, 1, v%d" % (vA+1))
    a("v_xor_b32 v%d, 1, v%d" % (vA+1, vA+1))
    a("v_mul_u32_u24 v%d, %d, v%d" % (vA+1, RO_OFF + 2, vA+1))
    a("v_add3_u32 v%d, v%d, v%d, s%d" % (vA, vA, vA+1, sL))
    for j in (3, 2, 1, 0):
        a("v_add_u32 v%d, %d, v%d" % (vA+j, 4062 - 1024*j - 512 - 64, vA))
    a("v_lshlrev_b32 v%d, 5, v%d" % (vB, vT0))
    a("v_lshl_add_u32 v%d, v%d, 4, v%d" % (vB, vT1, vB))
    a("v_add_u32 v%d, s%d, v%d" % (vB, sL, vB))
    a("v_add_u32 v%d, %d, v%d" % (vB, CV_UB - 32 - 64, vB))
    d = lambda q: vD + q
    a("v_add_f32 v%d, v%d, v%d" % (d(0), d(0), vDs))
    O = vFA
    def pk(dst, lo, hi): a("v_cvt_pk_bf16_f32 v%d, v%d, v%d" % (dst, lo, hi))
    def st(reg, voff, imm): a("ds_write_b128 v%d, %s offset:%d" % (voff, v(reg,4), imm))
    for i, (lo, hi) in enumerate([(7,6),(5,4),(3,2),(1,0)]): pk(O+i, d(lo), d(hi))
    st(O, vOA, 3072)
    for i, (lo, hi) in enumerate([(8,7),(6,5),(4,3),(2,1)]): pk(O+4+i, d(lo), d(hi))
    st(O+4, vOA, RO_OFF + 3072)
    for i, (lo, hi) in enumerate([(11,11),(10,10),(10,9),(9,9)]): pk(O+8+i, d(lo), d(hi))
    st(O+8, vOA, 2048)
    for i, (lo, hi) in enumerate([(11,11),(11,10),(10,10),(9,9)]): pk(O+12+i, d(lo), d(hi))
    st(O+12, vOA, RO_OFF + 2048)
    for sl, (qa, imm) in enumerate([(12, 512), (14, 0)]):
        x = vS+4+sl
        a("v_cndmask_b32 v%d, v%d, v%d, vcc" % (x, d(qa), d(qa+1)))
        B = O+16+8*sl
        for i, (lo, hi) in enumerate([(d(qa+1),d(qa+1)),(d(qa+1),x),(d(qa),d(qa)),(d(qa),d(qa))]): pk(B+i, lo, hi)
        st(B, vOC, imm)
        for i, (lo, hi) in enumerate([(d(qa+1),d(qa+1)),(d(qa+1),d(qa+1)),(x,d(qa)),(d(qa),d(qa))]): pk(B+4+i, lo, hi)
        st(B+4, vOC, RO_OFF + imm)
    a("v_readlane_b32 s%d, v%d, 0" % (sT, d(0)))
    a("v_and_b32 v%d, 3, v0" % vT0)
    a("v_cmp_eq_u32 vcc, 2, v%d" % vT0)
    a("v_cvt_pk_bf16_f32 v%d, s%d, 0" % (vT1, sT))
    a("s_nop 0")
    a("v_cndmask_b32 v%d, 0, v%d, vcc" % (vZr, vT1))
    st(vZr, vOT, 4096)
    vAcc = 208
    vFr = 56
    vO = 184
    a("v_add_u32 v%d, s%d, v%d" % (vT0, sL, vUg))
    for i in range(8):
        a.wait(vm="u%d" % i)
        S = vSf + 8*i if i < 7 else 208
        X = vXu + 2*i; U = 216 + 4*(i & 1)
        a("v_lshlrev_b32 v%d, 16, v%d" % (U, X)); a("v_and_b32 v%d, 0xffff0000, v%d" % (U+1, X))
        a("v_lshlrev_b32 v%d, 16, v%d" % (U+2, X+1)); a("v_and_b32 v%d, 0xffff0000, v%d" % (U+3, X+1))
        for r in range(4): a("v_fma_f32 v%d, v%d, v%d, v%d" % (U+r, U+r, S+r, S+4+r))
        a("v_cvt_pk_bf16_f32 v%d, v%d, v%d" % (X, U, U+1))
        a("v_cvt_pk_bf16_f32 v%d, v%d, v%d" % (X+1, U+2, U+3))
        a("ds_write_b64 v%d, %s offset:%d" % (vT0, v(X,2), CV_UB + 512*i))
    for i in range(32): a("v_mov_b32 v%d, 0" % (vAcc+i))
    def frA(buf, k1): return vFr + buf*64 + 4*k1
    def frB(buf, mu): return vFr + buf*64 + 32 + 4*mu
    def reads(buf, par):
        out = []
        ex = 64 if par == 0 else 0
        for i in range(8):
            j = i // 2
            o = (128 if i % 2 == 0 else 0) + ex//4
            out.append("ds_read2_b32 %s, v%d offset0:%d offset1:%d" % (v(frA(buf,i),2), vA+j, o, o+1))
            out.append("ds_read2_b32 %s, v%d offset0:%d offset1:%d" % (v(frA(buf,i)+2,2), vA+j, o+2, o+3))
            out.append("ds_read_b128 %s, v%d offset:%d" % (v(frB(buf,i),4), vB, 512*i + ex))
        return out
    def cmfmas(buf):
        out = []
        for sm in range(8):
            for k1 in range(sm+1):
                for mu in range(sm+1):
                    if max(k1, mu) == sm and k1 + mu <= 7:
                        c = k1 + mu
                        out.append("v_mfma_f32_16x16x32_bf16 %s, %s, %s, %s" % (v(vAcc+4*c,4), v(frA(buf,k1),4), v(frB(buf,mu),4), v(vAcc+4*c,4)))
        return out
    if gate:
        gl = a.newlabel("L_gate"); go = a.newlabel("L_gateok")
        a("s_lshl_b32 s%d, s%d, 2" % (sT, S_WAVE))
        a("s_add_u32 s%d, s%d, %d" % (sT, sT, C_BAR - 16))
        a("v_mov_b32 v%d, s%d" % (vT0, sT))
        a("s_mov_b32 s%d, 0" % sCnt)
        a.label(gl)
        a("ds_read_b32 v%d, v%d" % (vT1, vT0))
        a("s_add_u32 s%d, s%d, 1" % (sCnt, sCnt))
        a("s_cmp_gt_u32 s%d, 0x%x" % (sCnt, SPIN_MAX*4))
        a("s_waitcnt lgkmcnt(0)")
        a("s_cbranch_scc1 %s" % go)
        a("v_cmp_le_u32 vcc, 3, v%d" % vT1)
        a("s_cbranch_vccnz %s" % go)
        a("s_sleep 2")
        a("s_branch %s" % gl)
        a.label(go)
    a("s_waitcnt vmcnt(0) lgkmcnt(0)")
    a.vm = []
    a.stamp(3); a.cstamp(11)
    a("s_setprio %d" % getattr(a, "CONVPRIO", 3))
    for ins in reads(0, 0): a(ins)
    a("s_mov_b32 s%d, 0" % sCnt)
    lp = a.newlabel("L_conv")
    a.label(lp)
    for buf in (0, 1):
        a("s_waitcnt lgkmcnt(0)")
        if buf == 1:
            for j in range(4): a("v_subrev_u32 v%d, 128, v%d" % (vA+j, vA+j))
            a("v_subrev_u32 v%d, 128, v%d" % (vB, vB))
        rd = reads(1-buf, 1 if buf == 0 else 0)
        ri = 0
        for m in cmfmas(buf):
            a(m)
            if ri < len(rd):
                a(rd[ri]); ri += 1
    a("s_add_u32 s%d, s%d, 1" % (sCnt, sCnt))
    a("s_cmp_lt_u32 s%d, 4" % sCnt)
    a("s_cbranch_scc1 %s" % lp)
    a.stamp(4); a.cstamp(12)
    a("v_and_b32 v%d, 15, v0" % vT0)
    a("v_lshrrev_b32 v%d, 4, v0" % vT1)
    a("v_lshlrev_b32 v%d, 5, v%d" % (vT0, vT0))
    a("v_lshl_add_u32 v%d, v%d, 3, v%d" % (vT0, vT1, vT0))
    a("v_add_u32 v%d, s%d, v%d" % (vT0, sL, vT0))
    a("v_add_u32 v%d, s%d, v%d" % (vT1, sL, vL16))
    a.nop(2)
    for c in range(8):
        a("v_cvt_pk_bf16_f32 v%d, v%d, v%d" % (vO+2*c, vAcc+4*c, vAcc+4*c+1))
        a("v_cvt_pk_bf16_f32 v%d, v%d, v%d" % (vO+2*c+1, vAcc+4*c+2, vAcc+4*c+3))
        a("ds_write_b64 v%d, %s offset:%d" % (vT0, v(vO+2*c,2), 512*c))
    for p in range(4): a("ds_read_b128 %s, v%d offset:%d" % (v(vAcc+4*p,4), vT1, 1024*p))
    for p in range(4):
        a("s_waitcnt lgkmcnt(%d)" % (3-p))
        a.vmem("buffer_store_dwordx4 %s, v%d, s[%d:%d], s%d offen offset:%d sc1" % (v(vAcc+4*p,4), vL16, sST, sST+3, sU, p*1024), "st")
    a("s_waitcnt vmcnt(0) lgkmcnt(0)")
    sy.signal("s%d" % sFo, 0)
    a.stamp(5)
    a.stamp_dump(14, S_WAVE, 56, (200 << 20))
    a("s_endpgm")
    a.vm = []; a.lg = []
```

```python
from asmlib import *
from common import *
from sync import Sync

def emit_lnt(a, sI, sL, prio=2):
    vT0, vT1, vT2 = 1, 2, 3
    vTag, vZero, vL16, vPoll = 4, 6, 7, 8
    vOff = 12
    vWr = 16
    vRd = 18
    vSo = 22
    vS = 24
    vG = 32
    vRs, vMr = 48, 56
    vU = 64
    vX = 80
    vO = 160
    sT, sOne = 44, 45
    sSy = 48
    sXN, sFl, sSt = 52, 56, 60
    sy = Sync(a, sFl, P_DBG, vTag, vPoll, sSy, vZero)
    a.c("================ role: LN + transpose ================")
    a.stamp(0)
    if getattr(a, "NOLNT", False): a("s_endpgm")
    a("s_setprio %d" % prio)
    a("v_lshrrev_b32 v%d, 4, v0" % vT0)
    a("v_and_b32 v%d, 15, v0" % vT1)
    a("v_mul_u32_u24 v%d, 1280, v%d" % (vOff, vT0))
    a("v_lshl_add_u32 v%d, v%d, 4, v%d" % (vOff, vT1, vOff))
    a("s_mul_i32 s%d, s%d, 20480" % (sT, sI))
    a("v_add_u32 v%d, s%d, v%d" % (vOff, sT, vOff))
    for j in range(1, 4): a("v_add_u32 v%d, %d, v%d" % (vOff+j, j*5120, vOff))
    a("v_mov_b32 v%d, 0" % vZero)
    a("s_waitcnt lgkmcnt(0)")
    nt = a.newlabel("L_notag")
    a("s_cmp_lg_u32 s%d, 0" % sI)
    a("s_cbranch_scc1 %s" % nt)
    sy.publish_tag(vPoll)
    a.vm.pop()
    a.label(nt)
    if getattr(a, "ORDER", False): a("s_barrier")
    if getattr(a, "STATGATE", True):
        gl = a.newlabel("L_sgate"); go = a.newlabel("L_sgateok")
        a("v_mov_b32 v%d, %d" % (vU, C_RDY))
        a("s_mov_b32 s%d, 0" % sOne)
        a.label(gl)
        a("s_sleep 4")
        a("ds_read_b32 v%d, v%d" % (vU+1, vU))
        a("s_add_u32 s%d, s%d, 1" % (sOne, sOne))
        a("s_cmp_gt_u32 s%d, 0x%x" % (sOne, SPIN_MAX))
        a("s_waitcnt lgkmcnt(0)")
        a("s_cbranch_scc1 %s" % go)
        a("v_cmp_eq_u32 vcc, 0, v%d" % (vU+1))
        a("s_cbranch_vccnz %s" % gl)
        a.label(go)
    for j in range(4):
        for c in range(5):
            a.vmem("global_load_dwordx4 %s, v%d, s[%d:%d] offset:%d" % (v(vX+(j*5+c)*4,4), vOff+j, P_X, P_X+1, c*256), "x%d" % j)
    a.srd_off(sXN, P_WS, WS_SF, SF_BYTES)
    a.srd_off(sFl, P_WS, WS_FLAGS, FLAGS_BYTES)
    a.srd_off(sSt, P_WS, WS_STATS, STATS_BYTES)
    a("s_mov_b32 s%d, 0x%x" % (sOne, ONES_BF))
    a("v_lshlrev_b32 v%d, 4, v0" % vL16)
    a("v_lshl_add_u32 v%d, v%d, 2, v%d" % (vSo, vT1, vT0))
    a("s_lshl_b32 s%d, s%d, 4" % (sSy, sI))
    a("v_add_u32 v%d, s%d, v%d" % (vSo, sSy, vSo))
    a("v_lshlrev_b32 v%d, 2, v%d" % (vSo+1, vSo))
    a("v_lshlrev_b32 v%d, 4, v%d" % (vSo, vSo))
    for i in range(8): a("v_mov_b32 v%d, 0" % (vS+i))
    for j in range(4):
        a.wait(vm="x%d" % j)
        if j == 0: a.stamp(1)
        if j == 3: sy.tag_load()
        for k in range(20):
            r = vX + j*20 + k
            a("v_dot2_f32_bf16 v%d, v%d, s%d, v%d" % (vS+2*j, r, sOne, vS+2*j))
            a("v_dot2_f32_bf16 v%d, v%d, v%d, v%d" % (vS+2*j+1, r, r, vS+2*j+1))
    a.nop(3)
    for sh in (8, 4, 2, 1):
        for i in range(8):
            a("v_add_f32_dpp v%d, v%d, v%d row_ror:%d row_mask:0xf bank_mask:0xf" % (vS+i, vS+i, vS+i, sh))
    for j in range(1, 4):
        a("v_cmp_eq_u32 vcc, %d, v%d" % (j, vT1))
        a("s_nop 1")
        a("v_cndmask_b32 v%d, v%d, v%d, vcc" % (vS, vS, vS+2*j))
        a("v_cndmask_b32 v%d, v%d, v%d, vcc" % (vS+1, vS+1, vS+2*j+1))
    m, q = vS, vS+1
    a("v_mul_f32 v%d, %s, v%d" % (m, fhex(1.0/640), m))
    a("v_mul_f32 v%d, %s, v%d" % (q, fhex(1.0/640), q))
    a("v_fma_f32 v%d, -v%d, v%d, v%d" % (q, m, m, q))
    a("v_max_f32 v%d, 0, v%d" % (q, q))
    a("v_cvt_pk_bf16_f32 v%d, -v%d, -v%d" % (vG, m, m))
    a("v_cvt_pk_bf16_f32 v%d, v%d, v%d" % (q, q, q))
    a("v_and_b32 v%d, 0xffff0000, v%d" % (q, q))
    a("v_add_f32 v%d, %s, v%d" % (q, fhex(1e-5), q))
    a("v_cvt_pk_bf16_f32 v%d, v%d, v%d" % (q, q, q))
    a("v_and_b32 v%d, 0xffff0000, v%d" % (q, q))
    a("v_sqrt_f32 v%d, v%d" % (q, q))
    a("v_and_b32 v%d, 0xffff0000, v%d" % (m, vG))
    a("v_cvt_pk_bf16_f32 v%d, v%d, v%d" % (vG+1, q, q))
    a("v_and_b32 v%d, 0xffff0000, v%d" % (q, vG+1))
    a("v_rcp_f32 v%d, v%d" % (vRs, q))
    sy.tag_check()
    a("v_mov_b32 v%d, v%d" % (vG+2, vTag))
    a("v_mov_b32 v%d, v%d" % (vG+3, vTag+1))
    a("v_mul_f32 v%d, v%d, v%d" % (vRs+1, m, vRs))
    a("s_mov_b32 exec_lo, 0x000f000f")
    a("s_mov_b32 exec_hi, 0x000f000f")
    a.vmem("buffer_store_dwordx4 %s, v%d, s[%d:%d], 0 offen sc1" % (v(vG,4), vSo, sSt, sSt+3), "st")
    a("s_mov_b32 s%d, 8192" % sT)
    a.vmem("buffer_store_dword v%d, v%d, s[%d:%d], 0 offen sc1" % (vRs, vSo+1, sXN, sXN+3), "st")
    a.vmem("buffer_store_dword v%d, v%d, s[%d:%d], s%d offen sc1" % (vRs+1, vSo+1, sXN, sXN+3, sT), "st")
    a("s_mov_b64 exec, -1")
    a.stamp(2); a.stamp(3)
    a.wait(vm="all")
    a("s_lshl_b32 s%d, s%d, 3" % (sT, sI))
    sy.signal("s%d" % sT, FL_LNT)
    a.stamp(4)
    a.stamp_dump(5, S_WAVE, 80, (200 << 20))
    a("s_endpgm")
    a.vm = []; a.lg = []
```

```python
from asmlib import *
from common import *
from sync import Sync

def tile_maps(e, sRb, sCb, sRb2, sCb2, sT):
    i = S_WG
    if sRb is not None:
        e("s_bfe_u32 s%d, s%d, 0x20001" % (sRb, i))
        e("s_lshl_b32 s%d, s%d, 2" % (sRb, sRb))
        e("s_lshr_b32 s%d, s%d, 6" % (sT, i))
        e("s_add_u32 s%d, s%d, s%d" % (sRb, sRb, sT))
        e("s_and_b32 s%d, s%d, 1" % (sCb, i))
        e("s_lshl_b32 s%d, s%d, 3" % (sCb, sCb))
        e("s_bfe_u32 s%d, s%d, 0x30003" % (sT, i))
        e("s_add_u32 s%d, s%d, s%d" % (sCb, sCb, sT))
    if sRb2 is not None:
        e("s_bfe_u32 s%d, s%d, 0x20001" % (sRb2, i))
        e("s_lshl_b32 s%d, s%d, 3" % (sRb2, sRb2))
        e("s_lshr_b32 s%d, s%d, 5" % (sT, i))
        e("s_add_u32 s%d, s%d, s%d" % (sRb2, sRb2, sT))
        e("s_and_b32 s%d, s%d, 1" % (sCb2, i))
        e("s_lshl_b32 s%d, s%d, 2" % (sCb2, sCb2))
        e("s_bfe_u32 s%d, s%d, 0x20003" % (sT, i))
        e("s_add_u32 s%d, s%d, s%d" % (sCb2, sCb2, sT))

def k_rotation(e, sT, sT2, sRb, sCb):
    e("s_and_b32 s%d, s%d, 3" % (sT, sRb))
    e("s_mul_i32 s%d, s%d, 3" % (sT, sT))
    e("s_add_u32 s%d, s%d, s%d" % (sT, sT, sCb))
    for _ in range(2):
        e("s_sub_u32 s%d, s%d, 10" % (sT2, sT))
        e("s_cmp_ge_u32 s%d, 10" % sT)
        e("s_cselect_b32 s%d, s%d, s%d" % (sT, sT2, sT))

def k_rotation2(e, sK, sT2, sRb2, sCb2):
    e("s_and_b32 s%d, s%d, 3" % (sT2, sCb2))
    e("s_mul_i32 s%d, s%d, 3" % (sT2, sT2))
    e("s_and_b32 s%d, s%d, 7" % (sK, sRb2))
    e("s_add_u32 s%d, s%d, s%d" % (sT2, sT2, sK))
    e("s_lshr_b32 s%d, s%d, 1" % (sK, sK))
    e("s_add_u32 s%d, s%d, s%d" % (sT2, sT2, sK))
    e("s_sub_u32 s%d, s%d, 12" % (sK, sT2))
    e("s_cmp_ge_u32 s%d, 12" % sT2)
    e("s_cselect_b32 s%d, s%d, s%d" % (sK, sK, sT2))
    e("s_lshl_b32 s%d, s%d, 10" % (sK, sK))

def x_src_offsets(a, vXs, vT0, vT1, vT2):
    a("v_lshrrev_b32 v%d, 4, v0" % vT0)
    a("v_lshrrev_b32 v%d, 3, v0" % vT1)
    a("v_and_b32 v%d, 7, v0" % vT2)
    a("v_xor_b32 v%d, v%d, v%d" % (vT2, vT2, vT0))
    a("v_mul_u32_u24 v%d, 1280, v%d" % (vXs, vT1))
    a("v_lshl_add_u32 v%d, v%d, 4, v%d" % (vXs, vT2, vXs))
    a("v_xor_b32 v%d, 64, v%d" % (vXs+1, vXs))
    a("v_add_u32 v%d, %d, v%d" % (vXs+2, 2*(10240-1024), vXs))
    a("v_add_u32 v%d, %d, v%d" % (vXs+3, 3*(10240-1024), vXs+1))
    a("v_add_u32 v%d, %d, v%d" % (vXs+1, 1*(10240-1024), vXs+1))

def emit_loader(a, plan, T=43, prio=3, ROT=True, RELAHEAD=11):
    vT0, vT1, vT2 = 1, 2, 3
    vTag, vZero, vL16 = 4, 6, 7
    vPoll = 8
    vXs, vWs, vCs, vBs, vAs = 20, 24, 36, 40, 44
    vRel, vPubA, vPub, vRelA, vPA = 60, 64, 65, 66, 67
    sRb, sCb, sRb2, sCb2, sT, sT2, sXo, sWo, sCo, sRel, sPub, sNeed, sAll = 40, 41, 42, 43, 44, 45, 46, 47, 48, 49, 50, 51, 52
    sSy = 54
    sRet = 58
    sXs, sW1, sW2, sW2F, sAct, sFl = 60, 64, 68, 72, 76, 4
    sBo, sAo, sFw, sFc = 53, 57, 46, 47
    sKx, sKw = 100, 101
    sy = Sync(a, sFl, P_DBG, vTag, vPoll, sSy, vZero)
    a.c("================ role: loader ================")
    a.stamp(0)
    if a.PROF:
        a("s_mov_b32 s86, 0"); a("s_mov_b32 s87, 0")
    a("s_setprio %d" % getattr(a, "LDPRIO0", 0))
    tile_maps(a, sRb, sCb, None, None, sT)
    for z in range(3):
        a("v_add_u32 v%d, %d, v0" % (vT2, 64*z))
        a("v_mul_u32_u24 v%d, 5462, v%d" % (vWs+z, vT2))
        a("v_lshrrev_b32 v%d, 16, v%d" % (vWs+z, vWs+z))
        a("v_mul_u32_u24 v%d, %d, v%d" % (vWs+z, 3072-192, vWs+z))
        a("v_lshl_add_u32 v%d, v0, 4, v%d" % (vWs+z, vWs+z))
    a("s_mul_i32 s%d, s%d, 192" % (sWo, sCb))
    k_rotation(a, sT, sT2, sRb, sCb)
    a("s_mul_i32 s%d, s%d, %d" % (sKw, sT, 64*3072))
    a("s_add_u32 s%d, s%d, %d" % (sT, sT, plan.NX_OWN))
    a("s_sub_u32 s%d, s%d, 10" % (sT2, sT))
    a("s_cmp_ge_u32 s%d, 10" % sT)
    a("s_cselect_b32 s%d, s%d, s%d" % (sT, sT2, sT))
    a("s_lshl_b32 s%d, s%d, 7" % (sKx, sT))
    a("s_waitcnt lgkmcnt(0)")
    a.srd(sW1, P_W1, 640*1536*2)
    st8 = {"n": 0, "pend": [], "issued": 0}
    def publish(k):
        a("s_max_u32 s%d, s%d, %d" % (sPub, sPub, k))
        a("v_mov_b32 v%d, s%d" % (vPub, sPub))
        a.lds("ds_write_b32 v%d, v%d" % (vPubA, vPub), "pub")
    def after_issue():
        while st8["pend"] and st8["n"] - st8["pend"][0][1] >= T:
            k, last = st8["pend"].pop(0)
            a("s_waitcnt vmcnt(%d)" % (st8["n"] - last))
            publish(k)
    def vm(txt):
        a(txt); st8["n"] += 1
        after_issue()
    def drain():
        while st8["pend"]:
            k, last = st8["pend"].pop(0)
            a("s_waitcnt vmcnt(%d)" % min(63, st8["n"] - last))
            publish(k)
    def rel_read():
        a.lds("ds_read_b128 %s, v%d" % (v(vRel,4), vRelA), "rel")
    def rel_check(need):
        if getattr(a, "NOREL", False): return
        ok = a.newlabel("L_relok")
        a.wait(lg="rel")
        a("v_min3_u32 v%d, v%d, v%d, v%d" % (vRel, vRel, vRel+1, vRel+2))
        a("v_min_u32 v%d, v%d, v%d" % (vRel, vRel, vRel+3))
        a("s_mov_b32 s%d, %d" % (sNeed, need))
        a("v_readfirstlane_b32 s%d, v%d" % (sRel, vRel))
        a("s_mov_b32 s%d, %d" % (sAll, st8["issued"]))
        a("s_cmp_ge_u32 s%d, %d" % (sRel, need))
        a("s_cbranch_scc1 %s" % ok)
        a("s_call_b64 s[%d:%d], L_ld_slow" % (sRet, sRet+1))
        a.label(ok)
    def adv(r, step, wrap):
        return ["s_add_u32 s%d, s%d, %d" % (r, r, step), "s_cmp_ge_u32 s%d, %d" % (r, wrap), "s_cselect_b32 s%d, 0, s%d" % (r, r)]
    def instrs(x):
        out = []
        if x.kind == "C":
            for i in range(8):
                pre = []
                if i % 4 == 0:
                    pre = ["s_mov_b32 m0, %d" % (L_W + 3*12288 + (i//4)*4096), "s_add_u32 s%d, s%d, 20480" % (sCo, sCo) if i else "s_nop 0"]
                out.append((pre, "buffer_load_dwordx4 v%d, s[%d:%d], s%d offen offset:%d lds" % (vCs + i % 4, sW2, sW2+3, sCo, (i % 4)*1024)))
        elif x.kind == "X":
            for w in range(4):
                for i in range(4):
                    pre = []
                    if i == 0:
                        pre = ["s_mov_b32 m0, %d" % (L_X + (x.idx % 3)*16384 + w*4096), ("s_add_u32 s%d, s%d, s%d" % (sT, sXo, sKx)) if w == 0 else ("s_add_u32 s%d, s%d, 40960" % (sT, sT))]
                    if w == 1 and i == 1: pre = adv(sKx, 128, 1280)
                    out.append((pre, "buffer_load_dwordx4 v%d, s[%d:%d], s%d offen offset:%d lds" % (vXs+i, sXs, sXs+3, sT, i*1024)))
        elif x.kind == "W":
            for z in range(12):
                pre = []
                if z % 3 == 0:
                    pre = ["s_mov_b32 m0, %d" % (L_W + (x.idx % 4)*12288 + (z//3)*3072), ("s_add_u32 s%d, s%d, s%d" % (sT, sWo, sKw)) if z == 0 else ("s_add_u32 s%d, s%d, %d" % (sT, sT, 16*3072))]
                if z == 1: pre = adv(sKw, 64*3072, 640*3072)
                out.append((pre, "buffer_load_dwordx4 v%d, s[%d:%d], s%d offen offset:%d lds" % (vWs + z % 3, sW1, sW1+3, sT, (z % 3)*1024)))
        elif x.kind == "B":
            for n, r in enumerate(x.rows):
                for w in range(4):
                    pre = []
                    if w == 0:
                        pre = ["s_mov_b32 m0, %d" % (r*4096), "s_add_u32 s%d, s%d, %d" % (sT, sT, 48*1024)]
                        if n == 0:
                            pre = ["s_add_u32 s%d, s%d, %d" % (sT, sKw, x.idx*1024), "s_sub_u32 s%d, s%d, %d" % (sT2, sT, 12*1024), "s_cmp_ge_u32 s%d, %d" % (sT, 12*1024),
                                   "s_cselect_b32 s%d, s%d, s%d" % (sT, sT2, sT), "s_mov_b32 m0, %d" % (r*4096), "s_add_u32 s%d, s%d, s%d" % (sT, sT, sBo)]
                    out.append((pre, "buffer_load_dwordx4 v%d, s[%d:%d], s%d offen offset:%d sc1 lds" % (vBs+w, sW2F, sW2F+3, sT, w*1024)))
        elif x.kind == "S":
            for i in range(10):
                pre = ["s_mov_b32 m0, %d" % (x.rows[0]*4096 + i*1024), "s_add_u32 s%d, s%d, %d" % (sT, sT, 8*4096) if i else "s_nop 0"]
                out.append((pre, "buffer_load_dwordx4 v%d, s[%d:%d], s%d offen sc1 lds" % (vCs, sW2, sW2+3, sT)))
        return out
    items = plan.items
    cur_rel = 0
    for k, x in enumerate(items):
        nxt = items[k+1] if k + 1 < len(items) else None
        if x.kind == "B" and x.idx == 0:
            a("s_waitcnt vmcnt(%d)" % (st8["n"] - st8["pollpos"]))
            okl = a.newlabel("L_w2ok"); sp = a.newlabel("L_w2spin"); ck = a.newlabel("L_w2chk")
            if not getattr(a, "NOPOLL", False):
                a("s_mov_b32 s%d, 0" % (sSy+2))
                a("s_branch %s" % ck)
                a.label(sp)
                a("s_waitcnt vmcnt(0)")
                publish(st8["issued"])
                a("s_sleep %d" % getattr(a, "LSLEEP", 1))
                for t in st8["polltxt"]: a(t)
                a("s_add_u32 s%d, s%d, 1" % (sSy+2, sSy+2))
                a("s_cmp_gt_u32 s%d, 0x%x" % (sSy+2, SPIN_MAX))
                a("s_waitcnt vmcnt(0)")
                a("s_cbranch_scc1 %s" % okl)
                a.label(ck)
                a("v_cmp_eq_u32 vcc, 0, v%d" % vTag)
                for q in range(6):
                    a("v_cmp_ne_u64 s[%d:%d], %s, %s" % (sSy, sSy+1, v(vPoll+2*q,2), v(vTag,2)))
                    a("s_or_b64 vcc, vcc, s[%d:%d]" % (sSy, sSy+1))
                a("s_cbranch_scc1 %s" % sp)
                a.label(okl)
            a.stamp(2)
        if x.kind == "ACT":
            drain()
            a.stamp(3)
            a.vm = []
            sy.poll_issue(vPA, "s%d" % sFc, 0, "pact"); st8["n"] += 1
            sy.poll_check(vPA, "s%d" % sFc, 0, "pact", sleep=getattr(a, "LSLEEP", 1))
            publish(k+1); st8["issued"] = k + 1
            a.stamp(4)
            rel_read()
            continue
        if x.kind == "S":
            a.srd_off(sW2, P_WS, WS_ST, ST_BYTES)
            a("v_lshrrev_b32 v%d, 3, v0" % vT0)
            a("v_and_b32 v%d, 7, v0" % vT1)
            a("v_lshlrev_b32 v%d, 12, v%d" % (vCs, vT0))
            a("v_lshl_add_u32 v%d, v%d, 4, v%d" % (vCs, vT1, vCs))
            a("v_min_u32 v%d, %d, v%d" % (vPA, 39*16, vL16))
            a("s_mul_i32 s%d, s%d, 640" % (sFc, sCb2))
            a("s_add_u32 s%d, s%d, %d" % (sFc, sFc, FL_S))
            a.vm = []
            sy.poll_issue(vPA, "s%d" % sFc, 0, "ps"); st8["n"] += 1
            drain()
            sy.poll_check(vPA, "s%d" % sFc, 0, "ps", sleep=getattr(a, "LSLEEP", 1))
            a("s_mul_i32 s%d, s%d, %d" % (sT, sCb2, 80*4096))
            a("s_lshl_b32 s%d, s%d, 7" % (sT2, sRb2))
            a("s_add_u32 s%d, s%d, s%d" % (sT, sT, sT2))
        if x.need_rel > cur_rel:
            rel_check(x.need_rel); cur_rel = x.need_rel
        ins = instrs(x)
        for j, (pre, txt) in enumerate(ins):
            if nxt is not None and nxt.need_rel > cur_rel and j == max(0, len(ins) - RELAHEAD): rel_read()
            for p in pre: a(p)
            if j == len(ins) - 1:
                a(txt); st8["n"] += 1
                st8["pend"].append((k+1, st8["n"])); st8["issued"] = k + 1
                after_issue()
            else:
                vm(txt)
        if x.kind == "W" and x.idx in (2, 4, 6, 8): a.stamp(8 + (x.idx-2)//2)
        if a.PROF and x.kind == "B" and x.idx == 0:
            a("s_mov_b32 s92, s86"); a("s_mov_b32 s93, s87")
        if k == 0:
            a("s_mul_i32 s%d, s%d, 13108" % (sT, S_WG))
            a("s_lshr_b32 s%d, s%d, 16" % (sT, sT))
            a("s_mul_i32 s%d, s%d, 5" % (sT2, sT))
            a("s_sub_u32 s%d, s%d, s%d" % (sT2, S_WG, sT2))
            a("s_mul_i32 s%d, s%d, 40960" % (sCo, sT))
            a("s_lshl_b32 s%d, s%d, 8" % (sT2, sT2))
            a("s_add_u32 s%d, s%d, s%d" % (sCo, sCo, sT2))
            a("v_lshrrev_b32 v%d, 4, v0" % vT0)
            a("v_and_b32 v%d, 15, v0" % vT1)
            a("v_mul_u32_u24 v%d, 1280, v%d" % (vCs, vT0))
            a("v_lshl_add_u32 v%d, v%d, 4, v%d" % (vCs, vT1, vCs))
            for i in range(1, 4): a("v_add_u32 v%d, %d, v%d" % (vCs+i, i*(5120-1024), vCs))
            x_src_offsets(a, vXs, vT0, vT1, vT2)
            a("s_mul_i32 s%d, s%d, %d" % (sXo, sRb, 128*1280))
            a.srd(sW2, P_W2, W2F_BYTES)
            a.srd(sXs, P_X, 2048*640*2)
            a("v_lshlrev_b32 v%d, 2, v0" % vPubA)
            a("v_add_u32 v%d, %d, v%d" % (vPubA, C_DUMMY, vPubA))
            a("v_mov_b32 v%d, %d" % (vT0, C_RDY))
            a("v_cmp_eq_u32 vcc, 0, v0")
            a("v_mov_b32 v%d, %d" % (vRelA, C_REL))
            a("s_mov_b32 s%d, 0" % sPub)
            a("v_cndmask_b32 v%d, v%d, v%d, vcc" % (vPubA, vPubA, vT0))
            a.stamp(1)
        if k == getattr(a, 'LDDROP', 2): a("s_setprio %d" % prio)
        if k == 3:
            tile_maps(a, None, None, sRb2, sCb2, sT)
            a.srd_off(sW2F, P_WS, WS_W2F, W2F_BYTES)
            a.srd_off(sFl, P_WS, WS_FLAGS, FLAGS_BYTES)
            a("v_lshlrev_b32 v%d, 4, v0" % vL16)
            a("v_mov_b32 v%d, 0" % vZero)
            for w in range(4):
                a("v_add_u32 v%d, %d, v%d" % (vBs+w, w*11*1024, vL16))
            a("s_mul_i32 s%d, s%d, %d" % (sBo, sCb2, 5*48*1024))
            a("v_min_u32 v%d, %d, v%d" % (vPA, 15*16, vL16))
        if x.kind == "W" and x.idx == 9:
            a("s_mul_i32 s%d, s%d, 5" % (sT2, sCb2))
            a("s_lshr_b32 s%d, s%d, 3" % (sT2, sT2))
            a("s_min_u32 s%d, s%d, 3" % (sT2, sT2))
            a("s_mul_i32 s%d, s%d, 1536" % (sT2, sT2))
            a("s_add_u32 s%d, s%d, %d" % (sCo, sT2, FL_W2F))
            txt = ["global_load_dwordx2 %s, v%d, s[%d:%d] sc1" % (v(vTag,2), vZero, P_DBG, P_DBG+1)]
            txt += ["buffer_load_dwordx4 %s, v%d, s[%d:%d], s%d offen offset:%d sc1" % (v(vPoll+4*q,4), vL16, sFl, sFl+3, sCo, q*1024) for q in range(3)]
            st8["polltxt"] = txt
            for t in txt: vm(t)
            st8["pollpos"] = st8["n"]
            k_rotation2(a, sKw, sT2, sRb2, sCb2)
            a("s_lshl_b32 s%d, s%d, 8" % (sFc, sRb2))
            a("s_add_u32 s%d, s%d, %d" % (sFc, sFc, FL_ACT))
    drain()
    a.stamp(5)
    a.stamp_dump(15, S_WAVE, 68, (200 << 20))
    a("s_endpgm")
    a.label("L_ld_slow")
    if a.PROF: a("s_add_u32 s86, s86, 1")
    a("s_mov_b32 s%d, 0" % (sSy+2))
    a.label("L_ld_slow_loop")
    a("s_cmp_lg_u32 s%d, 3" % (sSy+2))
    a("s_cbranch_scc1 L_ld_slow_nodrain")
    if a.PROF: a("s_add_u32 s87, s87, 1")
    a("s_waitcnt vmcnt(0)")
    a("s_max_u32 s%d, s%d, s%d" % (sPub, sPub, sAll))
    a("v_mov_b32 v%d, s%d" % (vPub, sPub))
    a("ds_write_b32 v%d, v%d" % (vPubA, vPub))
    a.label("L_ld_slow_nodrain")
    if getattr(a, "CSLEEP", 0): a("s_sleep %d" % a.CSLEEP)
    rel_read()
    a("s_add_u32 s%d, s%d, 1" % (sSy+2, sSy+2))
    a("s_waitcnt lgkmcnt(0)")
    a("v_min3_u32 v%d, v%d, v%d, v%d" % (vRel, vRel, vRel+1, vRel+2))
    a("v_min_u32 v%d, v%d, v%d" % (vRel, vRel, vRel+3))
    a("s_cmp_gt_u32 s%d, 0x%x" % (sSy+2, SPIN_MAX*16))
    a("v_readfirstlane_b32 s%d, v%d" % (sRel, vRel))
    a("s_cbranch_scc1 L_ld_slow_ret")
    a("s_cmp_lt_u32 s%d, s%d" % (sRel, sNeed))
    a("s_cbranch_scc1 L_ld_slow_loop")
    a.label("L_ld_slow_ret")
    a("s_setpc_b64 s[%d:%d]" % (sRet, sRet+1))
    a.vm = []; a.lg = []
```

```python
import sys
from asmlib import *
from common import *
from plan import Plan
from loader import emit_loader
from gemm4 import emit_compute
from kc4 import emit_kc
from lnt4 import emit_lnt
NAME = "recurrent_scan__ssm_conv_s4__dense_activation_mish__prompt_kernel"
HDR = open("recurrent_scan__ssm_conv_s4__dense_activation_mish__prompt.s.ref").read().split("; Override launch")[0]
def build(path, prof=False, nopoll=False, noaux=False, T=12, cprio=1, kprio=2, lprio=3, ldprio=0, rot=True, NB_REG=3, NX_OWN=10, norel=False, noch=False, ksleep=16, lsleep=6, **flags):
    a = Asm()
    a.PROF = prof; a.NOPOLL = nopoll; a.NOREL = norel; a.NOCH = noch; a.KSLEEP = ksleep; a.LSLEEP = lsleep
    for k_, v_ in flags.items(): setattr(a, k_, v_)
    plan = Plan(NB_REG, NX_OWN)
    a.raw(HDR.rstrip())
    a.raw("; @launch grid=(256,1,1) block=(512,1,1) lds=%d" % LDS_BYTES)
    a.raw('.amdgcn_target "amdgcn-amd-amdhsa--gfx950"')
    a.raw(".text")
    kernel_begin(a, NAME)
    a("s_cmp_ge_u32 s2, 256")
    a("s_cbranch_scc1 L_end")
    if prof:
        a("s_memrealtime s[94:95]"); a("s_waitcnt lgkmcnt(0)")
    if not getattr(a, "LATEARG", True):
        a("s_load_dwordx16 s[8:23], s[0:1], 0")
        a("s_load_dwordx16 s[24:39], s[0:1], 64")
    a("v_lshrrev_b32 v1, 6, v0")
    if getattr(a, "CODEPF", False):
        a("s_cmp_ge_u32 s2, 32")
        a("s_cbranch_scc1 L_nopf")
        a("s_getpc_b64 s[4:5]")
        a("v_lshlrev_b32 v2, 6, v0")
        a("global_load_dword v255, v2, s[4:5]")
        a.label("L_nopf")
    a("v_and_b32 v0, 63, v0")
    a("v_lshlrev_b32 v2, 2, v0")
    a("v_add_u32 v2, %d, v2" % L_CTL)
    a("v_readfirstlane_b32 s3, v1")
    a("v_mov_b32 v1, 0")
    a("ds_write_b32 v2, v1")
    a("s_waitcnt lgkmcnt(0)")
    if getattr(a, "LATEARG", True):
        a("s_load_dwordx16 s[8:23], s[0:1], 0")
        a("s_load_dwordx16 s[24:39], s[0:1], 64")
    a("s_barrier")
    a("s_cmp_lt_u32 s3, 4")
    a("s_cbranch_scc1 L_compute")
    a("s_cmp_eq_u32 s3, 4")
    a("s_cbranch_scc1 L_loader")
    if noaux: a("s_endpgm")
    a("s_setprio 3")
    a("s_sub_u32 s41, s3, 5")
    a("s_mul_i32 s40, s41, 20480")
    a("s_add_u32 s40, s40, %d" % L_AUX)
    a("s_lshl_b32 s42, s2, 1")
    a("s_add_u32 s42, s42, s41")
    a("s_cmp_lt_u32 s3, 7")
    a("s_cbranch_scc1 L_kc")
    a("s_add_u32 s42, s2, 512")
    a("s_cmp_lt_u32 s2, 128")
    a("s_cbranch_scc1 L_kc")
    a("s_bfe_u32 s42, s2, 0x20001")
    a("s_lshl_b32 s42, s42, 5")
    a("s_bfe_u32 s41, s2, 0x40003")
    a("s_lshl_b32 s41, s41, 1")
    a("s_add_u32 s42, s42, s41")
    a("s_and_b32 s41, s2, 1")
    a("s_add_u32 s42, s42, s41")
    emit_lnt(a, 42, 40, lprio)
    a.label("L_kc")
    emit_kc(a, 42, 40, kprio, gate=not getattr(a, 'KNOGATE', False))
    a.label("L_loader")
    emit_loader(a, plan, T, ldprio, rot)
    a.label("L_compute")
    emit_compute(a, plan, cprio)
    a.label("L_end")
    a("s_endpgm")
    a.raw('.section .rodata,"a"')
    a.raw(".p2align 6")
    a.raw(kernel_desc(NAME, 256, 102))
    open(path, "w").write(a.text())
if __name__ == "__main__":
    build("s4.s")
    build("s4_prof.s", prof=True)
    build("s4_np.s", prof=True, nopoll=True, noaux=True)
    build("s4_v1.s", STATGATE=False)
```

```python
from asmlib import *
from common import *
from sync import Sync
from loader import tile_maps, k_rotation, k_rotation2, x_src_offsets

G2_P = 61440
G2_PW = 3072
G2_PRS = 176

def emit_compute(a, plan, prio=1):
    vT0, vT1, vT2 = 1, 2, 3
    vTag, vZero, vL16, vPoll = 4, 6, 7, 8
    vRelA, vRv, vCtl, vBarA = 12, 13, 14, 15
    vXr, vWr = 16, 20
    vSt, vSo, vCw, vCr = 24, 25, 26, 27
    vB1 = 28
    vC1, vC2, vC3 = 32, 34, 36
    vOne = 36
    vBar = vPoll
    vAcc = 40
    WB = [112, 124, 136]
    vXF = [148, 164]
    vCs4 = [88, 92, 96]
    vP, vAp, vBp = 180, 192, 204
    sRb, sCb, sRb2, sCb2, sT, sT2, sM, sAo, sRdy, sFa, sFs, sFw = 40, 41, 42, 43, 44, 45, 46, 47, 48, 49, 50, 51
    sSy = 52
    sRet = 100
    sK = 56
    sAct, sFl, sStt, sW2F, sOut, sST, sXs = 60, 64, 68, 72, 76, 4, 12
    sA, sB, sK2, sK3 = 16, 20, 25, 10
    W = S_WAVE
    sy = Sync(a, sFl, P_DBG, vTag, vPoll, sSy, vZero)
    a.c("================ role: compute (gemm1 + gemm2) ================")
    a.stamp(0)
    if a.PROF: a("s_mov_b32 s88, 0")
    a("v_lshlrev_b32 v%d, 2, v0" % vT0)
    a("v_add_u32 v%d, %d, v%d" % (vRelA, C_DUMMY, vT0))
    a("v_mov_b32 v%d, 0" % vZero)
    if prio: a("s_setprio %d" % prio)
    a("s_lshl_b32 s%d, s%d, 2" % (sT, W))
    a("s_add_u32 s%d, s%d, %d" % (sT, sT, C_REL))
    a("v_mov_b32 v%d, s%d" % (vT1, sT))
    a("v_cmp_eq_u32 vcc, 0, v0")
    a("v_mov_b32 v%d, %d" % (vCtl, L_CTL))
    a("s_mov_b32 s%d, 0" % sRdy)
    a("v_cndmask_b32 v%d, v%d, v%d, vcc" % (vRelA, vRelA, vT1))
    tile_maps(a, sRb, sCb, None, None, sT)
    vXd = 100
    sXb, sXk, sXm = 16, 17, 18
    x_src_offsets(a, vXd, vT0, vT1, vT2)
    k_rotation(a, sM, sT2, sRb, sCb)
    a("s_lshl2_add_u32 s%d, s%d, s%d" % (sT, sRb, W))
    a("s_waitcnt lgkmcnt(0)")
    a("s_mul_i32 s%d, s%d, 40960" % (sXb, sT))
    a("s_lshl_b32 s%d, s%d, 12" % (sXm, W))
    a("s_lshl_b32 s%d, s%d, 7" % (sXk, sM))
    a.srd(sXs, P_X, 2048*640*2)
    def xdma(st, i):
        if i == 0:
            a("s_add_u32 m0, s%d, %d" % (sXm, L_X + (st % 3)*16384))
            a("s_add_u32 s%d, s%d, s%d" % (sXb+3, sXb, sXk))
        a.vmem("buffer_load_dwordx4 v%d, s[%d:%d], s%d offen offset:%d lds" % (vXd+i, sXs, sXs+3, sXb+3, i*1024), "X%d" % st)
        if i == 0:
            a("s_add_u32 s%d, s%d, 128" % (sXk, sXk)); a("s_cmp_ge_u32 s%d, 1280" % sXk); a("s_cselect_b32 s%d, 0, s%d" % (sXk, sXk))
    for st in range(min(3, plan.NX_OWN)):
        for i in range(4): xdma(st, i)
        if st == 0 and getattr(a, "ORDER", False): a("s_barrier")
    if getattr(a, "L2PF", False):
        a("s_lshr_b32 s%d, s%d, 3" % (sT, S_WG))
        a("s_lshl2_add_u32 s%d, s%d, s%d" % (sT, sT, W))
        a("s_mul_i32 s%d, s%d, 5120" % (sT2, sT))
        a("s_lshr_b32 s%d, s%d, 2" % (sM, sRb))
        a("s_mul_i32 s%d, s%d, %d" % (sM, sM, 512*1280))
        a("s_add_u32 s%d, s%d, s%d" % (sT2, sT2, sM))
        a("v_min_u32 v%d, 39, v0" % vT2)
        a("v_lshlrev_b32 v%d, 7, v%d" % (vT2, vT2))
        a.vmem("buffer_load_dword v%d, v%d, s[%d:%d], s%d offen" % (vPoll+2, vT2, sXs, sXs+3, sT2), "touch")
        a("v_min_u32 v%d, 59, v0" % vT2)
        a("v_mul_u32_u24 v%d, 5462, v%d" % (vT1, vT2))
        a("v_lshrrev_b32 v%d, 16, v%d" % (vT1, vT1))
        a("v_mul_u32_u24 v%d, 1536, v%d" % (vT1, vT1))
        a("v_lshl_add_u32 v%d, v%d, 7, v%d" % (vT2, vT2, vT1))
        a("s_mul_i32 s%d, s%d, %d" % (sT2, sT, 5*3072))
        a("s_and_b32 s%d, s%d, 1" % (sM, S_WG))
        a("s_mul_i32 s%d, s%d, 1536" % (sM, sM))
        a("s_add_u32 s%d, s%d, s%d" % (sT2, sT2, sM))
        a.srd(sOut, P_W1, 640*1536*2)
        a.vmem("buffer_load_dword v%d, v%d, s[%d:%d], s%d offen" % (vPoll+3, vT2, sOut, sOut+3, sT2), "touch")
    TS = getattr(a, "TOUCH", 0)
    if TS:
        a("v_lshlrev_b32 v%d, %d, v0" % (vT2, TS))
        a("s_lshl_b32 s%d, s%d, %d" % (sT, W, TS + 6))
        a("v_add_u32 v%d, s%d, v%d" % (vT2, sT, vT2))
        a("v_add_u32 v%d, %d, v%d" % (vT2, (1 << TS) - 128, vT2))
        a.srd(sOut, P_WS, 32 << 20)
        a.vmem("buffer_load_dword v%d, v%d, s[%d:%d], 0 offen sc1" % (vPoll+2, vT2, sOut, sOut+3), "touch")
        a.srd(sStt, P_OUT, 2048*640*2)
        a.vmem("buffer_load_dword v%d, v%d, s[%d:%d], 0 offen sc1" % (vPoll+3, vT2, sStt, sStt+3), "touch")
    if getattr(a, "NOREL", False): a("s_endpgm")
    ool = []
    st_ = {"peeked": False}
    vPk = 31
    def peek():
        st_["peeked"] = True
        a.lds("ds_read_b32 v%d, v%d" % (vPk, vCtl), "peek")
    def ready(name):
        if name not in plan.rdy:
            a.wait(vm=name); return
        k = plan.rdy[name]
        ok = a.newlabel("L_rok"); sp = a.newlabel("L_rspin")
        if "peek" in a.lg or st_["peeked"]:
            a.wait(lg="peek")
            a("v_readfirstlane_b32 s%d, v%d" % (sRdy, vPk))
            st_["peeked"] = False
        a("s_cmp_ge_u32 s%d, %d" % (sRdy, k))
        a("s_cbranch_scc0 %s" % sp)
        a.label(ok)
        ool.append((sp, ok, k))
    def release(name):
        a("v_mov_b32 v%d, %d" % (vRv, plan.rel[name]))
        a.lds("ds_write_b32 v%d, v%d" % (vRelA, vRv), "rel")
    def bar_arrive(ep):
        a("v_mov_b32 v%d, %d" % (vRv, ep))
        a.lds("ds_write_b32 v%d, v%d offset:16" % (vRelA, vRv), "rel")
    def bar_wait(ep, off=32):
        sp = a.newlabel("L_bspin"); ok = a.newlabel("L_bok")
        a("s_mov_b32 s%d, 0" % (sSy+2))
        a.label(sp)
        a("ds_read_b128 %s, v%d offset:%d" % (v(vBar,4), vCtl, off))
        a("s_add_u32 s%d, s%d, 1" % (sSy+2, sSy+2))
        a("s_cmp_gt_u32 s%d, 0x%x" % (sSy+2, SPIN_MAX*16))
        a("s_waitcnt lgkmcnt(0)")
        a("v_min3_u32 v%d, v%d, v%d, v%d" % (vBar, vBar, vBar+1, vBar+2))
        a("v_min_u32 v%d, v%d, v%d" % (vBar, vBar, vBar+3))
        a("s_cbranch_scc1 %s" % ok)
        a("v_cmp_gt_u32 vcc, %d, v%d" % (ep, vBar))
        a("s_cbranch_vccnz %s" % sp)
        a.label(ok)
        a.lg = []
    def bar_peek():
        a.lds("ds_read_b128 %s, v%d offset:32" % (v(vBar,4), vCtl), "bpk")
    def bar_check(ep):
        ok = a.newlabel("L_bc")
        a.wait(lg="bpk")
        a("v_min3_u32 v%d, v%d, v%d, v%d" % (vBar, vBar, vBar+1, vBar+2))
        a("v_min_u32 v%d, v%d, v%d" % (vBar, vBar, vBar+3))
        a("v_cmp_gt_u32 vcc, %d, v%d" % (ep, vBar))
        a("s_cbranch_vccz %s" % ok)
        keep = list(a.lg)
        bar_wait(ep)
        a.lg = keep
        a.label(ok)
    tile_maps(a, None, None, sRb2, sCb2, sT)
    a("v_lshlrev_b32 v%d, 4, v0" % vL16)
    a("v_and_b32 v%d, 31, v0" % vT0)
    a("v_lshrrev_b32 v%d, 5, v0" % vT1)
    a("v_lshlrev_b32 v%d, 1, v%d" % (vT2, vT0))
    a("s_mul_i32 s%d, s%d, 192" % (sT, sCb))
    a("v_add_u32 v%d, s%d, v%d" % (vT2, sT, vT2))
    for p in range(3): a.vmem("global_load_ushort v%d, v%d, s[%d:%d] offset:%d" % (vB1+p, vT2, P_B1, P_B1+1, 64*p), "b1")
    a("s_lshl_b32 s%d, s%d, 12" % (sT, W))
    a("s_add_u32 s%d, s%d, %d" % (sT, sT, L_X))
    a("v_bfe_u32 v%d, v0, 1, 3" % vT2)
    a("v_xor_b32 v%d, v%d, v%d" % (vT2, vT2, vT1))
    a("v_lshlrev_b32 v%d, 4, v%d" % (vT2, vT2))
    a("v_lshl_add_u32 v%d, v%d, 7, v%d" % (vT2, vT0, vT2))
    a("v_add_u32 v%d, s%d, v%d" % (vT2, sT, vT2))
    for jl in range(4):
        a("s_add_u32 s%d, s%d, %d" % (sT2, W, jl))
        a("s_and_b32 s%d, s%d, 3" % (sT2, sT2))
        a("s_lshl_b32 s%d, s%d, 5" % (sT2, sT2))
        a("v_xor_b32 v%d, s%d, v%d" % (vXr+jl, sT2, vT2))
    a("v_bfe_u32 v%d, v0, 2, 2" % vT2)
    a("v_lshl_add_u32 v%d, v%d, 3, v%d" % (vT2, vT1, vT2))
    a("v_mul_u32_u24 v%d, 192, v%d" % (vT2, vT2))
    a("v_bfe_u32 v%d, v0, 4, 1" % vSt)
    a("v_lshl_add_u32 v%d, v%d, 5, v%d" % (vT2, vSt, vT2))
    a("v_and_b32 v%d, 3, v0" % vSo)
    a("v_lshl_add_u32 v%d, v%d, 3, v%d" % (vT2, vSo, vT2))
    for jl in range(4):
        a("s_add_u32 s%d, s%d, %d" % (sT2, W, jl))
        a("s_and_b32 s%d, s%d, 3" % (sT2, sT2))
        a("s_mul_i32 s%d, s%d, %d" % (sT2, sT2, 16*192))
        a("v_add_u32 v%d, s%d, v%d" % (vWr+jl, sT2, vT2))
    for r in (vOne, vOne+1): a("v_mov_b32 v%d, 0x%x" % (r, ONES_BF))
    a("v_lshlrev_b32 v%d, 4, v%d" % (vCw, vT1))
    a("v_lshl_add_u32 v%d, v%d, 2, v%d" % (vCw, vSt, vCw))
    a("v_bfe_u32 v%d, v0, 2, 2" % vT2)
    a("v_add_u32 v%d, v%d, v%d" % (vCw, vCw, vT2))
    a("v_lshlrev_b32 v%d, 8, v%d" % (vCw, vCw))
    a("v_lshl_add_u32 v%d, v%d, 3, v%d" % (vCw, vSo, vCw))
    a("s_lshl_b32 s%d, s%d, 6" % (sT, W))
    a("v_add_u32 v%d, s%d, v%d" % (vCw, sT, vCw))
    a("s_mul_i32 s%d, s%d, 13108" % (sT, S_WG))
    a("s_lshr_b32 s%d, s%d, 16" % (sT, sT))
    a("s_mul_i32 s%d, s%d, 5" % (sT2, sT))
    a("s_sub_u32 s%d, s%d, s%d" % (sT2, S_WG, sT2))
    a("s_cmp_ge_u32 s%d, 240" % S_WG)
    a("s_cselect_b32 s%d, 5, s%d" % (sT2, sT2))
    a("s_cselect_b32 s%d, 0, s%d" % (sT, sT))
    a("s_lshl2_add_u32 s%d, s%d, s%d" % (sM, sT2, W))
    a("s_mul_i32 s%d, s%d, %d" % (sM, sM, 2*48*1024))
    a("s_lshl_b32 s%d, s%d, 10" % (sAo, sT))
    a("s_add_u32 s%d, s%d, s%d" % (sM, sM, sAo))
    a("s_mul_i32 s%d, s%d, 48" % (sFw, sT2))
    a("s_add_u32 s%d, s%d, s%d" % (sFw, sFw, sT))
    a("s_lshl2_add_u32 s%d, s%d, s%d" % (sFw, sFw, W))
    a("s_lshl_b32 s%d, s%d, 3" % (sFw, sFw))
    a("s_add_u32 s%d, s%d, %d" % (sFw, sFw, FL_W2F))
    a.srd_off(sW2F, P_WS, WS_W2F, W2F_BYTES)
    a.srd_off(sFl, P_WS, WS_FLAGS, FLAGS_BYTES)
    a.srd_off(sAct, P_WS, WS_ACT, ACT_BYTES)
    a.srd_off(sStt, P_WS, WS_STATS, STATS_BYTES)
    a.srd_off(sST, P_WS, WS_ST, ST_BYTES)
    a("v_mul_u32_u24 v%d, %d, v%d" % (vSt, 48*64, vSt))
    a("v_and_b32 v%d, 15, v0" % vT2)
    a("v_add_u32 v%d, v%d, v%d" % (vSt, vSt, vT2))
    a("v_lshl_add_u32 v%d, v%d, 4, v%d" % (vSt, vT1, vSt))
    a("v_lshlrev_b32 v%d, 4, v%d" % (vSt, vSt))
    a("s_lshl2_add_u32 s%d, s%d, s%d" % (sT2, sRb, W))
    a("s_lshl_b32 s%d, s%d, 9" % (sT, sT2))
    a("v_lshlrev_b32 v%d, 4, v%d" % (vSo, vT0))
    a("v_add_u32 v%d, s%d, v%d" % (vSo, sT, vSo))
    a("s_lshr_b32 s%d, s%d, 1" % (sT, sT2))
    a("s_lshl_b32 s%d, s%d, 5" % (sFa, sT))
    a("s_and_b32 s%d, s%d, 1" % (sT, sT2))
    a("s_add_u32 s%d, s%d, s%d" % (sFa, sFa, sT))
    a("s_lshl_b32 s%d, s%d, 1" % (sT, sCb))
    a("s_add_u32 s%d, s%d, s%d" % (sFa, sFa, sT))
    a("s_lshl_b32 s%d, s%d, 3" % (sFa, sFa))
    a("s_add_u32 s%d, s%d, %d" % (sFa, sFa, FL_ACT))
    a("s_mul_i32 s%d, s%d, 96" % (sT2, sT2))
    a("s_mul_i32 s%d, s%d, 3" % (sAo, sCb))
    a("s_add_u32 s%d, s%d, s%d" % (sAo, sAo, sT2))
    a("s_lshl_b32 s%d, s%d, 10" % (sAo, sAo))
    a("s_mov_b32 s%d, %s" % (sK, fhex(LOG2E))); a("s_mov_b32 s%d, %s" % (sK+1, fhex(LOG2E)))
    a("s_mov_b32 s%d, 2.0" % (sK+2)); a("s_mov_b32 s%d, 2.0" % (sK+3))
    for i in range(16): a("v_mov_b32 v%d, 0" % (vAp+i))
    a("v_lshlrev_b32 v%d, 2, v%d" % (vCr, vT0))
    a("v_add_u32 v%d, %d, v%d" % (vCr, C_CS, vCr))
    vXt, vXs_ = 216, 220
    vIt = [224, 240]
    sXt, sFx = 55, 26
    a("v_bfe_u32 v%d, v0, 1, 1" % vXt)
    a("s_lshl_b32 s%d, s%d, 1" % (sT, W))
    a("v_add_u32 v%d, s%d, v%d" % (vXt, sT, vXt))
    a("v_bfe_u32 v%d, v0, 3, 1" % vT2)
    a("v_xor_b32 v%d, v%d, v%d" % (vXt, vXt, vT2))
    a("v_lshlrev_b32 v%d, 4, v%d" % (vXt, vXt))
    a("v_and_b32 v%d, 1, v0" % vT2)
    a("v_lshl_add_u32 v%d, v%d, 3, v%d" % (vXt, vT2, vXt))
    a("v_bfe_u32 v%d, v0, 2, 2" % vT2)
    a("v_lshl_add_u32 v%d, v%d, 7, v%d" % (vXt, vT2, vXt))
    a("v_mul_u32_u24 v%d, %d, v%d" % (vXs_, 4*TRS, vT2))
    a("v_lshrrev_b32 v%d, 4, v0" % vT2)
    a("v_lshl_add_u32 v%d, v%d, 12, v%d" % (vXt, vT2, vXt))
    a("v_add_u32 v%d, %d, v%d" % (vXt, L_X + 16384, vXt))
    for k in range(1, 4): a("v_xor_b32 v%d, %d, v%d" % (vXt+k, 32*k, vXt))
    a("v_lshl_add_u32 v%d, v%d, 6, v%d" % (vXs_, vT2, vXs_))
    a("v_and_b32 v%d, 3, v0" % vT2)
    a("v_lshl_add_u32 v%d, v%d, 4, v%d" % (vXs_, vT2, vXs_))
    k_rotation(a, sT, sT2, sRb, sCb)
    a("s_add_u32 s%d, s%d, 1" % (sT, sT))
    a("s_cmp_ge_u32 s%d, 10" % sT)
    a("s_cselect_b32 s%d, 0, s%d" % (sT, sT))
    a("s_cmp_ge_u32 s%d, 10" % sCb)
    a("s_cselect_b32 s%d, 10, s%d" % (sT, sT))
    a("s_lshl2_add_u32 s%d, s%d, s%d" % (sT, sT, W))
    a("s_mul_i32 s%d, s%d, %d" % (sXt, sT, 16*TRS))
    a("s_lshl_b32 s%d, s%d, 8" % (sT2, sRb))
    a("s_add_u32 s%d, s%d, s%d" % (sXt, sXt, sT2))
    a("s_lshl4_add_u32 s%d, s%d, s%d" % (sFx, sT, sRb))
    a("s_lshl_b32 s%d, s%d, 3" % (sFx, sFx))
    a("s_add_u32 s%d, s%d, %d" % (sFx, sFx, FL_XT))
    vCh = 208
    def xreads(st):
        return [("xf%d_%d" % (st, jl), "ds_read_b128 %s, v%d offset:%d" % (v(vXF[st & 1]+4*jl,4), vXr+jl, (st % 3)*16384)) for jl in range(4)]
    def wreads(g_):
        st, jl = g_ // 4, g_ % 4
        buf = WB[g_ % 3]
        return [("wf%d" % g_, "ds_read_b64_tr_b16 %s, v%d offset:%d" % (v(buf+4*p+2*q,2), vWr+jl, L_W + (st % 4)*12288 + q*4*192 + p*64)) for p in range(3) for q in range(2)]
    def w2st(k):
        a.vmem("buffer_store_dwordx4 %s, v%d, s[%d:%d], s%d offen sc1" % (v(vCh+4*k,4), vL16, sW2F, sW2F+3, sM), "chw")
        if k == 0: a("s_add_u32 s%d, s%d, %d" % (sM, sM, 48*1024))
    def xtst(j):
        a.vmem("buffer_store_dwordx4 %s, v%d, s[%d:%d], s%d offen sc1" % (v(vIt[0]+4*j,4), vXs_, sOut, sOut+3, sXt), "chs")
        if j < 3: a("s_add_u32 s%d, s%d, %d" % (sXt, sXt, TRS))
    SW, SX, SG = getattr(a, "CH_W", 0), getattr(a, "CH_X", 2), getattr(a, "CH_LAG", 3)
    a.srd_off(sOut, P_WS, WS_XN, XN_BYTES)
    ready("X0")
    a.stamp(10)
    for tag, ins in xreads(0): a.lds(ins, tag)
    ready("W0")
    a.stamp(11)
    for tag, ins in wreads(0) + wreads(1): a.lds(ins, tag)
    def xt_chore():
        bar_check(1)
        for p in range(4):
            for q in range(2):
                a.lds("ds_read_b64_tr_b16 %s, v%d offset:%d" % (v(vIt[0]+4*p+2*q,2), vXt + 2*(p & 1) + q, (8*p + 4*q)*128), "xt")
        bar_arrive(2)
    dpp = []
    for stage_, (masks, perm, x_) in enumerate((((0x55555555, 0xaaaaaaaa), "[1,0,3,2]", 1), ((0x33333333, 0xcccccccc), "[2,3,0,1]", 2))):
        src, dst = vIt[stage_], vIt[1-stage_]
        for mi, m in enumerate(masks):
            for j in range(4):
                if ((j & x_) != 0) != (mi == 1): continue
                dpp.append(["s_mov_b32 vcc_lo, 0x%x" % m, "s_mov_b32 vcc_hi, 0x%x" % m] +
                           ["v_cndmask_b32_dpp v%d, v%d, v%d, vcc quad_perm:%s row_mask:0xf bank_mask:0xf" % (dst+4*j+r, src+4*(j ^ x_)+r, src+4*j+r, perm) for r in range(4)])
    def c_chore():
        ready("C")
        for k in range(2):
            for q in range(2):
                a.lds("ds_read_b64_tr_b16 %s, v%d offset:%d" % (v(vCh+4*k+2*q,2), vCw, L_W + 3*12288 + q*8*256 + k*32), "ch")
        release("C")
        a("s_mul_i32 s%d, s%d, 384" % (sT2, W))
        a("v_add_u32 v%d, s%d, v%d" % (vCw, sT2, vCr))
    a.stamp(1)
    def emit(t):
        if callable(t): t()
        elif isinstance(t, tuple): a.lds(t[1], t[0])
        else: a(t)
    def step(g_, gaps):
        st, jl = g_ // 4, g_ % 4
        buf = WB[g_ % 3]
        xf = vXF[st & 1] + 4*jl
        a.wait(lg=["wf%d" % g_, "xf%d_%d" % (st, jl)])
        rd = wreads(g_ + 2) if g_ + 2 < 40 else []
        for p in range(3):
            acc = vAcc + 16*p
            HK = getattr(a, "HACK", 0)
            if HK == 3:
                for hh in range(2): a("v_mfma_f32_16x16x32_bf16 %s, %s, %s, %s" % (v(acc+4*hh+8*(jl&1),4), v(buf+4*p,4), v(xf,4), "0" if g_ < 2 else v(acc+4*hh+8*(jl&1),4)))
            elif HK != 1: a("v_mfma_f32_32x32x16_bf16 %s, %s, %s, %s" % (v(acc,16), v(buf+4*p,4), v(xf,4), "0" if g_ == 0 else v(acc,16)))
            for tag, ins in rd[2*p:2*p+2]: a.lds(ins, tag)
            if HK == 0 and ((jl >= 2) if st < 9 else (jl < 2)):
                a("v_mfma_f32_4x4x4_16b_bf16 %s, %s, %s, %s" % (v(vCs4[p],4), v(vOne,2), v(buf+4*p+2*(jl & 1),2), "0" if g_ == 2 else v(vCs4[p],4)))
            for t in gaps[p]: emit(t)
    statld = "buffer_load_dwordx4 %s, v%d, s[%d:%d], 0 offen sc1" % (v(vPoll,4), vSo, sStt, sStt+3)
    for st in range(10):
        gp = [[] for _ in range(12)]
        if st < 9:
            xr = xreads(st+1)
            gp[1] += [lambda: ready("X%d" % (st+1)), xr[0]]
            if plan.rdy["W%d" % (st+1)] > plan.rdy.get("X%d" % (st+1), 0): gp[3] += [peek]
            if st < 8 and ("X%d" % (st+2)) in plan.rdy: gp[10] += [peek]
            gp[2] += [xr[1]]; gp[3] += [xr[2]]; gp[4] += [xr[3]]
            if plan.NX_OWN < 10 or st + 1 >= 7: gp[4] += [lambda: release("X%d" % (st+1))]
        gp[5] += [lambda: release("W%d" % st)]
        if st == 1:
            gp[0].append(lambda: a.wait(lg="xt"))
            for gi in (0, 1, 4, 4, 8, 9, 9, 10): gp[gi] += dpp.pop(0)
        if st < 9 and plan.rdy["W%d" % (st+1)] > plan.rdy.get("X%d" % (st+1), 0): gp[5] += [lambda: ready("W%d" % (st+1))]
        if plan.NX_OWN == 10:
            if st == 0:
                gp[0].append(lambda: a.wait(lg="xf0_3"))
                for i in range(4): gp[(0, 3, 6, 7)[i]].append(lambda i=i: xdma(3, i))
                gp[1].append(lambda: bar_arrive(1))
                gp[2] += [c_chore]
                gp[6] += [bar_peek]
                gp[8] += [xt_chore]
            if st == 1:
                gp[0] += [bar_peek]
                gp[2].append(lambda: bar_check(2))
                for i in range(4): gp[(2, 3, 5, 6)[i]].append(lambda i=i: xdma(4, i))
            if st >= 1 and st + 4 < 10:
                gp[7].append(lambda: a.wait(lg="xf%d_3" % (st+1)))
                for i in range(4): gp[(7, 8, 10, 11)[i]].append(lambda i=i: xdma(st+4, i))
        if st == SW:
            gp[6].append(lambda: w2st(0)); gp[9].append(lambda: w2st(1))
        if st == SX:
            for j in range(4): gp[(0, 7, 8, 11)[j]].append(lambda j=j: xtst(j))
        if st == 1: gp[7].append(sy.tag_load)
        if st == max(SW, 0) + SG:
            def sigw():
                sy.tag_check()
                a.wait(vm="chw")
                sy.signal("s%d" % sFw, 0)
            gp[0].insert(0, sigw)
        if st == min(max(SX, 0) + SG, 9):
            def sigx():
                a.wait(vm="chs")
                sy.signal("s%d" % sFx, 0)
                a.srd(sOut, P_OUT, 2048*640*2)
            gp[1 if st < 9 else 11].insert(0, sigx)
        if st == 7: gp[8].append(lambda: a.vmem(statld, "stat"))
        if st == 9:
            def statprep():
                sy.granule_check(statld, "stat", vPoll+2)
                a("v_mov_b32 v%d, v%d" % (vBp, vPoll))
                a("v_mov_b32 v%d, v%d" % (vBp+1, vPoll+1))
            gp[1].append(statprep)
            gp[6] += ["s_nop 1", "v_and_b32 v%d, 0xffff0000, v%d" % (vC3, vBp+1), "v_rcp_f32 v%d, v%d" % (vC3, vC3)]
            gp[7] += ["v_permlane32_swap_b32 v%d, v%d" % (vCs4[p], vCs4[p]+1) for p in range(3)]
            gp[7] += ["v_add_f32 v%d, v%d, v%d" % (vCs4[p], vCs4[p], vCs4[p]+1) for p in range(3)]
            gp[7] += [("cw", "ds_write_b32 v%d, v%d offset:%d" % (vCw, vCs4[p], p*128)) for p in range(3)]
            gp[7] += [lambda: bar_arrive(3)]
            gp[9] += [lambda: bar_wait(3)]
            gp[9] += [("cr", "ds_read_b32 v%d, v%d offset:%d" % (vP+w*3+p, vCr, w*384 + p*128)) for w in range(4) for p in range(3)]
        if getattr(a, 'STST', False):
            if st in (1, 2, 3, 4, 6, 8): a.stamp({1: 10, 2: 11, 3: 12, 4: 13, 6: 14, 8: 15}[st])
        else:
            if st in (0, 4): a.stamp({0: 12, 4: 13}[st])
            if st == 4: a.cstamp(14)
        for j in range(4): step(4*st+j, gp[3*j:3*j+3])
    a.stamp(2)
    if not getattr(a, 'STST', False): a.cstamp(15)
    if a.PROF: a("s_mov_b32 s89, s88")
    a("v_mul_f32 v%d, %s, v%d" % (vC1, fhex(LOG2E), vC3))
    a("v_mul_f32 v%d, -2.0, v%d" % (vC2, vC3))
    a("s_mov_b32 exec_hi, 0")
    for p in range(3): a("v_mov_b32 v%d, v%d" % (vAp+4*p+1, vB1+p))
    a.wait(lg="cr")
    for p in range(3):
        a("v_add_f32 v%d, v%d, v%d" % (vP+p, vP+p, vP+3+p))
        a("v_add_f32 v%d, v%d, v%d" % (vP+6+p, vP+6+p, vP+9+p))
    for p in range(3): a("v_add_f32 v%d, v%d, v%d" % (vP+p, vP+p, vP+6+p))
    for p in range(3): a("v_cvt_pk_bf16_f32 v%d, v%d, v%d" % (vP+3+p, vP+p, vP+p))
    for p in range(3): a("v_and_b32 v%d, 0xffff0000, v%d" % (vP+3+p, vP+3+p))
    for p in range(3): a("v_sub_f32 v%d, v%d, v%d" % (vP+3+p, vP+p, vP+3+p))
    for p in range(3): a("v_cvt_pk_bf16_f32 v%d, v%d, v%d" % (vAp+4*p, vP+p, vP+3+p))
    a("s_mov_b32 exec_hi, -1")
    a("s_nop 0")
    for p in range(3):
        acc = vAcc + 16*p
        a("v_mfma_f32_32x32x16_bf16 %s, %s, %s, %s" % (v(acc,16), v(vAp+4*p,4), v(vBp,4), v(acc,16)))
    vRW = 16; vRR, vPW, vPR, vXO, vSO = 19, 20, 21, 22, 23
    vFr, vPA = vBarA, vCr
    a("v_and_b32 v%d, 15, v0" % vT0)
    a("v_lshrrev_b32 v%d, 4, v0" % vT1)
    a("s_lshl2_add_u32 s%d, s%d, s%d" % (sT, sRb2, W))
    a("s_mul_i32 s%d, s%d, %d" % (sT2, sT, 16*1280))
    a("s_mul_i32 s%d, s%d, 160" % (sM, sCb2))
    a("s_add_u32 s%d, s%d, s%d" % (sFs, sT2, sM))
    a("v_lshrrev_b32 v%d, 2, v0" % vSO)
    a("v_lshlrev_b32 v%d, 7, v%d" % (vSO, vSO))
    a("v_and_b32 v%d, 3, v0" % vXO)
    a("v_lshl_add_u32 v%d, v%d, 3, v%d" % (vSO, vXO, vSO))
    a("s_lshl_b32 s%d, s%d, 5" % (sM, W))
    a("s_add_u32 s%d, s%d, %d" % (sM, sM, 20*4096))
    a("v_add_u32 v%d, s%d, v%d" % (vSO, sM, vSO))
    a("s_lshl_b32 s%d, s%d, 10" % (sT, W))
    a("v_add_u32 v%d, s%d, v%d" % (vFr, sT, vL16))
    vE = 112; vO = 144
    vFr2 = vCr
    a("v_add_u32 v%d, 65536, v%d" % (vFr2, vFr))
    early = [r for r in range(208, 256, 4)] + [r for r in range(168, 208, 4)] + [r for r in range(104, 144, 4)]
    latef = [r for r in range(144, 168, 4)]
    free = early
    loc = {}
    def pull(name):
        out = []
        for j, row in enumerate(plan.rowsof[name]):
            r = free.pop(0); loc[(name, j)] = r
            base, off = (vFr, row*4096) if row < 16 else (vFr2, (row-16)*4096)
            out.append((name, "ds_read_b128 %s, v%d offset:%d" % (v(r,4), base, off)))
        return out
    def pull_now(nm):
        ready(nm)
        for tag, ins in pull(nm): a.lds(ins, tag)
        release(nm)
    NEP = getattr(a, "NEP", 4)
    for c in range(6):
        A = vAcc + 8*c; E = vE + 16*(c & 1); O = vO + 4*c
        for k in range(4): a("v_pk_mul_f32 %s, %s, %s op_sel_hi:[1,0]" % (v(E+2*k,2), v(A+2*k,2), v(vC1,2)))
        for k in range(8): a("v_exp_f32 v%d, v%d" % (E+k, E+k))
        for k in range(4): a("v_pk_add_f32 %s, %s, s[%d:%d]" % (v(E+8+2*k,2), v(E+2*k,2), sK+2, sK+3))
        for k in range(4): a("v_pk_fma_f32 %s, %s, %s, s[%d:%d]" % (v(E+2*k,2), v(E+2*k,2), v(E+8+2*k,2), sK+2, sK+3))
        for k in range(8): a("v_rcp_f32 v%d, v%d" % (E+k, E+k))
        for k in range(4): a("v_pk_fma_f32 %s, %s, %s, %s op_sel_hi:[1,0,0]" % (v(E+2*k,2), v(E+2*k,2), v(vC2,2), v(vC3,2)))
        for k in range(4): a("v_pk_mul_f32 %s, %s, %s" % (v(E+2*k,2), v(E+2*k,2), v(A+2*k,2)))
        for k in range(4): a("v_cvt_pk_bf16_f32 v%d, v%d, v%d" % (O+k, E+2*k, E+2*k+1))
        a.vmem("buffer_store_dwordx4 %s, v%d, s[%d:%d], s%d offen offset:%d sc1" % (v(O,4), vSt, sAct, sAct+3, sAo, c*512), "st")
    bar_arrive(4)
    a.stamp(3)
    for i in range(1, 4):
        a("s_add_u32 s%d, s%d, %d" % (sT, W, i))
        a("s_and_b32 s%d, s%d, 3" % (sT, sT))
        a("s_mul_i32 s%d, s%d, 15360" % (sT, sT))
        a("s_add_u32 s%d, s%d, %d" % (sT, sT, (i-1)*5120))
        a("v_add_u32 v%d, s%d, v%d" % (vRW+i-1, sT, vL16))
    a("s_mul_i32 s%d, s%d, 15360" % (sT, W))
    a("v_add_u32 v%d, s%d, v%d" % (vRR, sT, vL16))
    a("s_mul_i32 s%d, s%d, %d" % (sT, W, G2_PW))
    a("s_add_u32 s%d, s%d, %d" % (sT, sT, G2_P))
    a("v_mul_u32_u24 v%d, %d, v%d" % (vPW, G2_PRS, vT0))
    a("v_lshl_add_u32 v%d, v%d, 3, v%d" % (vPW, vT1, vPW))
    a("v_add_u32 v%d, s%d, v%d" % (vPW, sT, vPW))
    a("s_mov_b32 s%d, s%d" % (sFw, sT))
    a("v_mov_b32 v%d, v%d" % (vT1, vFr2))
    vFr2 = vT1
    vAcc2 = 24
    vZero2 = vPoll + 3
    k_rotation2(a, sK2, sT2, sRb2, sCb2)
    a("s_mul_i32 s%d, s%d, %d" % (sT2, W, 12*1024))
    for i in range(4):
        a("s_add_u32 s%d, s%d, %d" % (sT, W, i))
        a("s_and_b32 s%d, s%d, 3" % (sT, sT))
        a("s_lshl2_add_u32 s%d, s%d, s%d" % (sT, sRb2, sT))
        a("s_mul_i32 s%d, s%d, %d" % (sT, sT, 48*1024))
        a("s_add_u32 s%d, s%d, s%d" % (sA+i, sT, sT2))
    a("s_mul_i32 s%d, s%d, %d" % (sT, sCb2, 5*48*1024))
    a("s_add_u32 s%d, s%d, s%d" % (sB, sT, sT2))
    for n in range(1, 5): a("s_add_u32 s%d, s%d, %d" % (sB+n, sB, n*48*1024))
    vKo = [vT0, vZero2]
    def koff(s_, reg):
        a("s_add_u32 s%d, s%d, %d" % (sK3, sK2, s_*1024))
        a("s_sub_u32 s%d, s%d, %d" % (sK3+1, sK3, 12*1024))
        a("s_cmp_ge_u32 s%d, %d" % (sK3, 12*1024))
        a("s_cselect_b32 s%d, s%d, s%d" % (sK3, sK3+1, sK3))
        a("v_add_u32 v%d, s%d, v%d" % (reg, sK3, vL16))
    a.wait(vm="all")
    sy.signal("s%d" % sFa, 0)
    a.stamp(4)
    pull_now("B0")
    free += latef
    if getattr(a, "BLATE", False): ready("ACT")
    for s_ in plan.regB:
        koff(s_, vKo[0])
        for n in range(5):
            r = free.pop(0); loc[("B%d" % s_, n)] = r
            a.vmem("buffer_load_dwordx4 %s, v%d, s[%d:%d], s%d offen sc1" % (v(r,4), vKo[0], sW2F, sW2F+3, sB+n), "B%d" % s_)
    ready("ACT")
    a.stamp(5)
    G = [(s_, i) for s_ in range(12) for i in range(9 if s_ in plan.lateB else 4)]
    def issue_a():
        s_, i = G.pop(0)
        if i == 0: koff(s_, vKo[0])
        r = free.pop(0)
        if i >= 4:
            loc[("B%d" % s_, i-4)] = r
            a.vmem("buffer_load_dwordx4 %s, v%d, s[%d:%d], s%d offen sc1" % (v(r,4), vKo[0], sW2F, sW2F+3, sB+i-4), "B%d" % s_)
            return
        loc[("A%d" % s_, i)] = r
        a.vmem("buffer_load_dwordx4 %s, v%d, s[%d:%d], s%d offen sc1" % (v(r,4), vKo[0], sAct, sAct+3, sA+i), "A%d" % s_)
    while G and len(free) > 5: issue_a()
    vX = None
    def peek2():
        nonlocal vPk
        vPk = vZero2
        peek()
    for s_ in range(12):
        side = []
        nb = s_ + 1 < 12 and (s_+1) in plan.ringB
        pl = pull("B%d" % (s_+1)) if nb else []
        keep = 5 if (s_ + 2 < 12 and (s_+2) in plan.ringB and s_ == 0 and False) else 0
        keep = {9: 5}.get(s_, 0)
        na = max(0, min(len(G), len(free) - keep))
        if nb: side.append(peek2)
        side += [issue_a]*min(na, 3); na -= min(na, 3)
        if nb:
            side.append(lambda: ready("B%d" % (s_+1)))
            side += pl
            side.append(lambda: release("B%d" % (s_+1)))
        side += [issue_a]*na
        if s_ == 9:
            vX = [free.pop(-1) for _ in range(3)]
            vQ = [free.pop(-1) for _ in range(2)]
            def xld(k):
                a("v_add_u32 v%d, %d, v0" % (vT2, 64*k))
                a("v_mul_u32_u24 v%d, 6554, v%d" % (vPR, vT2))
                a("v_lshrrev_b32 v%d, 16, v%d" % (vPR, vPR))
                a("v_lshlrev_b32 v%d, 4, v%d" % (vT2, vT2))
                a("v_mad_u32_u24 v%d, v%d, %s, v%d" % (vQ[1]+k, vPR, "16", vT2))
                a("v_mul_u32_u24 v%d, %d, v%d" % (vPR, 1280-160, vPR))
                a("v_add_u32 v%d, v%d, v%d" % (vQ[0]+k, vPR, vT2))
                a("v_add_u32 v%d, s%d, v%d" % (vQ[1]+k, sFw, vQ[1]+k))
                a.vmem("buffer_load_dwordx4 %s, v%d, s[%d:%d], s%d offen" % (v(vX[k],4), vQ[0]+k, sXs, sXs+3, sFs), "x")
            for k in range(3): side.append(lambda k=k: xld(k))
        if s_ == 11:
            side.append(lambda: bar_arrive(5))
        a.wait(lg="B%d" % s_, vm=["A%d" % s_, "B%d" % s_])
        if getattr(a, "P2ST", False) and s_ in (0, 2, 4, 6, 8, 10): a.stamp(10 + s_//2)
        order = [1, 2, 3, 0] if s_ == 11 else [0, 1, 2, 3]
        for i in order:
            for n in range(5):
                acc = vAcc2 + (i*5+n)*4
                a("v_mfma_f32_16x16x32_bf16 %s, %s, %s, %s" % (v(acc,4), v(loc[("B%d" % s_,n)],4), v(loc[("A%d" % s_,i)],4), "0" if s_ == 0 else v(acc,4)))
                if side: emit(side.pop(0))
        assert not side
        for i in range(4): free.append(loc[("A%d" % s_, i)])
        for n in range(5): free.append(loc[("B%d" % s_, n)])
    assert not G
    a.stamp(6)
    bar_wait(5)
    for i in range(1, 4):
        for n in range(5):
            a.lds("ds_write_b128 v%d, %s offset:%d" % (vRW+i-1, v(vAcc2+(i*5+n)*4,4), n*1024), "rw")
    bar_arrive(6)
    vXu = [free.pop(0) for _ in range(6)]
    a.wait(vm="x")
    for k in range(3):
        for j in range(4):
            u = vXu[2*k + j//2] + 2*(j % 2)
            a("v_lshlrev_b32 v%d, 16, v%d" % (u, vX[k]+j))
            a("v_and_b32 v%d, 0xffff0000, v%d" % (u+1, vX[k]+j))
    vS = [free.pop(0) for _ in range(3)]
    ready("S")
    for n in range(5):
        a.lds("ds_read_b64_tr_b16 %s, v%d offset:%d" % (v(vS[n//2] + 2*(n%2),2), vSO, n*16*128), "s")
    bar_wait(6)
    vR = [free.pop(0) for _ in range(15)]
    for n in range(5):
        for sl in range(3):
            a.lds("ds_read_b128 %s, v%d offset:%d" % (v(vR[n*3+sl],4), vRR, sl*5120 + n*1024), "rr%d" % n)
    vE = [vAcc2 + 20 + 4*i for i in range(8)]
    vU = [vAcc2 + 52 + 4*i for i in range(5)]
    for n in range(5):
        S = vS[n//2] + 2*(n%2); U = vU[n]
        a("v_lshlrev_b32 v%d, 16, v%d" % (U+0, S))
        a("v_and_b32 v%d, 0xffff0000, v%d" % (U+1, S))
        a("v_lshlrev_b32 v%d, 16, v%d" % (U+2, S+1))
        a("v_and_b32 v%d, 0xffff0000, v%d" % (U+3, S+1))
    for n in range(5):
        a.wait(lg="rr%d" % n)
        acc = vAcc2 + n*4; E = vE[n]; U = vU[n]
        for h in range(2):
            a("v_pk_add_f32 %s, %s, %s" % (v(vR[n*3]+2*h,2), v(vR[n*3]+2*h,2), v(vR[n*3+1]+2*h,2)))
            a("v_pk_add_f32 %s, %s, %s" % (v(acc+2*h,2), v(acc+2*h,2), v(vR[n*3+2]+2*h,2)))
        for h in range(2):
            a("v_pk_add_f32 %s, %s, %s" % (v(acc+2*h,2), v(acc+2*h,2), v(vR[n*3]+2*h,2)))
        for h in range(2):
            a("v_pk_mul_f32 %s, %s, s[%d:%d] neg_lo:[0,1] neg_hi:[0,1]" % (v(E+2*h,2), v(acc+2*h,2), sK, sK+1))
        for r in range(4): a("v_exp_f32 v%d, v%d" % (E+r, E+r))
        for h in range(2):
            a("v_pk_mul_f32 %s, %s, %s" % (v(acc+2*h,2), v(acc+2*h,2), v(U+2*h,2)))
        for r in range(4): a("v_add_f32 v%d, 1.0, v%d" % (E+r, E+r))
        for r in range(4): a("v_rcp_f32 v%d, v%d" % (E+r, E+r))
        a("s_nop 0")
        for h in range(2):
            a("v_pk_mul_f32 %s, %s, %s" % (v(acc+2*h,2), v(acc+2*h,2), v(E+2*h,2)))
        a("v_cvt_pk_bf16_f32 v%d, v%d, v%d" % (E, acc, acc+1))
        a("v_cvt_pk_bf16_f32 v%d, v%d, v%d" % (E+1, acc+2, acc+3))
        a.lds("ds_write_b64 v%d, %s offset:%d" % (vPW, v(E,2), n*32), "pw")
    vPq = vE[5:8]
    for k in range(3):
        a.lds("ds_read_b128 %s, v%d" % (v(vPq[k],4), vQ[1]+k), "pr%d" % k)
    for k in range(3):
        a.wait(lg="pr%d" % k)
        Wp = (vR[2*k], vR[2*k+1])
        for j in range(4):
            a("v_lshlrev_b32 v%d, 16, v%d" % (Wp[j//2] + 2*(j%2), vPq[k]+j))
            a("v_and_b32 v%d, 0xffff0000, v%d" % (Wp[j//2] + 2*(j%2) + 1, vPq[k]+j))
        for j in range(4):
            u = vXu[2*k + j//2] + 2*(j % 2)
            a("v_pk_add_f32 %s, %s, %s" % (v(u,2), v(u,2), v(Wp[j//2] + 2*(j%2),2)))
        for j in range(4):
            u = vXu[2*k + j//2] + 2*(j % 2)
            a("v_cvt_pk_bf16_f32 v%d, v%d, v%d" % (vX[k]+j, u, u+1))
        if k == 2: a("s_mov_b32 exec_hi, 0")
        a.vmem("buffer_store_dwordx4 %s, v%d, s[%d:%d], s%d offen" % (v(vX[k],4), vQ[0]+k, sOut, sOut+3, sFs), "st")
    a.stamp(7)
    a.stamp_dump(16, S_WAVE, 24, (200 << 20))
    a("s_endpgm")
    for sp, ok, k in ool:
        a.label(sp)
        a("s_mov_b32 s%d, %d" % (sSy, k))
        a("s_call_b64 s[%d:%d], L_c_spin" % (sRet, sRet+1))
        a("s_branch %s" % ok)
    a.label("L_c_spin")
    a("s_mov_b32 s%d, 0" % (sSy+2))
    a.label("L_c_spin_loop")
    if a.PROF: a("s_add_u32 s88, s88, 1")
    a("ds_read_b32 v%d, v%d" % (vRv, vCtl))
    a("s_add_u32 s%d, s%d, 1" % (sSy+2, sSy+2))
    a("s_cmp_gt_u32 s%d, 0x%x" % (sSy+2, SPIN_MAX*16))
    a("s_waitcnt lgkmcnt(0)")
    a("v_readfirstlane_b32 s%d, v%d" % (sRdy, vRv))
    a("s_cbranch_scc1 L_c_spin_ret")
    a("s_cmp_ge_u32 s%d, s%d" % (sRdy, sSy))
    a("s_cbranch_scc1 L_c_spin_ret")
    if getattr(a, "CSLEEP", 0): a("s_sleep %d" % a.CSLEEP)
    a("s_branch L_c_spin_loop")
    a.label("L_c_spin_ret")
    a("s_setpc_b64 s[%d:%d]" % (sRet, sRet+1))
    a.vm = []; a.lg = []
```

```python
from asmlib import *
from common import *
from sync import Sync
import numpy as np

ROWB = 272
CV_UB = 9216 + 512

def pmul(dR, dI, R, I, WR, WI, t1, t2, bx=False, bw=False, halves=(0, 1)):
    f = []; s_ = []
    inplace = (dR == R)
    for h in halves:
        r, i = (R, I) if bx else (R+h, I+h)
        wr, wi = (WR, WI) if bw else (WR+h, WI+h)
        if inplace:
            f.append("v_mul_f32 v%d, v%d, v%d" % (t1+h, i, wi))
            f.append("v_mul_f32 v%d, v%d, v%d" % (dI+h, i, wr))
            s_.append("v_fmac_f32 v%d, v%d, v%d" % (dI+h, r, wi))
            s_.append("v_fma_f32 v%d, v%d, v%d, -v%d" % (dR+h, r, wr, t1+h))
        else:
            f.append("v_mul_f32 v%d, v%d, v%d" % (dR+h, r, wr))
            f.append("v_mul_f32 v%d, v%d, v%d" % (dI+h, r, wi))
            s_.append("v_fma_f32 v%d, -v%d, v%d, v%d" % (dR+h, i, wi, dR+h))
            s_.append("v_fmac_f32 v%d, v%d, v%d" % (dI+h, i, wr))
    return f, s_

def pkmul(dR, dI, R, I, WR, WI, t1, t2, bx=False, bw=False):
    h0 = 0 if bx else 1; h1 = 0 if bw else 1
    m = " op_sel_hi:[%d,%d]" % (h0, h1) if (bx or bw) else ""
    f = " op_sel_hi:[%d,%d,1]" % (h0, h1) if (bx or bw) else ""
    return (["v_pk_mul_f32 %s, %s, %s%s" % (v(t1,2), v(R,2), v(WR,2), m),
             "v_pk_mul_f32 %s, %s, %s%s" % (v(t2,2), v(R,2), v(WI,2), m)],
            ["v_pk_fma_f32 %s, %s, %s, %s%s neg_lo:[0,1,0] neg_hi:[0,1,0]" % (v(dR,2), v(I,2), v(WI,2), v(t1,2), f),
             "v_pk_fma_f32 %s, %s, %s, %s%s" % (v(dI,2), v(I,2), v(WR,2), v(t2,2), f)])

def emit_kc(a, sD, sL, prio=0, gate=True, stage_rel=0, pause_rel=0):
    vT0, vT1, vOff = 1, 2, 3
    vDt, vFrag = 4, 5
    vP = 6
    vWA = 24
    vD = 40
    vFA = 56; vFB = 88
    XR, XI = 120, 130
    MR, MI = 140, 148
    YR, YI = 156, 158
    W2R, W2I, W16R, W16I, M2R, M2I = 160, 162, 164, 166, 168, 170
    TA, TB, TC, TD = 172, 174, 176, 178
    ZR, ZI = 180, 182
    vC = 184
    vS = 192
    vDs, vZero, vPA, vL16, vUg = 204, 205, 206, 207, 240
    vTag, vPoll = 242, 244
    sT, sU, sCnt, sFo = 44, 45, 46, 47
    sSy = 48
    sFl, sXN, sST, sSF = 52, 56, 60, 64
    sFx = 51
    vPoll2 = 248
    sy = Sync(a, sFl, P_DBG, vTag, vPoll, sSy, vZero)
    a.c("================ role: kgen + conv ================")
    a.stamp(0)
    for i in range(18): a("v_mov_b32 v%d, 0" % (vP+i))
    a("v_mov_b32 v%d, 0" % vDt); a("v_mov_b32 v%d, 0" % vDs); a("v_mov_b32 v%d, 0" % vZero)
    a("s_mul_i32 s%d, s%d, 384" % (sT, sD))
    a("v_lshlrev_b32 v%d, 1, v0" % vOff)
    a("v_add_u32 v%d, s%d, v%d" % (vOff, sT, vOff))
    a("s_lshl_b32 s%d, s%d, 1" % (sT, sD))
    a("v_mov_b32 v%d, s%d" % (vT1, sT))
    a("s_waitcnt lgkmcnt(0)")
    if getattr(a, "ORDER", False): a("s_barrier")
    a.vmem("global_load_short_d16_hi v%d, v%d, s[%d:%d]" % (vDt, vT1, P_LOGDT, P_LOGDT+1), "dt")
    for st in range(3):
        for k in range(6):
            a.vmem("global_load_short_d16_hi v%d, v%d, s[%d:%d] offset:%d" % (vP+st*6+k, vOff, P_ARE+2*k, P_ARE+2*k+1, 128*st), "p")
    a.vmem("global_load_short_d16_hi v%d, v%d, s[%d:%d]" % (vDs, vT1, P_DSKIP, P_DSKIP+1), "p")
    if getattr(a, "NOKC", False): a("s_endpgm")
    a("s_setprio %d" % prio)
    a.srd_off(sFl, P_WS, WS_FLAGS, FLAGS_BYTES)
    a.srd_off(sXN, P_WS, WS_XN, XN_BYTES)
    a.srd_off(sST, P_WS, WS_ST, ST_BYTES)
    a("s_mul_i32 s%d, s%d, %d" % (sU, sD, TRS))
    a("s_lshl_b32 s%d, s%d, 3" % (sFo, sD))
    a("s_add_u32 s%d, s%d, %d" % (sFo, sFo, FL_S))
    a("v_lshlrev_b32 v%d, 2, v0" % vT0)
    a("v_add_u32 v%d, s%d, v%d" % (vWA, sL, vT0))
    for g in range(1, 16): a("v_add_u32 v%d, %d, v%d" % (vWA+g, g*4*ROWB, vWA))
    a("v_and_b32 v%d, 31, v0" % vT0)
    a("v_mul_u32_u24 v%d, %d, v%d" % (vFrag, ROWB, vT0))
    a("v_lshrrev_b32 v%d, 5, v0" % vT0)
    a("v_lshl_add_u32 v%d, v%d, 4, v%d" % (vFrag, vT0, vFrag))
    a("v_add_u32 v%d, s%d, v%d" % (vFrag, sL, vFrag))
    a("v_lshlrev_b32 v%d, 4, v0" % vL16)
    a("v_lshlrev_b32 v%d, 3, v0" % vUg)
    a("v_min_u32 v%d, 112, v%d" % (vPA, vL16))
    a("s_lshr_b32 s%d, s%d, 4" % (sFx, sD))
    a("s_lshl_b32 s%d, s%d, 7" % (sFx, sFx))
    a("s_add_u32 s%d, s%d, %d" % (sFx, sFx, FL_XT))
    a.srd_off(sSF, P_WS, WS_SF, SF_BYTES)
    for i in range(80): a("v_mov_b32 v%d, 0" % (vD+i))
    Lhi = np.float32(LOG2E); Llo = np.float32(LOG2E - float(Lhi))
    a.wait(vm="dt")
    a.stamp(1); a.cstamp(9)
    a("v_mul_f32 v%d, %s, v%d" % (vS, fhex(Lhi), vDt))
    a("s_mov_b32 s%d, %s" % (sT, fhex(Lhi)))
    a("v_fma_f32 v%d, v%d, s%d, -v%d" % (vS+1, vDt, sT, vS))
    a("v_fmamk_f32 v%d, v%d, %s, v%d" % (vS+1, vDt, fhex(Llo), vS+1))
    a("v_exp_f32 v%d, v%d" % (vS, vS))
    a("v_mul_f32 v%d, %s, v%d" % (vS+1, fhex(0.6931471805599453), vS+1))
    a("v_fma_f32 v%d, v%d, v%d, v%d" % (vS, vS, vS+1, vS))
    a("v_cvt_pk_bf16_f32 v%d, v%d, v%d" % (vDt, vS, vS))
    a("v_and_b32 v%d, 0xffff0000, v%d" % (vDt, vDt))
    a.wait(vm="all")
    a("s_mov_b32 s%d, 0" % sCnt)
    def wr2(row0, r0, r1):
        g, o = row0 // 4, row0 % 4
        return "ds_write2_b32 v%d, v%d, v%d offset0:%d offset1:%d" % (vWA+g, r0, r1, o*68, (o+1)*68)
    def xrow(h, q): return 8*(q >> 2) + 4*h + (q & 3)
    mfmas = ["v_mfma_f32_32x32x16_bf16 %s, %s, %s, %s" % (v(vD,16), v(vFA+4*kk,4), v(vFB+4*kk,4), v(vD,16)) for kk in range(8)]
    P = vP
    setup = []; e = setup.append
    aL, bL = vS, vS+1
    e("v_mul_f32 v%d, v%d, v%d" % (aL, vDt, P+0))
    e("v_mul_f32 v%d, v%d, v%d" % (bL, vDt, P+1))
    e("v_mul_f32 v%d, %s, v%d" % (aL, fhex(LOG2E), aL))
    e("v_mul_f32 v%d, %s, v%d" % (bL, fhex(INV2PI), bL))
    e("v_mul_f32 v%d, v%d, v%d" % (TA, vDt, P+2))
    e("v_mul_f32 v%d, v%d, v%d" % (TB, vDt, P+3))
    e("v_mul_f32 v%d, v%d, v%d" % (XR, P+4, TA))
    e("v_mul_f32 v%d, v%d, v%d" % (XI, P+4, TB))
    e("v_fma_f32 v%d, -v%d, v%d, v%d" % (XR, P+5, TB, XR))
    e("v_fmac_f32 v%d, v%d, v%d" % (XI, P+5, TA))
    evs = [(1.0, TC, TD), (8.0, YR+1, YI+1), (256.0, MR, MI)]
    for j, (l, dr, di) in enumerate(evs):
        m, p, r = vS+2+3*j, vS+3+3*j, vS+4+3*j
        if l == 1.0:
            e("v_exp_f32 v%d, v%d" % (m, aL))
            e("v_rndne_f32 v%d, v%d" % (r, bL))
            e("v_sub_f32 v%d, v%d, v%d" % (p, bL, r))
        else:
            e("v_mul_f32 v%d, %s, v%d" % (m, fhex(l), aL))
            e("v_mul_f32 v%d, %s, v%d" % (p, fhex(l), bL))
            e("v_exp_f32 v%d, v%d" % (m, m))
            e("v_rndne_f32 v%d, v%d" % (r, p))
            e("v_sub_f32 v%d, v%d, v%d" % (p, p, r))
    for i in range(12): e("v_mov_b32 v%d, v%d" % (P+i, P+6+i))
    def gen_body(pk):
        body = []; e = body.append
        for j, (l, dr, di) in enumerate(evs):
            p = vS+3+3*j
            e("v_cos_f32 v%d, v%d" % (dr, p))
            e("v_sin_f32 v%d, v%d" % (di, p))
        e("v_mov_b32 v%d, 1.0" % YR); e("v_mov_b32 v%d, 0" % YI)
        for j, (l, dr, di) in enumerate(evs):
            m = vS+2+3*j
            e("v_mul_f32 v%d, v%d, v%d" % (dr, dr, m))
            e("v_mul_f32 v%d, v%d, v%d" % (di, di, m))
        def square(dr, di, r, i):
            e("v_mul_f32 v%d, v%d, v%d" % (dr, r, r))
            e("v_mul_f32 v%d, v%d, v%d" % (di, r, i))
            e("v_fma_f32 v%d, -v%d, v%d, v%d" % (dr, i, i, dr))
            e("v_add_f32 v%d, v%d, v%d" % (di, di, di))
        square(W16R, W16I, YR+1, YI+1)
        square(W2R, W2I, TC, TD)
        m2r, m2i = (M2R, M2I) if pk else (MR+1, MI+1)
        square(m2r, m2i, MR, MI)
        e("v_mul_f32 v%d, v%d, v%d" % (XR+1, XR, TC))
        e("v_mul_f32 v%d, v%d, v%d" % (XI+1, XR, TD))
        e("v_fma_f32 v%d, -v%d, v%d, v%d" % (XR+1, XI, TD, XR+1))
        e("v_fmac_f32 v%d, v%d, v%d" % (XI+1, XI, TC))
        if pk:
            e("v_mov_b32 v%d, v%d" % (MR+1, M2R)); e("v_mov_b32 v%d, v%d" % (MI+1, M2I))
        def mul2(*args, halves=(0, 1), **kw):
            return pkmul(*args, **kw) if pk else pmul(*args, halves=halves, **kw)
        sidec = []
        for k_ in range(4): sidec.append(mul2(XR+2*k_+2, XI+2*k_+2, XR+2*k_, XI+2*k_, W2R, W2I, TC, TD, bw=True, halves=(0, 1) if k_ < 3 else (0,)))
        for k_ in range(3): sidec.append(mul2(MR+2*k_+2, MI+2*k_+2, MR+2*k_, MI+2*k_, m2r, m2i, TC, TD, bw=True, halves=(0, 1) if k_ < 2 else (0,)))
        for pr in range(16):
            c0 = vC + 2*(pr & 1)
            e("v_cvt_pk_bf16_f32 v%d, v%d, v%d" % (c0, YR, YI))
            e("v_cvt_pk_bf16_f32 v%d, v%d, v%d" % (c0+1, YR+1, YI+1))
            y = mul2(YR, YI, YR, YI, W16R, W16I, TA, TB, bw=True) if pr < 15 else ([], [])
            sc = sidec.pop(0) if sidec else ([], [])
            for t in y[0] + sc[0]: e(t)
            e(wr2(32 + 2*pr, c0, c0+1))
            for t in y[1] + sc[1]: e(t)
        def cvx(dst, r, i): e("v_cvt_pk_bf16_f32 v%d, v%d, -v%d" % (dst, r, i))
        for q in range(0, 8, 2):
            c0 = vC + 4 + (q & 2)
            cvx(c0, XR+q, XI+q); cvx(c0+1, XR+q+1, XI+q+1)
            e(wr2(xrow(0, q), c0, c0+1))
        G = {}
        pool = list(range(vS, vS+12)) + list(range(vC, vC+8))
        def put(row0, n0, n1): e(wr2(row0, G[n0], G[n1]))
        def keep(names):
            for h, nm in enumerate(names):
                if nm is not None:
                    G[nm] = pool.pop(0); cvx(G[nm], ZR+h, ZI+h)
        G[8] = pool.pop(0); cvx(G[8], XR+8, XI+8)
        if pk:
            def prod(xi, mp, names):
                f, s_ = pkmul(ZR, ZI, XR+xi, XI+xi, MR+2*mp, MI+2*mp, TA, TB, bx=True)
                for t in f + s_: e(t)
                keep(names)
            prod(0, 0, (256, 512)); put(xrow(1,0), 256, 256); put(xrow(0,8), 8, 512)
            prod(4, 0, (260, 516)); put(xrow(1,4), 260, 260)
            prod(8, 0, (264, 520)); put(xrow(0,10), 516, 520)
            e("v_mov_b32 v%d, v%d" % (XR+3, XR+6)); e("v_mov_b32 v%d, v%d" % (XI+3, XI+6))
            f, s_ = pkmul(ZR, ZI, XR+2, XI+2, MR, MI, TA, TB, bw=True)
            for t in f + s_: e(t)
            keep((258, 262))
            put(xrow(1,2), 258, 260); put(xrow(1,6), 262, 264)
            prod(0, 1, (768, 1024)); put(xrow(1,8), 264, 768)
            prod(4, 1, (772, None))
            prod(8, 1, (776, 1032)); put(xrow(1,10), 772, 776); put(xrow(0,12), 1024, 1032)
            prod(0, 2, (1280, 1536))
            prod(8, 2, (1288, 1544)); put(xrow(0,14), 1280, 1288); put(xrow(1,12), 1536, 1544)
            e("v_mov_b32 v%d, v%d" % (XR+1, XR+8)); e("v_mov_b32 v%d, v%d" % (XI+1, XI+8))
            f, s_ = pkmul(ZR, ZI, XR, XI, MR+6, MI+6, TA, TB, bw=True)
            for t in f + s_: e(t)
            keep((1792, 1800))
            put(xrow(1,14), 1792, 1800)
        else:
            def prod2(p0, p1):
                fs = []; ss = []
                for h, p in enumerate((p0, p1)):
                    if p is None: continue
                    f, s_ = pmul(ZR+h, ZI+h, XR+p[0], XI+p[0], MR+p[1]-1, MI+p[1]-1, TA, TB, halves=(0,))
                    fs += f; ss += s_
                for t in fs + ss: e(t)
                keep([p[2] if p else None for p in (p0, p1)])
            prod2((0,1,256), (0,2,512)); put(xrow(1,0), 256, 256); put(xrow(0,8), 8, 512)
            prod2((2,1,258), (4,1,260)); put(xrow(1,2), 258, 260); put(xrow(1,4), 260, 260)
            prod2((6,1,262), (8,1,264)); put(xrow(1,6), 262, 264)
            prod2((4,2,516), (8,2,520)); put(xrow(0,10), 516, 520)
            prod2((0,3,768), None); put(xrow(1,8), 264, 768)
            prod2((4,3,772), (8,3,776)); put(xrow(1,10), 772, 776)
            prod2((0,4,1024), (8,4,1032)); put(xrow(0,12), 1024, 1032)
            prod2((0,5,1280), (8,5,1288)); put(xrow(0,14), 1280, 1288)
            prod2((0,6,1536), (8,6,1544)); put(xrow(1,12), 1536, 1544)
            prod2((0,7,1792), (8,7,1800)); put(xrow(1,14), 1792, 1800)
        return body
    NPK = getattr(a, "NPK", 0)
    for pk, upto in ((True, NPK), (False, 3)):
        if (pk and NPK == 0) or (not pk and NPK == 3): continue
        lp = a.newlabel("L_kgen")
        a.label(lp)
        for t in setup: a(t)
        a("s_waitcnt lgkmcnt(0)")
        mf = list(mfmas)
        for cnt, t in enumerate(gen_body(pk)):
            if mf and cnt % (4 if pk else 12) == 0: a(mf.pop(0))
            KH = getattr(a, "KH", 0)
            if KH == 1 and t.startswith("ds_"): continue
            if KH == 3: continue
            if KH == 2 and not t.startswith("ds_"): t = "s_nop 0"
            a(t)
        assert not mf
        for kk in range(8):
            a("ds_read_b128 %s, v%d offset:%d" % (v(vFA+4*kk,4), vFrag, 32*kk))
            a("ds_read_b128 %s, v%d offset:%d" % (v(vFB+4*kk,4), vFrag, 32*kk + 32*ROWB))
        a("s_add_u32 s%d, s%d, 1" % (sCnt, sCnt))
        a("s_cmp_lt_u32 s%d, %d" % (sCnt, upto))
        a("s_cbranch_scc1 %s" % lp)
    a.stamp(2); a.cstamp(10)
    vOA, vOC, vOT = vS, vS+1, vS+2
    a("v_sub_u32 v%d, 1008, v%d" % (vOA, vL16))
    a("v_add_u32 v%d, s%d, v%d" % (vOA, sL, vOA))
    a("v_and_b32 v%d, 0x1f0, v%d" % (vOC, vL16))
    a("v_add_u32 v%d, s%d, v%d" % (vS+3, sL, vOC))
    a("v_lshrrev_b32 v%d, 5, v0" % vT1)
    a("v_lshl_add_u32 v%d, v%d, 10, v%d" % (vOC, vT1, vOC))
    a("v_sub_u32 v%d, 1520, v%d" % (vOC, vOC))
    a("v_add_u32 v%d, s%d, v%d" % (vOC, sL, vOC))
    a("v_cmp_eq_u32 vcc, 0, v0")
    a("v_and_b32 v%d, 1, v0" % vT0)
    a("v_lshlrev_b32 v%d, 4, v%d" % (vOT, vT0))
    a("v_cndmask_b32 v%d, 0, v%d, vcc" % (vDs, vDs))
    a("v_bfe_u32 v%d, v0, 1, 1" % vT1)
    a("v_mul_u32_u24 v%d, %d, v%d" % (vT1, RO_OFF, vT1))
    a("v_add3_u32 v%d, v%d, v%d, s%d" % (vOT, vOT, vT1, sL))
    a("s_waitcnt lgkmcnt(0)")
    for t in mfmas: a(t)
    vA, vB = vWA, vWA+4
    vZr = vWA+8
    for i in range(4): a("v_mov_b32 v%d, 0" % (vZr+i))
    a("ds_write_b128 v%d, %s offset:9216" % (vS+3, v(vZr,4)))
    a("v_and_b32 v%d, 15, v0" % vT0)
    a("v_lshrrev_b32 v%d, 4, v0" % vT1)
    a("v_lshlrev_b32 v%d, 3, v%d" % (vA, vT1))
    a("v_sub_u32 v%d, v%d, v%d" % (vA, vA, vT0))
    a("v_lshlrev_b32 v%d, 1, v%d" % (vA, vA))
    a("v_and_b32 v%d, 1, v0" % (vA+1))
    a("v_cmp_eq_u32 vcc, 1, v%d" % (vA+1))
    a("v_xor_b32 v%d, 1, v%d" % (vA+1, vA+1))
    a("v_mul_u32_u24 v%d, %d, v%d" % (vA+1, RO_OFF + 2, vA+1))
    a("v_add3_u32 v%d, v%d, v%d, s%d" % (vA, vA, vA+1, sL))
    for j in (3, 2, 1, 0):
        a("v_add_u32 v%d, %d, v%d" % (vA+j, 4062 - 1024*j - 512 - 64, vA))
    a("v_lshlrev_b32 v%d, 5, v%d" % (vB, vT0))
    a("v_lshl_add_u32 v%d, v%d, 4, v%d" % (vB, vT1, vB))
    a("v_add_u32 v%d, s%d, v%d" % (vB, sL, vB))
    a("v_add_u32 v%d, %d, v%d" % (vB, CV_UB - 32 - 64, vB))
    d = lambda q: vD + q
    a("v_add_f32 v%d, v%d, v%d" % (d(0), d(0), vDs))
    O = vFA
    def pk(dst, lo, hi): a("v_cvt_pk_bf16_f32 v%d, v%d, v%d" % (dst, lo, hi))
    def st(reg, voff, imm): a("ds_write_b128 v%d, %s offset:%d" % (voff, v(reg,4), imm))
    for i, (lo, hi) in enumerate([(7,6),(5,4),(3,2),(1,0)]): pk(O+i, d(lo), d(hi))
    st(O, vOA, 3072)
    for i, (lo, hi) in enumerate([(8,7),(6,5),(4,3),(2,1)]): pk(O+4+i, d(lo), d(hi))
    st(O+4, vOA, RO_OFF + 3072)
    for i, (lo, hi) in enumerate([(11,11),(10,10),(10,9),(9,9)]): pk(O+8+i, d(lo), d(hi))
    st(O+8, vOA, 2048)
    for i, (lo, hi) in enumerate([(11,11),(11,10),(10,10),(9,9)]): pk(O+12+i, d(lo), d(hi))
    st(O+12, vOA, RO_OFF + 2048)
    for sl, (qa, imm) in enumerate([(12, 512), (14, 0)]):
        x = vS+4+sl
        a("v_cndmask_b32 v%d, v%d, v%d, vcc" % (x, d(qa), d(qa+1)))
        B = O+16+8*sl
        for i, (lo, hi) in enumerate([(d(qa+1),d(qa+1)),(d(qa+1),x),(d(qa),d(qa)),(d(qa),d(qa))]): pk(B+i, lo, hi)
        st(B, vOC, imm)
        for i, (lo, hi) in enumerate([(d(qa+1),d(qa+1)),(d(qa+1),d(qa+1)),(x,d(qa)),(d(qa),d(qa))]): pk(B+4+i, lo, hi)
        st(B+4, vOC, RO_OFF + imm)
    a("v_readlane_b32 s%d, v%d, 0" % (sT, d(0)))
    a("v_and_b32 v%d, 3, v0" % vT0)
    a("v_cmp_eq_u32 vcc, 2, v%d" % vT0)
    a("v_cvt_pk_bf16_f32 v%d, s%d, 0" % (vT1, sT))
    a("s_nop 0")
    a("v_cndmask_b32 v%d, 0, v%d, vcc" % (vZr, vT1))
    st(vZr, vOT, 4096)
    vAcc = 208
    vFr = 56
    vO = 184
    def lds_gate(word_off, val):
        gl = a.newlabel("L_gate"); go = a.newlabel("L_gateok")
        a("s_lshl_b32 s%d, s%d, 2" % (sT, S_WAVE))
        a("s_add_u32 s%d, s%d, %d" % (sT, sT, word_off - 16))
        a("v_mov_b32 v%d, s%d" % (vT0, sT))
        a("s_mov_b32 s%d, 0" % sCnt)
        a.label(gl)
        a("ds_read_b32 v%d, v%d" % (vT1, vT0))
        a("s_add_u32 s%d, s%d, 1" % (sCnt, sCnt))
        a("s_cmp_gt_u32 s%d, 0x%x" % (sCnt, SPIN_MAX*4))
        a("s_waitcnt lgkmcnt(0)")
        a("s_cbranch_scc1 %s" % go)
        a("v_cmp_le_u32 vcc, %d, v%d" % (val, vT1))
        a("s_cbranch_vccnz %s" % go)
        a("s_sleep 2")
        a("s_branch %s" % gl)
        a.label(go)
    if stage_rel: lds_gate(C_REL, stage_rel)
    sy.tag_load()
    sy.poll_issue(vL16, "0", FL_LNT, "lnt")
    sy.poll_issue(vPA, "s%d" % sFx, 0, "xt", vPoll2)
    sy.tag_check()
    sy.poll_check(vL16, "0", FL_LNT, "lnt", sleep=getattr(a, "KSLEEP", 2))
    sy.poll_check(vPA, "s%d" % sFx, 0, "xt", vPoll2, sleep=getattr(a, "KSLEEP", 2))
    vXu, vSf = 120, 136
    for i in range(8):
        a.vmem("buffer_load_dwordx2 %s, v%d, s[%d:%d], s%d offen offset:%d sc1" % (v(vXu+2*i,2), vUg, sXN, sXN+3, sU, i*512), "u%d" % i)
        dst = vSf + 8*i if i < 7 else 208
        for h in range(2):
            a("s_mov_b32 s%d, %d" % (sT, i*1024 + h*8192))
            a.vmem("buffer_load_dwordx4 %s, v%d, s[%d:%d], s%d offen sc1" % (v(dst+4*h,4), vL16, sSF, sSF+3, sT), "u%d" % i)
    a("v_add_u32 v%d, s%d, v%d" % (vT0, sL, vUg))
    for i in range(8):
        a.wait(vm="u%d" % i)
        S = vSf + 8*i if i < 7 else 208
        X = vXu + 2*i; U = 216 + 4*(i & 1)
        a("v_lshlrev_b32 v%d, 16, v%d" % (U, X)); a("v_and_b32 v%d, 0xffff0000, v%d" % (U+1, X))
        a("v_lshlrev_b32 v%d, 16, v%d" % (U+2, X+1)); a("v_and_b32 v%d, 0xffff0000, v%d" % (U+3, X+1))
        for r in range(4): a("v_fma_f32 v%d, v%d, v%d, v%d" % (U+r, U+r, S+r, S+4+r))
        a("v_cvt_pk_bf16_f32 v%d, v%d, v%d" % (X, U, U+1))
        a("v_cvt_pk_bf16_f32 v%d, v%d, v%d" % (X+1, U+2, U+3))
        a("ds_write_b64 v%d, %s offset:%d" % (vT0, v(X,2), CV_UB + 512*i))
    for i in range(32): a("v_mov_b32 v%d, 0" % (vAcc+i))
    def frA(buf, k1): return vFr + buf*64 + 4*k1
    def frB(buf, mu): return vFr + buf*64 + 32 + 4*mu
    def reads(buf, par):
        out = []
        ex = 64 if par == 0 else 0
        for i in range(8):
            j = i // 2
            o = (128 if i % 2 == 0 else 0) + ex//4
            out.append("ds_read2_b32 %s, v%d offset0:%d offset1:%d" % (v(frA(buf,i),2), vA+j, o, o+1))
            out.append("ds_read2_b32 %s, v%d offset0:%d offset1:%d" % (v(frA(buf,i)+2,2), vA+j, o+2, o+3))
            out.append("ds_read_b128 %s, v%d offset:%d" % (v(frB(buf,i),4), vB, 512*i + ex))
        return out
    def cmfmas(buf):
        out = []
        for sm in range(8):
            for k1 in range(sm+1):
                for mu in range(sm+1):
                    if max(k1, mu) == sm and k1 + mu <= 7:
                        c = k1 + mu
                        out.append("v_mfma_f32_16x16x32_bf16 %s, %s, %s, %s" % (v(vAcc+4*c,4), v(frA(buf,k1),4), v(frB(buf,mu),4), v(vAcc+4*c,4)))
        return out
    if gate and not pause_rel: lds_gate(C_BAR, 4)
    vGa, vGv = 36, 38
    if pause_rel:
        a("s_lshl_b32 s%d, s%d, 2" % (sT, S_WAVE))
        a("s_add_u32 s%d, s%d, %d" % (sT, sT, C_REL - 16))
        a("v_mov_b32 v%d, s%d" % (vGa, sT))
    a("s_waitcnt vmcnt(0) lgkmcnt(0)")
    a.vm = []
    a.stamp(3); a.cstamp(11)
    a("s_setprio %d" % (0 if pause_rel else getattr(a, "CONVPRIO", 3)))
    pk_ = "ds_read2_b32 %s, v%d offset0:0 offset1:4" % (v(vGv,2), vGa)
    if pause_rel: a(pk_)
    for ins in reads(0, 0): a(ins)
    a("s_mov_b32 s%d, 0" % sCnt)
    lp = a.newlabel("L_conv")
    a.label(lp)
    if not pause_rel and getattr(a, "CONV2", True):
        a.lg = [(0, i) for i in range(8) for _ in range(3)]
        for buf in (0, 1):
            rd = reads(1-buf, 1 if buf == 0 else 0)
            ri = 0; slot = 0
            for sm in range(8):
                a.wait(lg=[(buf, sm)])
                for k1 in range(sm+1):
                    for mu in range(sm+1):
                        if max(k1, mu) == sm and k1 + mu <= 7:
                            c = k1 + mu
                            if not getattr(a, "CH", 0): a("v_mfma_f32_16x16x32_bf16 %s, %s, %s, %s" % (v(vAcc+4*c,4), v(frA(buf,k1),4), v(frB(buf,mu),4), v(vAcc+4*c,4)))
                            if buf == 1 and slot == 0:
                                for j in range(4): a("v_subrev_u32 v%d, 128, v%d" % (vA+j, vA+j))
                                a("v_subrev_u32 v%d, 128, v%d" % (vB, vB))
                            if slot % 4 != 3 and slot >= 1 and ri < len(rd):
                                a.lds(rd[ri], (1-buf, ri//3)); ri += 1
                            slot += 1
            assert ri == len(rd)
        a.lg = []
    else:
        for buf in (0, 1):
            a("s_waitcnt lgkmcnt(0)")
            if pause_rel:
                go = a.newlabel("L_np"); sp = a.newlabel("L_pz"); hi = a.newlabel("L_ph")
                a("v_cmp_gt_u32 vcc, %d, v%d" % (pause_rel, vGv))
                a("s_cbranch_vccnz %s" % go)
                a("s_mov_b32 s%d, 0" % sT)
                a.label(sp)
                a("v_cmp_le_u32 vcc, 4, v%d" % (vGv+1))
                a("s_cbranch_vccnz %s" % hi)
                a("s_sleep 2")
                a(pk_)
                a("s_add_u32 s%d, s%d, 1" % (sT, sT))
                a("s_cmp_lt_u32 s%d, 0x%x" % (sT, SPIN_MAX*4))
                a("s_waitcnt lgkmcnt(0)")
                a("s_cbranch_scc1 %s" % sp)
                a.label(hi)
                a("s_setprio %d" % getattr(a, "CONVPRIO", 3))
                a.label(go)
            if buf == 1:
                for j in range(4): a("v_subrev_u32 v%d, 128, v%d" % (vA+j, vA+j))
                a("v_subrev_u32 v%d, 128, v%d" % (vB, vB))
            rd = reads(1-buf, 1 if buf == 0 else 0)
            if pause_rel: rd = rd + ["s_nop 0"]*6 + [pk_]
            ri = 0
            for m in cmfmas(buf):
                a(m)
                if ri < len(rd):
                    a(rd[ri]); ri += 1
    a("s_add_u32 s%d, s%d, 1" % (sCnt, sCnt))
    a("s_cmp_lt_u32 s%d, 4" % sCnt)
    a("s_cbranch_scc1 %s" % lp)
    a.stamp(4); a.cstamp(12)
    a("v_and_b32 v%d, 15, v0" % vT0)
    a("v_lshrrev_b32 v%d, 4, v0" % vT1)
    a("v_lshlrev_b32 v%d, 5, v%d" % (vT0, vT0))
    a("v_lshl_add_u32 v%d, v%d, 3, v%d" % (vT0, vT1, vT0))
    a("v_add_u32 v%d, s%d, v%d" % (vT0, sL, vT0))
    a("v_add_u32 v%d, s%d, v%d" % (vT1, sL, vL16))
    a.nop(2)
    for c in range(8):
        a("v_cvt_pk_bf16_f32 v%d, v%d, v%d" % (vO+2*c, vAcc+4*c, vAcc+4*c+1))
        a("v_cvt_pk_bf16_f32 v%d, v%d, v%d" % (vO+2*c+1, vAcc+4*c+2, vAcc+4*c+3))
        a("ds_write_b64 v%d, %s offset:%d" % (vT0, v(vO+2*c,2), 512*c))
    for p in range(4): a("ds_read_b128 %s, v%d offset:%d" % (v(vAcc+4*p,4), vT1, 1024*p))
    for p in range(4):
        a("s_waitcnt lgkmcnt(%d)" % (3-p))
        a.vmem("buffer_store_dwordx4 %s, v%d, s[%d:%d], s%d offen offset:%d sc1" % (v(vAcc+4*p,4), vL16, sST, sST+3, sU, p*1024), "st")
    a("s_waitcnt vmcnt(0) lgkmcnt(0)")
    sy.signal("s%d" % sFo, 0)
    a.stamp(5)
    a.stamp_dump(14, S_WAVE, 56, (200 << 20))
    a("s_endpgm")
    a.vm = []; a.lg = []
```

```python
from asmlib import *
from common import *
from sync import Sync

def tile_maps(e, sRb, sCb, sRb2, sCb2, sT):
    i = S_WG
    if sRb is not None:
        e("s_bfe_u32 s%d, s%d, 0x20001" % (sRb, i))
        e("s_lshl_b32 s%d, s%d, 2" % (sRb, sRb))
        e("s_lshr_b32 s%d, s%d, 6" % (sT, i))
        e("s_add_u32 s%d, s%d, s%d" % (sRb, sRb, sT))
        e("s_and_b32 s%d, s%d, 1" % (sCb, i))
        e("s_lshl_b32 s%d, s%d, 3" % (sCb, sCb))
        e("s_bfe_u32 s%d, s%d, 0x30003" % (sT, i))
        e("s_add_u32 s%d, s%d, s%d" % (sCb, sCb, sT))
    if sRb2 is not None:
        e("s_bfe_u32 s%d, s%d, 0x20001" % (sRb2, i))
        e("s_lshl_b32 s%d, s%d, 3" % (sRb2, sRb2))
        e("s_lshr_b32 s%d, s%d, 5" % (sT, i))
        e("s_add_u32 s%d, s%d, s%d" % (sRb2, sRb2, sT))
        e("s_and_b32 s%d, s%d, 1" % (sCb2, i))
        e("s_lshl_b32 s%d, s%d, 2" % (sCb2, sCb2))
        e("s_bfe_u32 s%d, s%d, 0x20003" % (sT, i))
        e("s_add_u32 s%d, s%d, s%d" % (sCb2, sCb2, sT))

def k_rotation(e, sT, sT2, sRb, sCb):
    RM = getattr(e, "ROTMODE", 0)
    if RM:
        e("s_add_u32 s%d, s%d, s%d" % (sT, sRb, sCb))
        e("s_and_b32 s%d, s%d, %d" % (sT, sT, RM - 1))
        return
    e("s_and_b32 s%d, s%d, 3" % (sT, sRb))
    e("s_mul_i32 s%d, s%d, 3" % (sT, sT))
    e("s_add_u32 s%d, s%d, s%d" % (sT, sT, sCb))
    for _ in range(2):
        e("s_sub_u32 s%d, s%d, 10" % (sT2, sT))
        e("s_cmp_ge_u32 s%d, 10" % sT)
        e("s_cselect_b32 s%d, s%d, s%d" % (sT, sT2, sT))

def k_rotation2(e, sK, sT2, sRb2, sCb2):
    e("s_and_b32 s%d, s%d, 3" % (sT2, sCb2))
    e("s_mul_i32 s%d, s%d, 3" % (sT2, sT2))
    e("s_and_b32 s%d, s%d, 7" % (sK, sRb2))
    e("s_add_u32 s%d, s%d, s%d" % (sT2, sT2, sK))
    e("s_lshr_b32 s%d, s%d, 1" % (sK, sK))
    e("s_add_u32 s%d, s%d, s%d" % (sT2, sT2, sK))
    e("s_sub_u32 s%d, s%d, 12" % (sK, sT2))
    e("s_cmp_ge_u32 s%d, 12" % sT2)
    e("s_cselect_b32 s%d, s%d, s%d" % (sK, sK, sT2))
    e("s_lshl_b32 s%d, s%d, 10" % (sK, sK))

def x_src_offsets(a, vXs, vT0, vT1, vT2):
    a("v_lshrrev_b32 v%d, 4, v0" % vT0)
    a("v_lshrrev_b32 v%d, 3, v0" % vT1)
    a("v_and_b32 v%d, 7, v0" % vT2)
    a("v_xor_b32 v%d, v%d, v%d" % (vT2, vT2, vT0))
    a("v_mul_u32_u24 v%d, 1280, v%d" % (vXs, vT1))
    a("v_lshl_add_u32 v%d, v%d, 4, v%d" % (vXs, vT2, vXs))
    a("v_xor_b32 v%d, 64, v%d" % (vXs+1, vXs))
    a("v_add_u32 v%d, %d, v%d" % (vXs+2, 2*(10240-1024), vXs))
    a("v_add_u32 v%d, %d, v%d" % (vXs+3, 3*(10240-1024), vXs+1))
    a("v_add_u32 v%d, %d, v%d" % (vXs+1, 1*(10240-1024), vXs+1))

def emit_loader(a, plan, T=43, prio=3, ROT=True, RELAHEAD=11):
    vT0, vT1, vT2 = 1, 2, 3
    vTag, vZero, vL16 = 4, 6, 7
    vPoll = 8
    vXs, vWs, vCs, vBs, vAs = 20, 24, 36, 40, 44
    vRel, vPubA, vPub, vRelA, vPA = 60, 64, 65, 66, 67
    sRb, sCb, sRb2, sCb2, sT, sT2, sXo, sWo, sCo, sRel, sPub, sNeed, sAll = 40, 41, 42, 43, 44, 45, 46, 47, 48, 49, 50, 51, 52
    sSy = 54
    sRet = 58
    sXs, sW1, sW2, sW2F, sAct, sFl = 60, 64, 68, 72, 76, 4
    sBo, sAo, sFw, sFc = 53, 57, 46, 47
    sKx, sKw = 100, 101
    sy = Sync(a, sFl, P_DBG, vTag, vPoll, sSy, vZero)
    a.c("================ role: loader ================")
    a.stamp(0)
    if a.PROF:
        a("s_mov_b32 s86, 0"); a("s_mov_b32 s87, 0")
    a("s_setprio %d" % getattr(a, "LDPRIO0", 0))
    tile_maps(a, sRb, sCb, None, None, sT)
    for z in range(3):
        a("v_add_u32 v%d, %d, v0" % (vT2, 64*z))
        a("v_mul_u32_u24 v%d, 5462, v%d" % (vWs+z, vT2))
        a("v_lshrrev_b32 v%d, 16, v%d" % (vWs+z, vWs+z))
        a("v_mul_u32_u24 v%d, %d, v%d" % (vWs+z, 3072-192, vWs+z))
        a("v_lshl_add_u32 v%d, v0, 4, v%d" % (vWs+z, vWs+z))
    a("s_mul_i32 s%d, s%d, 192" % (sWo, sCb))
    k_rotation(a, sT, sT2, sRb, sCb)
    a("s_mul_i32 s%d, s%d, %d" % (sKw, sT, 64*3072))
    a("s_add_u32 s%d, s%d, %d" % (sT, sT, plan.NX_OWN))
    a("s_sub_u32 s%d, s%d, 10" % (sT2, sT))
    a("s_cmp_ge_u32 s%d, 10" % sT)
    a("s_cselect_b32 s%d, s%d, s%d" % (sT, sT2, sT))
    a("s_lshl_b32 s%d, s%d, 7" % (sKx, sT))
    a("s_waitcnt lgkmcnt(0)")
    a.srd(sW1, P_W1, 640*1536*2)
    st8 = {"n": 0, "pend": [], "issued": 0}
    def publish(k):
        a("s_max_u32 s%d, s%d, %d" % (sPub, sPub, k))
        a("v_mov_b32 v%d, s%d" % (vPub, sPub))
        a.lds("ds_write_b32 v%d, v%d" % (vPubA, vPub), "pub")
    def after_issue():
        while st8["pend"] and st8["n"] - st8["pend"][0][1] >= T:
            k, last = st8["pend"].pop(0)
            a("s_waitcnt vmcnt(%d)" % (st8["n"] - last))
            publish(k)
    def vm(txt):
        a(txt); st8["n"] += 1
        after_issue()
    def drain():
        while st8["pend"]:
            k, last = st8["pend"].pop(0)
            a("s_waitcnt vmcnt(%d)" % min(63, st8["n"] - last))
            publish(k)
    def rel_read():
        a.lds("ds_read_b128 %s, v%d" % (v(vRel,4), vRelA), "rel")
    def rel_check(need):
        if getattr(a, "NOREL", False): return
        ok = a.newlabel("L_relok")
        a.wait(lg="rel")
        a("v_min3_u32 v%d, v%d, v%d, v%d" % (vRel, vRel, vRel+1, vRel+2))
        a("v_min_u32 v%d, v%d, v%d" % (vRel, vRel, vRel+3))
        a("s_mov_b32 s%d, %d" % (sNeed, need))
        a("v_readfirstlane_b32 s%d, v%d" % (sRel, vRel))
        a("s_mov_b32 s%d, %d" % (sAll, st8["issued"]))
        a("s_cmp_ge_u32 s%d, %d" % (sRel, need))
        a("s_cbranch_scc1 %s" % ok)
        a("s_call_b64 s[%d:%d], L_ld_slow" % (sRet, sRet+1))
        a.label(ok)
    def adv(r, step, wrap):
        return ["s_add_u32 s%d, s%d, %d" % (r, r, step), "s_cmp_ge_u32 s%d, %d" % (r, wrap), "s_cselect_b32 s%d, 0, s%d" % (r, r)]
    def instrs(x):
        out = []
        if x.kind == "C":
            for i in range(8):
                pre = []
                if i % 4 == 0:
                    pre = ["s_mov_b32 m0, %d" % (L_W + 3*12288 + (i//4)*4096), "s_add_u32 s%d, s%d, 20480" % (sCo, sCo) if i else "s_nop 0"]
                out.append((pre, "buffer_load_dwordx4 v%d, s[%d:%d], s%d offen offset:%d lds" % (vCs + i % 4, sW2, sW2+3, sCo, (i % 4)*1024)))
        elif x.kind == "X":
            for w in range(4):
                for i in range(4):
                    pre = []
                    if i == 0:
                        pre = ["s_mov_b32 m0, %d" % (L_X + (x.idx % 3)*16384 + w*4096), ("s_add_u32 s%d, s%d, s%d" % (sT, sXo, sKx)) if w == 0 else ("s_add_u32 s%d, s%d, 40960" % (sT, sT))]
                    if w == 1 and i == 1: pre = adv(sKx, 128, 1280)
                    out.append((pre, "buffer_load_dwordx4 v%d, s[%d:%d], s%d offen offset:%d lds" % (vXs+i, sXs, sXs+3, sT, i*1024)))
        elif x.kind == "W":
            for z in range(12):
                pre = []
                if z % 3 == 0:
                    pre = ["s_mov_b32 m0, %d" % (L_W + (x.idx % 4)*12288 + (z//3)*3072), ("s_add_u32 s%d, s%d, s%d" % (sT, sWo, sKw)) if z == 0 else ("s_add_u32 s%d, s%d, %d" % (sT, sT, 16*3072))]
                if z == 1: pre = adv(sKw, 64*3072, 640*3072)
                out.append((pre, "buffer_load_dwordx4 v%d, s[%d:%d], s%d offen offset:%d lds" % (vWs + z % 3, sW1, sW1+3, sT, (z % 3)*1024)))
        elif x.kind == "B":
            for n, r in enumerate(x.rows):
                for w in range(4):
                    pre = []
                    if w == 0:
                        pre = ["s_mov_b32 m0, %d" % (r*4096), "s_add_u32 s%d, s%d, %d" % (sT, sT, 48*1024)]
                        if n == 0:
                            pre = ["s_add_u32 s%d, s%d, %d" % (sT, sKw, x.idx*1024), "s_sub_u32 s%d, s%d, %d" % (sT2, sT, 12*1024), "s_cmp_ge_u32 s%d, %d" % (sT, 12*1024),
                                   "s_cselect_b32 s%d, s%d, s%d" % (sT, sT2, sT), "s_mov_b32 m0, %d" % (r*4096), "s_add_u32 s%d, s%d, s%d" % (sT, sT, sBo)]
                    out.append((pre, "buffer_load_dwordx4 v%d, s[%d:%d], s%d offen offset:%d sc1 lds" % (vBs+w, sW2F, sW2F+3, sT, w*1024)))
        elif x.kind == "S":
            for i in range(10):
                pre = ["s_mov_b32 m0, %d" % (x.rows[0]*4096 + i*1024), "s_add_u32 s%d, s%d, %d" % (sT, sT, 8*TRS) if i else "s_nop 0"]
                out.append((pre, "buffer_load_dwordx4 v%d, s[%d:%d], s%d offen sc1 lds" % (vCs, sW2, sW2+3, sT)))
        return out
    items = plan.items
    cur_rel = 0
    for k, x in enumerate(items):
        nxt = items[k+1] if k + 1 < len(items) else None
        if x.kind == "B" and x.idx == 0:
            a("s_waitcnt vmcnt(%d)" % (st8["n"] - st8["pollpos"]))
            okl = a.newlabel("L_w2ok"); sp = a.newlabel("L_w2spin"); ck = a.newlabel("L_w2chk")
            if not getattr(a, "NOPOLL", False):
                a("s_mov_b32 s%d, 0" % (sSy+2))
                a("s_branch %s" % ck)
                a.label(sp)
                a("s_waitcnt vmcnt(0)")
                publish(st8["issued"])
                a("s_sleep %d" % getattr(a, "LSLEEP", 1))
                for t in st8["polltxt"]: a(t)
                a("s_add_u32 s%d, s%d, 1" % (sSy+2, sSy+2))
                a("s_cmp_gt_u32 s%d, 0x%x" % (sSy+2, SPIN_MAX))
                a("s_waitcnt vmcnt(0)")
                a("s_cbranch_scc1 %s" % okl)
                a.label(ck)
                a("v_cmp_eq_u32 vcc, 0, v%d" % vTag)
                for q in range(6):
                    a("v_cmp_ne_u64 s[%d:%d], %s, %s" % (sSy, sSy+1, v(vPoll+2*q,2), v(vTag,2)))
                    a("s_or_b64 vcc, vcc, s[%d:%d]" % (sSy, sSy+1))
                a("s_cbranch_scc1 %s" % sp)
                a.label(okl)
            a.stamp(2)
        if x.kind == "ACT":
            drain()
            a.stamp(3)
            a.vm = []
            sy.poll_issue(vPA, "s%d" % sFc, 0, "pact"); st8["n"] += 1
            sy.poll_check(vPA, "s%d" % sFc, 0, "pact", sleep=getattr(a, "LSLEEP", 1))
            publish(k+1); st8["issued"] = k + 1
            if getattr(a, "LDPRIO2", 0): a("s_setprio %d" % a.LDPRIO2)
            a.stamp(4)
            rel_read()
            continue
        if x.kind == "S":
            a.stamp(12)
            a.srd_off(sW2, P_WS, WS_ST, ST_BYTES)
            a("v_lshrrev_b32 v%d, 3, v0" % vT0)
            a("v_and_b32 v%d, 7, v0" % vT1)
            a("v_mul_u32_u24 v%d, %d, v%d" % (vCs, TRS, vT0))
            a("v_lshl_add_u32 v%d, v%d, 4, v%d" % (vCs, vT1, vCs))
            a("v_min_u32 v%d, %d, v%d" % (vPA, 39*16, vL16))
            a("s_mul_i32 s%d, s%d, 640" % (sFc, sCb2))
            a("s_add_u32 s%d, s%d, %d" % (sFc, sFc, FL_S))
            a.vm = []
            sy.poll_issue(vPA, "s%d" % sFc, 0, "ps"); st8["n"] += 1
            drain()
            sy.poll_check(vPA, "s%d" % sFc, 0, "ps", sleep=getattr(a, "LSLEEP", 1))
            a.stamp(13)
            a("s_mul_i32 s%d, s%d, %d" % (sT, sCb2, 80*TRS))
            a("s_lshl_b32 s%d, s%d, 7" % (sT2, sRb2))
            a("s_add_u32 s%d, s%d, s%d" % (sT, sT, sT2))
        if x.need_rel > cur_rel:
            rel_check(x.need_rel); cur_rel = x.need_rel
        ins = instrs(x)
        for j, (pre, txt) in enumerate(ins):
            if nxt is not None and nxt.need_rel > cur_rel and j == max(0, len(ins) - RELAHEAD): rel_read()
            for p in pre: a(p)
            if j == len(ins) - 1:
                a(txt); st8["n"] += 1
                st8["pend"].append((k+1, st8["n"])); st8["issued"] = k + 1
                after_issue()
            else:
                vm(txt)
        if x.kind == "W" and x.idx in (2, 4, 6, 8): a.stamp(8 + (x.idx-2)//2)
        if k == 0:
            if getattr(a, "ORDER", False): a("s_barrier")
            a("s_mul_i32 s%d, s%d, 13108" % (sT, S_WG))
            a("s_lshr_b32 s%d, s%d, 16" % (sT, sT))
            a("s_mul_i32 s%d, s%d, 5" % (sT2, sT))
            a("s_sub_u32 s%d, s%d, s%d" % (sT2, S_WG, sT2))
            a("s_mul_i32 s%d, s%d, 40960" % (sCo, sT))
            a("s_lshl_b32 s%d, s%d, 8" % (sT2, sT2))
            a("s_add_u32 s%d, s%d, s%d" % (sCo, sCo, sT2))
            a("v_lshrrev_b32 v%d, 4, v0" % vT0)
            a("v_and_b32 v%d, 15, v0" % vT1)
            a("v_mul_u32_u24 v%d, 1280, v%d" % (vCs, vT0))
            a("v_lshl_add_u32 v%d, v%d, 4, v%d" % (vCs, vT1, vCs))
            for i in range(1, 4): a("v_add_u32 v%d, %d, v%d" % (vCs+i, i*(5120-1024), vCs))
            x_src_offsets(a, vXs, vT0, vT1, vT2)
            a("s_mul_i32 s%d, s%d, %d" % (sXo, sRb, 128*1280))
            a.srd(sW2, P_W2, W2F_BYTES)
            a.srd(sXs, P_X, 2048*640*2)
            a("v_lshlrev_b32 v%d, 2, v0" % vPubA)
            a("v_add_u32 v%d, %d, v%d" % (vPubA, C_DUMMY, vPubA))
            a("v_mov_b32 v%d, %d" % (vT0, C_RDY))
            a("v_cmp_eq_u32 vcc, 0, v0")
            a("v_mov_b32 v%d, %d" % (vRelA, C_REL))
            a("s_mov_b32 s%d, 0" % sPub)
            a("v_cndmask_b32 v%d, v%d, v%d, vcc" % (vPubA, vPubA, vT0))
            a.stamp(1)
        if k == getattr(a, 'LDDROP', 2): a("s_setprio %d" % prio)
        if k == 3:
            tile_maps(a, None, None, sRb2, sCb2, sT)
            a.srd_off(sW2F, P_WS, WS_W2F, W2F_BYTES)
            a.srd_off(sFl, P_WS, WS_FLAGS, FLAGS_BYTES)
            a("v_lshlrev_b32 v%d, 4, v0" % vL16)
            a("v_mov_b32 v%d, 0" % vZero)
            for w in range(4):
                a("v_add_u32 v%d, %d, v%d" % (vBs+w, w*11*1024, vL16))
            a("s_mul_i32 s%d, s%d, %d" % (sBo, sCb2, 5*48*1024))
            a("v_min_u32 v%d, %d, v%d" % (vPA, 15*16, vL16))
        if x.kind == "W" and x.idx == 9:
            a("s_mul_i32 s%d, s%d, 5" % (sT2, sCb2))
            a("s_lshr_b32 s%d, s%d, 3" % (sT2, sT2))
            a("s_min_u32 s%d, s%d, 3" % (sT2, sT2))
            a("s_mul_i32 s%d, s%d, 1536" % (sT2, sT2))
            a("s_add_u32 s%d, s%d, %d" % (sCo, sT2, FL_W2F))
            txt = ["global_load_dwordx2 %s, v%d, s[%d:%d] sc1" % (v(vTag,2), vZero, P_DBG, P_DBG+1)]
            txt += ["buffer_load_dwordx4 %s, v%d, s[%d:%d], s%d offen offset:%d sc1" % (v(vPoll+4*q,4), vL16, sFl, sFl+3, sCo, q*1024) for q in range(3)]
            st8["polltxt"] = txt
            for t in txt: vm(t)
            st8["pollpos"] = st8["n"]
            k_rotation2(a, sKw, sT2, sRb2, sCb2)
            a("s_lshl_b32 s%d, s%d, 8" % (sFc, sRb2))
            a("s_add_u32 s%d, s%d, %d" % (sFc, sFc, FL_ACT))
    drain()
    a.stamp(5)
    a.stamp_dump(15, S_WAVE, 68, (200 << 20))
    a("s_endpgm")
    a.label("L_ld_slow")
    if a.PROF: a("s_add_u32 s86, s86, 1")
    a("s_mov_b32 s%d, 0" % (sSy+2))
    a.label("L_ld_slow_loop")
    a("s_cmp_lg_u32 s%d, 3" % (sSy+2))
    a("s_cbranch_scc1 L_ld_slow_nodrain")
    if a.PROF: a("s_add_u32 s87, s87, 1")
    a("s_waitcnt vmcnt(0)")
    a("s_max_u32 s%d, s%d, s%d" % (sPub, sPub, sAll))
    a("v_mov_b32 v%d, s%d" % (vPub, sPub))
    a("ds_write_b32 v%d, v%d" % (vPubA, vPub))
    a.label("L_ld_slow_nodrain")
    if getattr(a, "CSLEEP", 0): a("s_sleep %d" % a.CSLEEP)
    rel_read()
    a("s_add_u32 s%d, s%d, 1" % (sSy+2, sSy+2))
    a("s_waitcnt lgkmcnt(0)")
    a("v_min3_u32 v%d, v%d, v%d, v%d" % (vRel, vRel, vRel+1, vRel+2))
    a("v_min_u32 v%d, v%d, v%d" % (vRel, vRel, vRel+3))
    a("s_cmp_gt_u32 s%d, 0x%x" % (sSy+2, SPIN_MAX*16))
    a("v_readfirstlane_b32 s%d, v%d" % (sRel, vRel))
    a("s_cbranch_scc1 L_ld_slow_ret")
    a("s_cmp_lt_u32 s%d, s%d" % (sRel, sNeed))
    a("s_cbranch_scc1 L_ld_slow_loop")
    a.label("L_ld_slow_ret")
    a("s_setpc_b64 s[%d:%d]" % (sRet, sRet+1))
    a.vm = []; a.lg = []
```

```python
import sys
from asmlib import *
from common import *
from plan import Plan
from loader import emit_loader
from gemm4 import emit_compute
from kc4 import emit_kc
from lnt4 import emit_lnt
NAME = "recurrent_scan__ssm_conv_s4__dense_activation_mish__prompt_kernel"
HDR = open("recurrent_scan__ssm_conv_s4__dense_activation_mish__prompt.s.ref").read().split("; Override launch")[0]
def build(path, prof=False, nopoll=False, noaux=False, T=12, cprio=1, kprio=2, lprio=3, ldprio=0, rot=True, NB_REG=3, NX_OWN=10, norel=False, noch=False, ksleep=16, lsleep=6, **flags):
    a = Asm()
    a.PROF = prof; a.NOPOLL = nopoll; a.NOREL = norel; a.NOCH = noch; a.KSLEEP = ksleep; a.LSLEEP = lsleep
    for k_, v_ in flags.items(): setattr(a, k_, v_)
    plan = Plan(NB_REG, NX_OWN)
    a.raw(HDR.rstrip())
    a.raw("; @launch grid=(256,1,1) block=(512,1,1) lds=%d" % LDS_BYTES)
    a.raw('.amdgcn_target "amdgcn-amd-amdhsa--gfx950"')
    a.raw(".text")
    kernel_begin(a, NAME)
    a("s_cmp_ge_u32 s2, 256")
    a("s_cbranch_scc1 L_end")
    if prof:
        a("s_memrealtime s[94:95]"); a("s_waitcnt lgkmcnt(0)")
    if not getattr(a, "LATEARG", True):
        a("s_load_dwordx16 s[8:23], s[0:1], 0")
        a("s_load_dwordx16 s[24:39], s[0:1], 64")
    a("v_lshrrev_b32 v1, 6, v0")
    if getattr(a, "CODEPF", False):
        a("s_cmp_ge_u32 s2, 32")
        a("s_cbranch_scc1 L_nopf")
        a("s_getpc_b64 s[4:5]")
        a("v_lshlrev_b32 v2, 6, v0")
        a("global_load_dword v255, v2, s[4:5]")
        a.label("L_nopf")
    a("v_and_b32 v0, 63, v0")
    a("v_lshlrev_b32 v2, 2, v0")
    a("v_add_u32 v2, %d, v2" % L_CTL)
    a("v_readfirstlane_b32 s3, v1")
    a("v_mov_b32 v1, 0")
    a("ds_write_b32 v2, v1")
    a("s_waitcnt lgkmcnt(0)")
    if getattr(a, "LATEARG", True):
        a("s_load_dwordx16 s[8:23], s[0:1], 0")
        a("s_load_dwordx16 s[24:39], s[0:1], 64")
    if not getattr(a, "ORDER", False): a("s_barrier")
    a("s_cmp_lt_u32 s3, 4")
    a("s_cbranch_scc1 L_compute")
    a("s_cmp_eq_u32 s3, 4")
    a("s_cbranch_scc1 L_loader")
    if noaux: a("s_endpgm")
    a("s_setprio 3")
    a("s_sub_u32 s41, s3, 5")
    a("s_mul_i32 s40, s41, 20480")
    a("s_add_u32 s40, s40, %d" % L_AUX)
    a("s_lshl_b32 s42, s2, 1")
    a("s_add_u32 s42, s42, s41")
    a("s_cmp_lt_u32 s3, 7")
    a("s_cbranch_scc1 L_kc")
    a("s_add_u32 s42, s2, 512")
    a("s_cmp_lt_u32 s2, 128")
    a("s_cbranch_scc1 L_kc")
    a("s_bfe_u32 s42, s2, 0x20001")
    a("s_lshl_b32 s42, s42, 5")
    a("s_bfe_u32 s41, s2, 0x40003")
    a("s_lshl_b32 s41, s41, 1")
    a("s_add_u32 s42, s42, s41")
    a("s_and_b32 s41, s2, 1")
    a("s_add_u32 s42, s42, s41")
    emit_lnt(a, 42, 40, lprio)
    a.label("L_kc")
    emit_kc(a, 42, 40, kprio, gate=not getattr(a, 'KNOGATE', False), stage_rel=plan.rel.get(getattr(a, 'KSTAGE', 'W7'), 0), pause_rel=plan.rel.get(getattr(a, 'KPAUSE', 'none'), 0))
    a.label("L_loader")
    emit_loader(a, plan, T, ldprio, rot)
    a.label("L_compute")
    emit_compute(a, plan, cprio)
    a.label("L_end")
    a("s_endpgm")
    a.raw('.section .rodata,"a"')
    a.raw(".p2align 6")
    a.raw(kernel_desc(NAME, 256, 102))
    open(path, "w").write(a.text())
if __name__ == "__main__":
    build("s4.s")
    build("s4_prof.s", prof=True)
    build("s4_np.s", prof=True, nopoll=True, noaux=True)
    build("s4_v1.s", prof=True, STST=True)
    build("s4_v2.s", prof=True, STST=True, nopoll=True)
    build("s4_v3.s", prof=True, STST=True, nopoll=True, ROTMODE=2, L2PF=True, ORDER=True, LDPRIO0=3, LDDROP=2)
    build("s4_v4.s", prof=True, STST=True, nopoll=True, ROTMODE=1, L2PF=True, ORDER=True, LDPRIO0=3, LDDROP=2)
    build("s4_v5.s", prof=True, STST=True, nopoll=True, ROTMODE=2, L2PF=True)
```

```python
import sys
from asmlib import *
from common import *
from plan import Plan
from loader import emit_loader
from gemm4 import emit_compute
from kc4 import emit_kc
from lnt4 import emit_lnt
NAME = "recurrent_scan__ssm_conv_s4__dense_activation_mish__prompt_kernel"
HDR = open("recurrent_scan__ssm_conv_s4__dense_activation_mish__prompt.s.ref").read().split("; Override launch")[0]
def build(path, prof=False, nopoll=False, noaux=False, T=12, cprio=1, kprio=2, lprio=3, ldprio=0, rot=True, NB_REG=3, NX_OWN=10, norel=False, noch=False, ksleep=16, lsleep=6, **flags):
    a = Asm()
    a.PROF = prof; a.NOPOLL = nopoll; a.NOREL = norel; a.NOCH = noch; a.KSLEEP = ksleep; a.LSLEEP = lsleep
    for k_, v_ in flags.items(): setattr(a, k_, v_)
    plan = Plan(NB_REG, NX_OWN)
    a.raw(HDR.rstrip())
    a.raw("; @launch grid=(256,1,1) block=(512,1,1) lds=%d" % LDS_BYTES)
    a.raw('.amdgcn_target "amdgcn-amd-amdhsa--gfx950"')
    a.raw(".text")
    kernel_begin(a, NAME)
    a("s_cmp_ge_u32 s2, 256")
    a("s_cbranch_scc1 L_end")
    if prof:
        a("s_memrealtime s[94:95]"); a("s_waitcnt lgkmcnt(0)")
    if not getattr(a, "LATEARG", True):
        a("s_load_dwordx16 s[8:23], s[0:1], 0")
        a("s_load_dwordx16 s[24:39], s[0:1], 64")
    a("v_lshrrev_b32 v1, 6, v0")
    if getattr(a, "CODEPF", False):
        a("s_cmp_ge_u32 s2, 32")
        a("s_cbranch_scc1 L_nopf")
        a("s_getpc_b64 s[4:5]")
        a("v_lshlrev_b32 v2, 6, v0")
        a("global_load_dword v255, v2, s[4:5]")
        a.label("L_nopf")
    a("v_and_b32 v0, 63, v0")
    a("v_lshlrev_b32 v2, 2, v0")
    a("v_add_u32 v2, %d, v2" % L_CTL)
    a("v_readfirstlane_b32 s3, v1")
    a("v_mov_b32 v1, 0")
    a("ds_write_b32 v2, v1")
    a("s_waitcnt lgkmcnt(0)")
    if getattr(a, "LATEARG", True):
        a("s_load_dwordx16 s[8:23], s[0:1], 0")
        a("s_load_dwordx16 s[24:39], s[0:1], 64")
    if not getattr(a, "ORDER", False): a("s_barrier")
    a("s_cmp_lt_u32 s3, 4")
    a("s_cbranch_scc1 L_compute")
    a("s_cmp_eq_u32 s3, 4")
    a("s_cbranch_scc1 L_loader")
    if noaux: a("s_endpgm")
    a("s_setprio 3")
    a("s_sub_u32 s41, s3, 5")
    a("s_mul_i32 s40, s41, 20480")
    a("s_add_u32 s40, s40, %d" % L_AUX)
    a("s_lshl_b32 s42, s2, 1")
    a("s_add_u32 s42, s42, s41")
    a("s_cmp_lt_u32 s3, 7")
    a("s_cbranch_scc1 L_kc")
    a("s_add_u32 s42, s2, 512")
    a("s_cmp_lt_u32 s2, 128")
    a("s_cbranch_scc1 L_kc")
    a("s_bfe_u32 s42, s2, 0x20001")
    a("s_lshl_b32 s42, s42, 5")
    a("s_bfe_u32 s41, s2, 0x40003")
    a("s_lshl_b32 s41, s41, 1")
    a("s_add_u32 s42, s42, s41")
    a("s_and_b32 s41, s2, 1")
    a("s_add_u32 s42, s42, s41")
    emit_lnt(a, 42, 40, lprio)
    a.label("L_kc")
    emit_kc(a, 42, 40, kprio, gate=not getattr(a, 'KNOGATE', False), stage_rel=plan.rel.get(getattr(a, 'KSTAGE', 'W7'), 0), pause_rel=plan.rel.get(getattr(a, 'KPAUSE', 'none'), 0))
    a.label("L_loader")
    emit_loader(a, plan, T, ldprio, rot)
    a.label("L_compute")
    emit_compute(a, plan, cprio)
    a.label("L_end")
    a("s_endpgm")
    a.raw('.section .rodata,"a"')
    a.raw(".p2align 6")
    a.raw(kernel_desc(NAME, 256, 102))
    open(path, "w").write(a.text())
if __name__ == "__main__":
    build("s4.s")
    build("s4_prof.s", prof=True)
    build("s4_np.s", prof=True, nopoll=True, noaux=True)
    build("h1.s", ORDER=True, LDPRIO0=3, LDDROP=2)
    build("h2.s", cprio=2, kprio=1)
    build("h3.s", NPK=2)
    build("h4.s", CODEPF=True)
    build("h5.s", KSTAGE="none", STATGATE=False)
```

```python
import sys
from asmlib import *
from common import *
from plan import Plan
from loader import emit_loader
from gemm4 import emit_compute
from kc4 import emit_kc
from lnt4 import emit_lnt
NAME = "recurrent_scan__ssm_conv_s4__dense_activation_mish__prompt_kernel"
HDR = open("recurrent_scan__ssm_conv_s4__dense_activation_mish__prompt.s.ref").read().split("; Override launch")[0]
def build(path, prof=False, nopoll=False, noaux=False, T=12, cprio=1, kprio=2, lprio=3, ldprio=0, rot=True, NB_REG=3, NX_OWN=10, norel=False, noch=False, ksleep=16, lsleep=6, **flags):
    a = Asm()
    a.PROF = prof; a.NOPOLL = nopoll; a.NOREL = norel; a.NOCH = noch; a.KSLEEP = ksleep; a.LSLEEP = lsleep
    for k_, v_ in flags.items(): setattr(a, k_, v_)
    plan = Plan(NB_REG, NX_OWN)
    a.raw(HDR.rstrip())
    a.raw("; @launch grid=(256,1,1) block=(512,1,1) lds=%d" % LDS_BYTES)
    a.raw('.amdgcn_target "amdgcn-amd-amdhsa--gfx950"')
    a.raw(".text")
    kernel_begin(a, NAME)
    a("s_cmp_ge_u32 s2, 256")
    a("s_cbranch_scc1 L_end")
    if prof:
        a("s_memrealtime s[94:95]"); a("s_waitcnt lgkmcnt(0)")
    if not getattr(a, "LATEARG", True):
        a("s_load_dwordx16 s[8:23], s[0:1], 0")
        a("s_load_dwordx16 s[24:39], s[0:1], 64")
    a("v_lshrrev_b32 v1, 6, v0")
    if getattr(a, "CODEPF", False):
        a("s_cmp_ge_u32 s2, %d" % getattr(a, "PFWG", 32))
        a("s_cbranch_scc1 L_nopf")
        a("s_getpc_b64 s[4:5]")
        a.label("L_pfbase")
        a("v_lshlrev_b32 v2, 7, v0")
        a("v_min_u32 v2, L_end-L_pfbase, v2")
        a("global_load_dword v255, v2, s[4:5]")
        a.label("L_nopf")
    a("v_and_b32 v0, 63, v0")
    a("v_lshlrev_b32 v2, 2, v0")
    a("v_add_u32 v2, %d, v2" % L_CTL)
    a("v_readfirstlane_b32 s3, v1")
    a("v_mov_b32 v1, 0")
    a("ds_write_b32 v2, v1")
    a("s_waitcnt lgkmcnt(0)")
    if getattr(a, "LATEARG", True):
        a("s_load_dwordx16 s[8:23], s[0:1], 0")
        a("s_load_dwordx16 s[24:39], s[0:1], 64")
    if not getattr(a, "ORDER", False): a("s_barrier")
    a("s_cmp_lt_u32 s3, 4")
    a("s_cbranch_scc1 L_compute")
    a("s_cmp_eq_u32 s3, 4")
    a("s_cbranch_scc1 L_loader")
    if noaux: a("s_endpgm")
    a("s_setprio 3")
    a("s_sub_u32 s41, s3, 5")
    a("s_mul_i32 s40, s41, 20480")
    a("s_add_u32 s40, s40, %d" % L_AUX)
    a("s_lshl_b32 s42, s2, 1")
    a("s_add_u32 s42, s42, s41")
    a("s_cmp_lt_u32 s3, 7")
    a("s_cbranch_scc1 L_kc")
    a("s_add_u32 s42, s2, 512")
    a("s_cmp_lt_u32 s2, 128")
    a("s_cbranch_scc1 L_kc")
    a("s_bfe_u32 s42, s2, 0x20001")
    a("s_lshl_b32 s42, s42, 5")
    a("s_bfe_u32 s41, s2, 0x40003")
    a("s_lshl_b32 s41, s41, 1")
    a("s_add_u32 s42, s42, s41")
    a("s_and_b32 s41, s2, 1")
    a("s_add_u32 s42, s42, s41")
    emit_lnt(a, 42, 40, lprio)
    a.label("L_kc")
    emit_kc(a, 42, 40, kprio, gate=not getattr(a, 'KNOGATE', False), stage_rel=plan.rel.get(getattr(a, 'KSTAGE', 'W7'), 0), pause_rel=plan.rel.get(getattr(a, 'KPAUSE', 'none'), 0))
    a.label("L_loader")
    emit_loader(a, plan, T, ldprio, rot)
    a.label("L_compute")
    emit_compute(a, plan, cprio)
    a.label("L_end")
    a("s_endpgm")
    a.raw('.section .rodata,"a"')
    a.raw(".p2align 6")
    a.raw(kernel_desc(NAME, 256, 102))
    open(path, "w").write(a.text())
if __name__ == "__main__":
    build("s4.s")
    build("s4_prof.s", prof=True)
    build("s4_np.s", prof=True, nopoll=True, noaux=True)
    build("h1.s", NPK=2, CODEPF=True)
    build("h2.s", NPK=3, CODEPF=True)
    build("h3.s", NPK=2, CODEPF=True, kprio=3)
    build("h4.s", NPK=2, CODEPF=True, PFWG=8)
    build("h5.s", NPK=2, CODEPF=True, PFWG=256)
```

```python
import struct

def f2u(x):
    return struct.unpack("<I", struct.pack("<f", x))[0]

def fhex(x):
    return "0x%08x" % f2u(x)

def v(i, n=1):
    return "v%d" % i if n == 1 else "v[%d:%d]" % (i, i + n - 1)

def s(i, n=1):
    return "s%d" % i if n == 1 else "s[%d:%d]" % (i, i + n - 1)

class Asm:
    def __init__(self):
        self.lines = []
        self.vm = []
        self.lg = []
        self.nlabel = 0
    def __call__(self, txt):
        self.lines.append("    " + txt)
    def c(self, txt):
        self.lines.append("    ; " + txt)
    def label(self, name):
        self.lines.append(name + ":")
    def raw(self, txt):
        self.lines.append(txt)
    def newlabel(self, base="L"):
        self.nlabel += 1
        return "%s_%d" % (base, self.nlabel)
    def text(self):
        return "\n".join(self.lines) + "\n"
    def vmem(self, txt, tag=None):
        self(txt)
        self.vm.append(tag)
    def lds(self, txt, tag=None):
        self(txt)
        self.lg.append(tag)
    def _n_after(self, lst, tags):
        last = -1
        for i, t in enumerate(lst):
            if t in tags:
                last = i
        if last < 0:
            return None
        return len(lst) - 1 - last, last
    def wait(self, vm=None, lg=None):
        parts = []
        if vm is not None:
            if vm == "all":
                parts.append("vmcnt(0)"); self.vm = []
            else:
                if not isinstance(vm, (list, tuple, set)): vm = [vm]
                r = self._n_after(self.vm, set(vm))
                if r is not None:
                    n, last = r
                    if n <= 63:
                        parts.append("vmcnt(%d)" % n)
                        self.vm = self.vm[last + 1:]
                    else:
                        raise Exception("vmcnt overflow")
        if lg is not None:
            if lg == "all":
                parts.append("lgkmcnt(0)"); self.lg = []
            else:
                if not isinstance(lg, (list, set)): lg = [lg]
                r = self._n_after(self.lg, set(lg))
                if r is not None:
                    n, last = r
                    n2 = min(n, 14)
                    parts.append("lgkmcnt(%d)" % n2)
                    self.lg = self.lg[len(self.lg) - n2:] if n2 > 0 else []
        if parts:
            self("s_waitcnt " + " ".join(parts))
    PROF = False
    STAMP_S = 80
    def stamp(self, i):
        if not self.PROF: return
        self("s_memrealtime s[98:99]")
        self("s_waitcnt lgkmcnt(0)")
        self("s_mov_b32 s%d, s98" % (self.STAMP_S + i))
        self.lg = []
    def cstamp(self, i):
        if not self.PROF: return
        self("s_memtime s[98:99]")
        self("s_waitcnt lgkmcnt(0)")
        self("s_mov_b32 s%d, s98" % (self.STAMP_S + i))
        self.lg = []
    def stamp_dump(self, n, vtid_wave_sgpr, vtmp, ws_off=200 << 20):
        if not self.PROF: return
        if getattr(self, "DBGST", None) is not None:
            vt, slots = self.DBGST
            self("s_load_dwordx2 s[96:97], s[0:1], 112")
            self("s_mov_b64 exec, 1")
            self("s_waitcnt lgkmcnt(0)")
            self("v_mov_b32 v%d, 0" % (vtmp+1))
            for st_, w in slots:
                self("v_sub_u32 v%d, s%d, v%d" % (vtmp, self.STAMP_S + st_, vt))
                self("global_atomic_smax v%d, v%d, s[96:97] offset:%d" % (vtmp+1, vtmp, 4*w))
                self("s_nop 1")
            return
        self("s_load_dwordx2 s[96:97], s[0:1], 120")
        self("s_waitcnt lgkmcnt(0)")
        self("s_add_u32 s96, s96, 0x%x" % ws_off)
        self("s_addc_u32 s97, s97, 0")
        self("s_lshl_b32 s98, s2, 3")
        self("s_add_u32 s98, s98, s%d" % vtid_wave_sgpr)
        self("s_lshl_b32 s98, s98, 6")
        self("s_mov_b64 exec, 1")
        self("v_mov_b32 v%d, s98" % (vtmp + 16))
        for i in range(16):
            self("v_mov_b32 v%d, s%d" % (vtmp + i, self.STAMP_S + min(i, n-1)))
        for q in range(4):
            self("global_store_dwordx4 v%d, v[%d:%d], s[96:97] offset:%d" % (vtmp + 16, vtmp + 4*q, vtmp + 4*q + 3, 16*q))
    def nop(self, n):
        while n > 0:
            k = min(n, 16)
            self("s_nop %d" % (k - 1))
            n -= k
    def srd(self, d, base, nbytes):
        self("s_mov_b32 s%d, s%d" % (d, base))
        self("s_and_b32 s%d, s%d, 0xffff" % (d + 1, base + 1))
        self("s_mov_b32 s%d, 0x%x" % (d + 2, nbytes))
        self("s_mov_b32 s%d, 0x00020000" % (d + 3))
    def srd_off(self, d, base, off, nbytes):
        self("s_add_u32 s%d, s%d, 0x%x" % (d, base, off))
        self("s_addc_u32 s%d, s%d, 0" % (d + 1, base + 1))
        self("s_and_b32 s%d, s%d, 0xffff" % (d + 1, d + 1))
        self("s_mov_b32 s%d, 0x%x" % (d + 2, nbytes))
        self("s_mov_b32 s%d, 0x00020000" % (d + 3))

def kernel_begin(a, name):
    a.raw(".globl %s" % name)
    a.raw(".p2align 8")
    a.raw(".type %s,@function" % name)
    a.raw("%s:" % name)

def kernel_desc(name, vgpr, sgpr, accum=None):
    if accum is None:
        accum = (vgpr + 3) // 4 * 4
    return """.amdhsa_kernel %s
  .amdhsa_next_free_vgpr %d
  .amdhsa_next_free_sgpr %d
  .amdhsa_accum_offset %d
  .amdhsa_group_segment_fixed_size 0
  .amdhsa_kernarg_size 128
  .amdhsa_user_sgpr_count 2
  .amdhsa_user_sgpr_kernarg_segment_ptr 1
  .amdhsa_system_sgpr_workgroup_id_x 1
.end_amdhsa_kernel
""" % (name, vgpr, sgpr, accum)
```

```python
from asmlib import *
from common import *
from sync import Sync
from loader import tile_maps, k_rotation, k_rotation2, x_src_offsets

G2_P = 61440
G2_PW = 3072
G2_PRS = 176

def emit_compute(a, plan, prio=1):
    vT0, vT1, vT2 = 1, 2, 3
    vTag, vZero, vL16, vPoll = 4, 6, 7, 8
    vRelA, vRv, vCtl, vBarA = 12, 13, 14, 15
    vXr, vWr = 16, 20
    vSt, vSo, vCw, vCr = 24, 25, 26, 27
    vB1 = 28
    vC1, vC2, vC3 = 32, 34, 36
    vOne = 36
    vBar = vPoll
    vAcc = 40
    WB = [112, 124, 136]
    vXF = [148, 164]
    vCs4 = [88, 92, 96]
    vP, vAp, vBp = 180, 192, 204
    sRb, sCb, sRb2, sCb2, sT, sT2, sM, sAo, sRdy, sFa, sFs, sFw = 40, 41, 42, 43, 44, 45, 46, 47, 48, 49, 50, 51
    sSy = 52
    sRet = 100
    sK = 56
    sAct, sFl, sStt, sW2F, sOut, sST, sXs = 60, 64, 68, 72, 76, 4, 12
    sA, sB, sK2, sK3 = 16, 20, 25, 10
    W = S_WAVE
    sy = Sync(a, sFl, P_DBG, vTag, vPoll, sSy, vZero)
    a.c("================ role: compute (gemm1 + gemm2) ================")
    a.stamp(0)
    if a.PROF: a("s_mov_b32 s88, 0")
    a("v_lshlrev_b32 v%d, 2, v0" % vT0)
    a("v_add_u32 v%d, %d, v%d" % (vRelA, C_DUMMY, vT0))
    a("v_mov_b32 v%d, 0" % vZero)
    if prio: a("s_setprio %d" % prio)
    a("s_lshl_b32 s%d, s%d, 2" % (sT, W))
    a("s_add_u32 s%d, s%d, %d" % (sT, sT, C_REL))
    a("v_mov_b32 v%d, s%d" % (vT1, sT))
    a("v_cmp_eq_u32 vcc, 0, v0")
    a("v_mov_b32 v%d, %d" % (vCtl, L_CTL))
    a("s_mov_b32 s%d, 0" % sRdy)
    a("v_cndmask_b32 v%d, v%d, v%d, vcc" % (vRelA, vRelA, vT1))
    tile_maps(a, sRb, sCb, None, None, sT)
    vXd = 100
    sXb, sXk, sXm = 16, 17, 18
    x_src_offsets(a, vXd, vT0, vT1, vT2)
    k_rotation(a, sM, sT2, sRb, sCb)
    a("s_lshl2_add_u32 s%d, s%d, s%d" % (sT, sRb, W))
    a("s_waitcnt lgkmcnt(0)")
    a("s_mul_i32 s%d, s%d, 40960" % (sXb, sT))
    a("s_lshl_b32 s%d, s%d, 12" % (sXm, W))
    a("s_lshl_b32 s%d, s%d, 7" % (sXk, sM))
    a.srd(sXs, P_X, 2048*640*2)
    def xdma(st, i):
        if i == 0:
            a("s_add_u32 m0, s%d, %d" % (sXm, L_X + (st % 3)*16384))
            a("s_add_u32 s%d, s%d, s%d" % (sXb+3, sXb, sXk))
        a.vmem("buffer_load_dwordx4 v%d, s[%d:%d], s%d offen offset:%d lds" % (vXd+i, sXs, sXs+3, sXb+3, i*1024), "X%d" % st)
        if i == 0:
            a("s_add_u32 s%d, s%d, 128" % (sXk, sXk)); a("s_cmp_ge_u32 s%d, 1280" % sXk); a("s_cselect_b32 s%d, 0, s%d" % (sXk, sXk))
    for st in range(min(3, plan.NX_OWN)):
        for i in range(4): xdma(st, i)
        if st == 0 and getattr(a, "ORDER", False): a("s_barrier")
    if getattr(a, "L2PF", False):
        a("s_lshr_b32 s%d, s%d, 3" % (sT, S_WG))
        a("s_lshl2_add_u32 s%d, s%d, s%d" % (sT, sT, W))
        a("s_mul_i32 s%d, s%d, 5120" % (sT2, sT))
        a("s_lshr_b32 s%d, s%d, 2" % (sM, sRb))
        a("s_mul_i32 s%d, s%d, %d" % (sM, sM, 512*1280))
        a("s_add_u32 s%d, s%d, s%d" % (sT2, sT2, sM))
        a("v_min_u32 v%d, 39, v0" % vT2)
        a("v_lshlrev_b32 v%d, 7, v%d" % (vT2, vT2))
        a.vmem("buffer_load_dword v%d, v%d, s[%d:%d], s%d offen" % (vPoll+2, vT2, sXs, sXs+3, sT2), "touch")
        a("v_min_u32 v%d, 59, v0" % vT2)
        a("v_mul_u32_u24 v%d, 5462, v%d" % (vT1, vT2))
        a("v_lshrrev_b32 v%d, 16, v%d" % (vT1, vT1))
        a("v_mul_u32_u24 v%d, 1536, v%d" % (vT1, vT1))
        a("v_lshl_add_u32 v%d, v%d, 7, v%d" % (vT2, vT2, vT1))
        a("s_mul_i32 s%d, s%d, %d" % (sT2, sT, 5*3072))
        a("s_and_b32 s%d, s%d, 1" % (sM, S_WG))
        a("s_mul_i32 s%d, s%d, 1536" % (sM, sM))
        a("s_add_u32 s%d, s%d, s%d" % (sT2, sT2, sM))
        a.srd(sOut, P_W1, 640*1536*2)
        a.vmem("buffer_load_dword v%d, v%d, s[%d:%d], s%d offen" % (vPoll+3, vT2, sOut, sOut+3, sT2), "touch")
    TS = getattr(a, "TOUCH", 0)
    if TS:
        a("v_lshlrev_b32 v%d, %d, v0" % (vT2, TS))
        a("s_lshl_b32 s%d, s%d, %d" % (sT, W, TS + 6))
        a("v_add_u32 v%d, s%d, v%d" % (vT2, sT, vT2))
        a("v_add_u32 v%d, %d, v%d" % (vT2, (1 << TS) - 128, vT2))
        a.srd(sOut, P_WS, 32 << 20)
        a.vmem("buffer_load_dword v%d, v%d, s[%d:%d], 0 offen sc1" % (vPoll+2, vT2, sOut, sOut+3), "touch")
        a.srd(sStt, P_OUT, 2048*640*2)
        a.vmem("buffer_load_dword v%d, v%d, s[%d:%d], 0 offen sc1" % (vPoll+3, vT2, sStt, sStt+3), "touch")
    if getattr(a, "NOREL", False): a("s_endpgm")
    ool = []
    st_ = {"peeked": False}
    vPk = 31
    def peek():
        st_["peeked"] = True
        a.lds("ds_read_b32 v%d, v%d" % (vPk, vCtl), "peek")
    def ready(name):
        if name not in plan.rdy:
            a.wait(vm=name); return
        k = plan.rdy[name]
        ok = a.newlabel("L_rok"); sp = a.newlabel("L_rspin")
        if "peek" in a.lg or st_["peeked"]:
            a.wait(lg="peek")
            a("v_readfirstlane_b32 s%d, v%d" % (sRdy, vPk))
            st_["peeked"] = False
        a("s_cmp_ge_u32 s%d, %d" % (sRdy, k))
        a("s_cbranch_scc0 %s" % sp)
        a.label(ok)
        ool.append((sp, ok, k))
    def release(name):
        a("v_mov_b32 v%d, %d" % (vRv, plan.rel[name]))
        a.lds("ds_write_b32 v%d, v%d" % (vRelA, vRv), "rel")
    def bar_arrive(ep):
        a("v_mov_b32 v%d, %d" % (vRv, ep))
        a.lds("ds_write_b32 v%d, v%d offset:16" % (vRelA, vRv), "rel")
    def bar_wait(ep, off=32):
        sp = a.newlabel("L_bspin"); ok = a.newlabel("L_bok")
        a("s_mov_b32 s%d, 0" % (sSy+2))
        a.label(sp)
        a("ds_read_b128 %s, v%d offset:%d" % (v(vBar,4), vCtl, off))
        a("s_add_u32 s%d, s%d, 1" % (sSy+2, sSy+2))
        a("s_cmp_gt_u32 s%d, 0x%x" % (sSy+2, SPIN_MAX*16))
        a("s_waitcnt lgkmcnt(0)")
        a("v_min3_u32 v%d, v%d, v%d, v%d" % (vBar, vBar, vBar+1, vBar+2))
        a("v_min_u32 v%d, v%d, v%d" % (vBar, vBar, vBar+3))
        a("s_cbranch_scc1 %s" % ok)
        a("v_cmp_gt_u32 vcc, %d, v%d" % (ep, vBar))
        a("s_cbranch_vccnz %s" % sp)
        a.label(ok)
        a.lg = []
    def bar_peek():
        a.lds("ds_read_b128 %s, v%d offset:32" % (v(vBar,4), vCtl), "bpk")
    def bar_check(ep):
        ok = a.newlabel("L_bc")
        a.wait(lg="bpk")
        a("v_min3_u32 v%d, v%d, v%d, v%d" % (vBar, vBar, vBar+1, vBar+2))
        a("v_min_u32 v%d, v%d, v%d" % (vBar, vBar, vBar+3))
        a("v_cmp_gt_u32 vcc, %d, v%d" % (ep, vBar))
        a("s_cbranch_vccz %s" % ok)
        keep = list(a.lg)
        bar_wait(ep)
        a.lg = keep
        a.label(ok)
    tile_maps(a, None, None, sRb2, sCb2, sT)
    a("v_lshlrev_b32 v%d, 4, v0" % vL16)
    a("v_and_b32 v%d, 31, v0" % vT0)
    a("v_lshrrev_b32 v%d, 5, v0" % vT1)
    a("v_lshlrev_b32 v%d, 1, v%d" % (vT2, vT0))
    a("s_mul_i32 s%d, s%d, 192" % (sT, sCb))
    a("v_add_u32 v%d, s%d, v%d" % (vT2, sT, vT2))
    for p in range(3): a.vmem("global_load_ushort v%d, v%d, s[%d:%d] offset:%d" % (vB1+p, vT2, P_B1, P_B1+1, 64*p), "b1")
    a("s_lshl_b32 s%d, s%d, 12" % (sT, W))
    a("s_add_u32 s%d, s%d, %d" % (sT, sT, L_X))
    a("v_bfe_u32 v%d, v0, 1, 3" % vT2)
    a("v_xor_b32 v%d, v%d, v%d" % (vT2, vT2, vT1))
    a("v_lshlrev_b32 v%d, 4, v%d" % (vT2, vT2))
    a("v_lshl_add_u32 v%d, v%d, 7, v%d" % (vT2, vT0, vT2))
    a("v_add_u32 v%d, s%d, v%d" % (vT2, sT, vT2))
    for jl in range(4):
        a("s_add_u32 s%d, s%d, %d" % (sT2, W, jl))
        a("s_and_b32 s%d, s%d, 3" % (sT2, sT2))
        a("s_lshl_b32 s%d, s%d, 5" % (sT2, sT2))
        a("v_xor_b32 v%d, s%d, v%d" % (vXr+jl, sT2, vT2))
    a("v_bfe_u32 v%d, v0, 2, 2" % vT2)
    a("v_lshl_add_u32 v%d, v%d, 3, v%d" % (vT2, vT1, vT2))
    a("v_mul_u32_u24 v%d, 192, v%d" % (vT2, vT2))
    a("v_bfe_u32 v%d, v0, 4, 1" % vSt)
    a("v_lshl_add_u32 v%d, v%d, 5, v%d" % (vT2, vSt, vT2))
    a("v_and_b32 v%d, 3, v0" % vSo)
    a("v_lshl_add_u32 v%d, v%d, 3, v%d" % (vT2, vSo, vT2))
    for jl in range(4):
        a("s_add_u32 s%d, s%d, %d" % (sT2, W, jl))
        a("s_and_b32 s%d, s%d, 3" % (sT2, sT2))
        a("s_mul_i32 s%d, s%d, %d" % (sT2, sT2, 16*192))
        a("v_add_u32 v%d, s%d, v%d" % (vWr+jl, sT2, vT2))
    for r in (vOne, vOne+1): a("v_mov_b32 v%d, 0x%x" % (r, ONES_BF))
    a("v_lshlrev_b32 v%d, 4, v%d" % (vCw, vT1))
    a("v_lshl_add_u32 v%d, v%d, 2, v%d" % (vCw, vSt, vCw))
    a("v_bfe_u32 v%d, v0, 2, 2" % vT2)
    a("v_add_u32 v%d, v%d, v%d" % (vCw, vCw, vT2))
    a("v_lshlrev_b32 v%d, 8, v%d" % (vCw, vCw))
    a("v_lshl_add_u32 v%d, v%d, 3, v%d" % (vCw, vSo, vCw))
    a("s_lshl_b32 s%d, s%d, 6" % (sT, W))
    a("v_add_u32 v%d, s%d, v%d" % (vCw, sT, vCw))
    a("s_mul_i32 s%d, s%d, 13108" % (sT, S_WG))
    a("s_lshr_b32 s%d, s%d, 16" % (sT, sT))
    a("s_mul_i32 s%d, s%d, 5" % (sT2, sT))
    a("s_sub_u32 s%d, s%d, s%d" % (sT2, S_WG, sT2))
    a("s_cmp_ge_u32 s%d, 240" % S_WG)
    a("s_cselect_b32 s%d, 5, s%d" % (sT2, sT2))
    a("s_cselect_b32 s%d, 0, s%d" % (sT, sT))
    a("s_lshl2_add_u32 s%d, s%d, s%d" % (sM, sT2, W))
    a("s_mul_i32 s%d, s%d, %d" % (sM, sM, 2*48*1024))
    a("s_lshl_b32 s%d, s%d, 10" % (sAo, sT))
    a("s_add_u32 s%d, s%d, s%d" % (sM, sM, sAo))
    a("s_mul_i32 s%d, s%d, 48" % (sFw, sT2))
    a("s_add_u32 s%d, s%d, s%d" % (sFw, sFw, sT))
    a("s_lshl2_add_u32 s%d, s%d, s%d" % (sFw, sFw, W))
    a("s_lshl_b32 s%d, s%d, 3" % (sFw, sFw))
    a("s_add_u32 s%d, s%d, %d" % (sFw, sFw, FL_W2F))
    a.srd_off(sW2F, P_WS, WS_W2F, W2F_BYTES)
    a.srd_off(sFl, P_WS, WS_FLAGS, FLAGS_BYTES)
    a.srd_off(sAct, P_WS, WS_ACT, ACT_BYTES)
    a.srd_off(sStt, P_WS, WS_STATS, STATS_BYTES)
    a.srd_off(sST, P_WS, WS_ST, ST_BYTES)
    a("v_mul_u32_u24 v%d, %d, v%d" % (vSt, 48*64, vSt))
    a("v_and_b32 v%d, 15, v0" % vT2)
    a("v_add_u32 v%d, v%d, v%d" % (vSt, vSt, vT2))
    a("v_lshl_add_u32 v%d, v%d, 4, v%d" % (vSt, vT1, vSt))
    a("v_lshlrev_b32 v%d, 4, v%d" % (vSt, vSt))
    a("s_lshl2_add_u32 s%d, s%d, s%d" % (sT2, sRb, W))
    a("s_lshl_b32 s%d, s%d, 9" % (sT, sT2))
    a("v_lshlrev_b32 v%d, 4, v%d" % (vSo, vT0))
    a("v_add_u32 v%d, s%d, v%d" % (vSo, sT, vSo))
    a("s_lshr_b32 s%d, s%d, 1" % (sT, sT2))
    a("s_lshl_b32 s%d, s%d, 5" % (sFa, sT))
    a("s_and_b32 s%d, s%d, 1" % (sT, sT2))
    a("s_add_u32 s%d, s%d, s%d" % (sFa, sFa, sT))
    a("s_lshl_b32 s%d, s%d, 1" % (sT, sCb))
    a("s_add_u32 s%d, s%d, s%d" % (sFa, sFa, sT))
    a("s_lshl_b32 s%d, s%d, 3" % (sFa, sFa))
    a("s_add_u32 s%d, s%d, %d" % (sFa, sFa, FL_ACT))
    a("s_mul_i32 s%d, s%d, 96" % (sT2, sT2))
    a("s_mul_i32 s%d, s%d, 3" % (sAo, sCb))
    a("s_add_u32 s%d, s%d, s%d" % (sAo, sAo, sT2))
    a("s_lshl_b32 s%d, s%d, 10" % (sAo, sAo))
    a("s_mov_b32 s%d, %s" % (sK, fhex(LOG2E))); a("s_mov_b32 s%d, %s" % (sK+1, fhex(LOG2E)))
    a("s_mov_b32 s%d, 2.0" % (sK+2)); a("s_mov_b32 s%d, 2.0" % (sK+3))
    for i in range(16): a("v_mov_b32 v%d, 0" % (vAp+i))
    a("v_lshlrev_b32 v%d, 2, v%d" % (vCr, vT0))
    a("v_add_u32 v%d, %d, v%d" % (vCr, C_CS, vCr))
    vXt, vXs_ = 216, 220
    vIt = [224, 240]
    sXt, sFx = 55, 26
    a("v_bfe_u32 v%d, v0, 1, 1" % vXt)
    a("s_lshl_b32 s%d, s%d, 1" % (sT, W))
    a("v_add_u32 v%d, s%d, v%d" % (vXt, sT, vXt))
    a("v_bfe_u32 v%d, v0, 3, 1" % vT2)
    a("v_xor_b32 v%d, v%d, v%d" % (vXt, vXt, vT2))
    a("v_lshlrev_b32 v%d, 4, v%d" % (vXt, vXt))
    a("v_and_b32 v%d, 1, v0" % vT2)
    a("v_lshl_add_u32 v%d, v%d, 3, v%d" % (vXt, vT2, vXt))
    a("v_bfe_u32 v%d, v0, 2, 2" % vT2)
    a("v_lshl_add_u32 v%d, v%d, 7, v%d" % (vXt, vT2, vXt))
    a("v_mul_u32_u24 v%d, %d, v%d" % (vXs_, 4*TRS, vT2))
    a("v_lshrrev_b32 v%d, 4, v0" % vT2)
    a("v_lshl_add_u32 v%d, v%d, 12, v%d" % (vXt, vT2, vXt))
    a("v_add_u32 v%d, %d, v%d" % (vXt, L_X + 16384, vXt))
    for k in range(1, 4): a("v_xor_b32 v%d, %d, v%d" % (vXt+k, 32*k, vXt))
    a("v_lshl_add_u32 v%d, v%d, 6, v%d" % (vXs_, vT2, vXs_))
    a("v_and_b32 v%d, 3, v0" % vT2)
    a("v_lshl_add_u32 v%d, v%d, 4, v%d" % (vXs_, vT2, vXs_))
    k_rotation(a, sT, sT2, sRb, sCb)
    a("s_add_u32 s%d, s%d, 1" % (sT, sT))
    a("s_cmp_ge_u32 s%d, 10" % sT)
    a("s_cselect_b32 s%d, 0, s%d" % (sT, sT))
    a("s_cmp_ge_u32 s%d, 10" % sCb)
    a("s_cselect_b32 s%d, 10, s%d" % (sT, sT))
    a("s_lshl2_add_u32 s%d, s%d, s%d" % (sT, sT, W))
    a("s_mul_i32 s%d, s%d, %d" % (sXt, sT, 16*TRS))
    a("s_lshl_b32 s%d, s%d, 8" % (sT2, sRb))
    a("s_add_u32 s%d, s%d, s%d" % (sXt, sXt, sT2))
    a("s_lshl4_add_u32 s%d, s%d, s%d" % (sFx, sT, sRb))
    a("s_lshl_b32 s%d, s%d, 3" % (sFx, sFx))
    a("s_add_u32 s%d, s%d, %d" % (sFx, sFx, FL_XT))
    vCh = 208
    def xreads(st):
        return [("xf%d_%d" % (st, jl), "ds_read_b128 %s, v%d offset:%d" % (v(vXF[st & 1]+4*jl,4), vXr+jl, (st % 3)*16384)) for jl in range(4)]
    def wreads(g_):
        st, jl = g_ // 4, g_ % 4
        buf = WB[g_ % 3]
        return [("wf%d" % g_, "ds_read_b64_tr_b16 %s, v%d offset:%d" % (v(buf+4*p+2*q,2), vWr+jl, L_W + (st % 4)*12288 + q*4*192 + p*64)) for p in range(3) for q in range(2)]
    def w2st(k):
        a.vmem("buffer_store_dwordx4 %s, v%d, s[%d:%d], s%d offen sc1" % (v(vCh+4*k,4), vL16, sW2F, sW2F+3, sM), "chw")
        if k == 0: a("s_add_u32 s%d, s%d, %d" % (sM, sM, 48*1024))
    def xtst(j):
        a.vmem("buffer_store_dwordx4 %s, v%d, s[%d:%d], s%d offen sc1" % (v(vIt[0]+4*j,4), vXs_, sOut, sOut+3, sXt), "chs")
        if j < 3: a("s_add_u32 s%d, s%d, %d" % (sXt, sXt, TRS))
    SW, SX, SG = getattr(a, "CH_W", 0), getattr(a, "CH_X", 2), getattr(a, "CH_LAG", 3)
    a.srd_off(sOut, P_WS, WS_XN, XN_BYTES)
    ready("X0")
    a.stamp(10)
    for tag, ins in xreads(0): a.lds(ins, tag)
    ready("W0")
    a.stamp(11)
    for tag, ins in wreads(0) + wreads(1): a.lds(ins, tag)
    def xt_chore():
        bar_check(1)
        for p in range(4):
            for q in range(2):
                a.lds("ds_read_b64_tr_b16 %s, v%d offset:%d" % (v(vIt[0]+4*p+2*q,2), vXt + 2*(p & 1) + q, (8*p + 4*q)*128), "xt")
        bar_arrive(2)
    dpp = []
    for stage_, (masks, perm, x_) in enumerate((((0x55555555, 0xaaaaaaaa), "[1,0,3,2]", 1), ((0x33333333, 0xcccccccc), "[2,3,0,1]", 2))):
        src, dst = vIt[stage_], vIt[1-stage_]
        for mi, m in enumerate(masks):
            for j in range(4):
                if ((j & x_) != 0) != (mi == 1): continue
                dpp.append(["s_mov_b32 vcc_lo, 0x%x" % m, "s_mov_b32 vcc_hi, 0x%x" % m] +
                           ["v_cndmask_b32_dpp v%d, v%d, v%d, vcc quad_perm:%s row_mask:0xf bank_mask:0xf" % (dst+4*j+r, src+4*(j ^ x_)+r, src+4*j+r, perm) for r in range(4)])
    def c_chore():
        ready("C")
        for k in range(2):
            for q in range(2):
                a.lds("ds_read_b64_tr_b16 %s, v%d offset:%d" % (v(vCh+4*k+2*q,2), vCw, L_W + 3*12288 + q*8*256 + k*32), "ch")
        release("C")
        a("s_mul_i32 s%d, s%d, 384" % (sT2, W))
        a("v_add_u32 v%d, s%d, v%d" % (vCw, sT2, vCr))
    a.stamp(1)
    def emit(t):
        if callable(t): t()
        elif isinstance(t, tuple): a.lds(t[1], t[0])
        else: a(t)
    def step(g_, gaps):
        st, jl = g_ // 4, g_ % 4
        buf = WB[g_ % 3]
        xf = vXF[st & 1] + 4*jl
        a.wait(lg=["wf%d" % g_, "xf%d_%d" % (st, jl)])
        rd = wreads(g_ + 2) if g_ + 2 < 40 else []
        for p in range(3):
            acc = vAcc + 16*p
            HK = getattr(a, "HACK", 0)
            if HK == 3:
                for hh in range(2): a("v_mfma_f32_16x16x32_bf16 %s, %s, %s, %s" % (v(acc+4*hh+8*(jl&1),4), v(buf+4*p,4), v(xf,4), "0" if g_ < 2 else v(acc+4*hh+8*(jl&1),4)))
            elif HK != 1: a("v_mfma_f32_32x32x16_bf16 %s, %s, %s, %s" % (v(acc,16), v(buf+4*p,4), v(xf,4), "0" if g_ == 0 else v(acc,16)))
            for tag, ins in rd[2*p:2*p+2]: a.lds(ins, tag)
            if HK == 0 and ((jl >= 2) if st < 9 else (jl < 2)):
                a("v_mfma_f32_4x4x4_16b_bf16 %s, %s, %s, %s" % (v(vCs4[p],4), v(vOne,2), v(buf+4*p+2*(jl & 1),2), "0" if g_ == 2 else v(vCs4[p],4)))
            for t in gaps[p]: emit(t)
    statld = "buffer_load_dwordx4 %s, v%d, s[%d:%d], 0 offen sc1" % (v(vPoll,4), vSo, sStt, sStt+3)
    for st in range(10):
        gp = [[] for _ in range(12)]
        if st < 9:
            xr = xreads(st+1)
            gp[1] += [lambda: ready("X%d" % (st+1)), xr[0]]
            if plan.rdy["W%d" % (st+1)] > plan.rdy.get("X%d" % (st+1), 0): gp[3] += [peek]
            if st < 8 and ("X%d" % (st+2)) in plan.rdy: gp[10] += [peek]
            gp[2] += [xr[1]]; gp[3] += [xr[2]]; gp[4] += [xr[3]]
            if plan.NX_OWN < 10 or st + 1 >= 7: gp[4] += [lambda: release("X%d" % (st+1))]
        gp[5] += [lambda: release("W%d" % st)]
        if st == 1:
            gp[0].append(lambda: a.wait(lg="xt"))
            for gi in (0, 1, 4, 4, 8, 9, 9, 10): gp[gi] += dpp.pop(0)
        if st < 9 and plan.rdy["W%d" % (st+1)] > plan.rdy.get("X%d" % (st+1), 0): gp[5] += [lambda: ready("W%d" % (st+1))]
        if plan.NX_OWN == 10:
            if st == 0:
                gp[0].append(lambda: a.wait(lg="xf0_3"))
                for i in range(4): gp[(0, 3, 6, 7)[i]].append(lambda i=i: xdma(3, i))
                gp[1].append(lambda: bar_arrive(1))
                gp[2] += [c_chore]
                gp[6] += [bar_peek]
                gp[8] += [xt_chore]
            if st == 1:
                gp[0] += [bar_peek]
                gp[2].append(lambda: bar_check(2))
                for i in range(4): gp[(2, 3, 5, 6)[i]].append(lambda i=i: xdma(4, i))
            if st >= 1 and st + 4 < 10:
                gp[7].append(lambda: a.wait(lg="xf%d_3" % (st+1)))
                for i in range(4): gp[(7, 8, 10, 11)[i]].append(lambda i=i: xdma(st+4, i))
        if st == SW:
            gp[6].append(lambda: w2st(0)); gp[9].append(lambda: w2st(1))
        if st == SX:
            for j in range(4): gp[(0, 7, 8, 11)[j]].append(lambda j=j: xtst(j))
        if st == 1: gp[7].append(sy.tag_load)
        if st == max(SW, 0) + SG:
            def sigw():
                sy.tag_check()
                a.wait(vm="chw")
                sy.signal("s%d" % sFw, 0)
            gp[0].insert(0, sigw)
        if st == min(max(SX, 0) + SG, 9):
            def sigx():
                a.wait(vm="chs")
                sy.signal("s%d" % sFx, 0)
                a.srd(sOut, P_OUT, 2048*640*2)
            gp[1 if st < 9 else 11].insert(0, sigx)
        if st == 7: gp[8].append(lambda: a.vmem(statld, "stat"))
        if st == 9:
            def statprep():
                sy.granule_check(statld, "stat", vPoll+2)
                a("v_mov_b32 v%d, v%d" % (vBp, vPoll))
                a("v_mov_b32 v%d, v%d" % (vBp+1, vPoll+1))
            gp[1].append(statprep)
            gp[6] += ["s_nop 1", "v_and_b32 v%d, 0xffff0000, v%d" % (vC3, vBp+1), "v_rcp_f32 v%d, v%d" % (vC3, vC3)]
            gp[7] += ["v_permlane32_swap_b32 v%d, v%d" % (vCs4[p], vCs4[p]+1) for p in range(3)]
            gp[7] += ["v_add_f32 v%d, v%d, v%d" % (vCs4[p], vCs4[p], vCs4[p]+1) for p in range(3)]
            gp[7] += [("cw", "ds_write_b32 v%d, v%d offset:%d" % (vCw, vCs4[p], p*128)) for p in range(3)]
            gp[7] += [lambda: bar_arrive(3)]
            gp[9] += [lambda: bar_wait(3)]
            gp[9] += [("cr", "ds_read_b32 v%d, v%d offset:%d" % (vP+w*3+p, vCr, w*384 + p*128)) for w in range(4) for p in range(3)]
        if getattr(a, 'STST', False):
            if st in (1, 2, 3, 4, 6, 8): a.stamp({1: 10, 2: 11, 3: 12, 4: 13, 6: 14, 8: 15}[st])
        else:
            if st in (0, 4): a.stamp({0: 12, 4: 13}[st])
            if st == 4: a.cstamp(14)
        for j in range(4): step(4*st+j, gp[3*j:3*j+3])
    a.stamp(2)
    if not getattr(a, 'STST', False): a.cstamp(15)
    if a.PROF: a("s_mov_b32 s89, s88")
    a("v_mul_f32 v%d, %s, v%d" % (vC1, fhex(LOG2E), vC3))
    a("v_mul_f32 v%d, -2.0, v%d" % (vC2, vC3))
    a("s_mov_b32 exec_hi, 0")
    for p in range(3): a("v_mov_b32 v%d, v%d" % (vAp+4*p+1, vB1+p))
    a.wait(lg="cr")
    for p in range(3):
        a("v_add_f32 v%d, v%d, v%d" % (vP+p, vP+p, vP+3+p))
        a("v_add_f32 v%d, v%d, v%d" % (vP+6+p, vP+6+p, vP+9+p))
    for p in range(3): a("v_add_f32 v%d, v%d, v%d" % (vP+p, vP+p, vP+6+p))
    for p in range(3): a("v_cvt_pk_bf16_f32 v%d, v%d, v%d" % (vP+3+p, vP+p, vP+p))
    for p in range(3): a("v_and_b32 v%d, 0xffff0000, v%d" % (vP+3+p, vP+3+p))
    for p in range(3): a("v_sub_f32 v%d, v%d, v%d" % (vP+3+p, vP+p, vP+3+p))
    for p in range(3): a("v_cvt_pk_bf16_f32 v%d, v%d, v%d" % (vAp+4*p, vP+p, vP+3+p))
    a("s_mov_b32 exec_hi, -1")
    a("s_nop 0")
    for p in range(3):
        acc = vAcc + 16*p
        a("v_mfma_f32_32x32x16_bf16 %s, %s, %s, %s" % (v(acc,16), v(vAp+4*p,4), v(vBp,4), v(acc,16)))
    vRW = 16; vRR, vPW, vPR, vXO, vSO = 19, 20, 21, 22, 23
    vFr, vPA = vBarA, vCr
    a("v_and_b32 v%d, 15, v0" % vT0)
    a("v_lshrrev_b32 v%d, 4, v0" % vT1)
    a("s_lshl2_add_u32 s%d, s%d, s%d" % (sT, sRb2, W))
    a("s_mul_i32 s%d, s%d, %d" % (sT2, sT, 16*1280))
    a("s_mul_i32 s%d, s%d, 160" % (sM, sCb2))
    a("s_add_u32 s%d, s%d, s%d" % (sFs, sT2, sM))
    a("v_lshrrev_b32 v%d, 2, v0" % vSO)
    a("v_lshlrev_b32 v%d, 7, v%d" % (vSO, vSO))
    a("v_and_b32 v%d, 3, v0" % vXO)
    a("v_lshl_add_u32 v%d, v%d, 3, v%d" % (vSO, vXO, vSO))
    a("s_lshl_b32 s%d, s%d, 5" % (sM, W))
    a("s_add_u32 s%d, s%d, %d" % (sM, sM, 20*4096))
    a("v_add_u32 v%d, s%d, v%d" % (vSO, sM, vSO))
    a("s_lshl_b32 s%d, s%d, 10" % (sT, W))
    a("v_add_u32 v%d, s%d, v%d" % (vFr, sT, vL16))
    vE = 112; vO = 144
    vFr2 = vCr
    a("v_add_u32 v%d, 65536, v%d" % (vFr2, vFr))
    early = [r for r in range(208, 256, 4)] + [r for r in range(168, 208, 4)] + [r for r in range(104, 144, 4)]
    latef = [r for r in range(144, 168, 4)]
    free = early
    loc = {}
    def pull(name):
        out = []
        for j, row in enumerate(plan.rowsof[name]):
            r = free.pop(0); loc[(name, j)] = r
            base, off = (vFr, row*4096) if row < 16 else (vFr2, (row-16)*4096)
            out.append((name, "ds_read_b128 %s, v%d offset:%d" % (v(r,4), base, off)))
        return out
    def pull_now(nm):
        ready(nm)
        for tag, ins in pull(nm): a.lds(ins, tag)
        release(nm)
    NEP = getattr(a, "NEP", 4)
    for c in range(6):
        A = vAcc + 8*c; E = vE + 16*(c & 1); O = vO + 4*c
        for k in range(4): a("v_pk_mul_f32 %s, %s, %s op_sel_hi:[1,0]" % (v(E+2*k,2), v(A+2*k,2), v(vC1,2)))
        for k in range(8): a("v_exp_f32 v%d, v%d" % (E+k, E+k))
        for k in range(4): a("v_pk_add_f32 %s, %s, s[%d:%d]" % (v(E+8+2*k,2), v(E+2*k,2), sK+2, sK+3))
        for k in range(4): a("v_pk_fma_f32 %s, %s, %s, s[%d:%d]" % (v(E+2*k,2), v(E+2*k,2), v(E+8+2*k,2), sK+2, sK+3))
        for k in range(8): a("v_rcp_f32 v%d, v%d" % (E+k, E+k))
        for k in range(4): a("v_pk_fma_f32 %s, %s, %s, %s op_sel_hi:[1,0,0]" % (v(E+2*k,2), v(E+2*k,2), v(vC2,2), v(vC3,2)))
        for k in range(4): a("v_pk_mul_f32 %s, %s, %s" % (v(E+2*k,2), v(E+2*k,2), v(A+2*k,2)))
        for k in range(4): a("v_cvt_pk_bf16_f32 v%d, v%d, v%d" % (O+k, E+2*k, E+2*k+1))
        SB = getattr(a, "STB", 1)
        if c == 5: bar_arrive(4)
        if (c + 1) % SB == 0:
            for c2 in range(c + 1 - SB, c + 1):
                a.vmem("buffer_store_dwordx4 %s, v%d, s[%d:%d], s%d offen offset:%d sc1" % (v(vO+4*c2,4), vSt, sAct, sAct+3, sAo, c2*512), "st")
    a.stamp(3)
    for i in range(1, 4):
        a("s_add_u32 s%d, s%d, %d" % (sT, W, i))
        a("s_and_b32 s%d, s%d, 3" % (sT, sT))
        a("s_mul_i32 s%d, s%d, 15360" % (sT, sT))
        a("s_add_u32 s%d, s%d, %d" % (sT, sT, (i-1)*5120))
        a("v_add_u32 v%d, s%d, v%d" % (vRW+i-1, sT, vL16))
    a("s_mul_i32 s%d, s%d, 15360" % (sT, W))
    a("v_add_u32 v%d, s%d, v%d" % (vRR, sT, vL16))
    a("s_mul_i32 s%d, s%d, %d" % (sT, W, G2_PW))
    a("s_add_u32 s%d, s%d, %d" % (sT, sT, G2_P))
    a("v_mul_u32_u24 v%d, %d, v%d" % (vPW, G2_PRS, vT0))
    a("v_lshl_add_u32 v%d, v%d, 3, v%d" % (vPW, vT1, vPW))
    a("v_add_u32 v%d, s%d, v%d" % (vPW, sT, vPW))
    a("s_mov_b32 s%d, s%d" % (sFw, sT))
    a("v_mov_b32 v%d, v%d" % (vT1, vFr2))
    vFr2 = vT1
    vAcc2 = 24
    vZero2 = vPoll + 3
    k_rotation2(a, sK2, sT2, sRb2, sCb2)
    a("s_mul_i32 s%d, s%d, %d" % (sT2, W, 12*1024))
    for i in range(4):
        a("s_add_u32 s%d, s%d, %d" % (sT, W, i))
        a("s_and_b32 s%d, s%d, 3" % (sT, sT))
        a("s_lshl2_add_u32 s%d, s%d, s%d" % (sT, sRb2, sT))
        a("s_mul_i32 s%d, s%d, %d" % (sT, sT, 48*1024))
        a("s_add_u32 s%d, s%d, s%d" % (sA+i, sT, sT2))
    a("s_mul_i32 s%d, s%d, %d" % (sT, sCb2, 5*48*1024))
    a("s_add_u32 s%d, s%d, s%d" % (sB, sT, sT2))
    for n in range(1, 5): a("s_add_u32 s%d, s%d, %d" % (sB+n, sB, n*48*1024))
    vKo = [vT0, vZero2]
    def koff(s_, reg):
        a("s_add_u32 s%d, s%d, %d" % (sK3, sK2, s_*1024))
        a("s_sub_u32 s%d, s%d, %d" % (sK3+1, sK3, 12*1024))
        a("s_cmp_ge_u32 s%d, %d" % (sK3, 12*1024))
        a("s_cselect_b32 s%d, s%d, s%d" % (sK3, sK3+1, sK3))
        a("v_add_u32 v%d, s%d, v%d" % (reg, sK3, vL16))
    a.wait(vm="all")
    sy.signal("s%d" % sFa, 0)
    a.stamp(4)
    pull_now("B0")
    free += latef
    if getattr(a, "BLATE", False): ready("ACT")
    for s_ in plan.regB:
        koff(s_, vKo[0])
        for n in range(5):
            r = free.pop(0); loc[("B%d" % s_, n)] = r
            a.vmem("buffer_load_dwordx4 %s, v%d, s[%d:%d], s%d offen sc1" % (v(r,4), vKo[0], sW2F, sW2F+3, sB+n), "B%d" % s_)
    ready("ACT")
    a.stamp(5)
    G = [(s_, i) for s_ in range(12) for i in range(9 if s_ in plan.lateB else 4)]
    def issue_a():
        s_, i = G.pop(0)
        if i == 0: koff(s_, vKo[0])
        r = free.pop(0)
        if i >= 4:
            loc[("B%d" % s_, i-4)] = r
            a.vmem("buffer_load_dwordx4 %s, v%d, s[%d:%d], s%d offen sc1" % (v(r,4), vKo[0], sW2F, sW2F+3, sB+i-4), "B%d" % s_)
            return
        loc[("A%d" % s_, i)] = r
        a.vmem("buffer_load_dwordx4 %s, v%d, s[%d:%d], s%d offen sc1" % (v(r,4), vKo[0], sAct, sAct+3, sA+i), "A%d" % s_)
    while G and len(free) > 5: issue_a()
    vX = None
    def peek2():
        nonlocal vPk
        vPk = vZero2
        peek()
    for s_ in range(12):
        side = []
        nb = s_ + 1 < 12 and (s_+1) in plan.ringB
        pl = pull("B%d" % (s_+1)) if nb else []
        keep = 5 if (s_ + 2 < 12 and (s_+2) in plan.ringB and s_ == 0 and False) else 0
        keep = {9: 5}.get(s_, 0)
        na = max(0, min(len(G), len(free) - keep))
        if nb: side.append(peek2)
        side += [issue_a]*min(na, 3); na -= min(na, 3)
        if nb:
            side.append(lambda: ready("B%d" % (s_+1)))
            side += pl
            side.append(lambda: release("B%d" % (s_+1)))
        side += [issue_a]*na
        if s_ == 9:
            vX = [free.pop(-1) for _ in range(3)]
            vQ = [free.pop(-1) for _ in range(2)]
            def xld(k):
                a("v_add_u32 v%d, %d, v0" % (vT2, 64*k))
                a("v_mul_u32_u24 v%d, 6554, v%d" % (vPR, vT2))
                a("v_lshrrev_b32 v%d, 16, v%d" % (vPR, vPR))
                a("v_lshlrev_b32 v%d, 4, v%d" % (vT2, vT2))
                a("v_mad_u32_u24 v%d, v%d, %s, v%d" % (vQ[1]+k, vPR, "16", vT2))
                a("v_mul_u32_u24 v%d, %d, v%d" % (vPR, 1280-160, vPR))
                a("v_add_u32 v%d, v%d, v%d" % (vQ[0]+k, vPR, vT2))
                a("v_add_u32 v%d, s%d, v%d" % (vQ[1]+k, sFw, vQ[1]+k))
                a.vmem("buffer_load_dwordx4 %s, v%d, s[%d:%d], s%d offen" % (v(vX[k],4), vQ[0]+k, sXs, sXs+3, sFs), "x")
            for k in range(3): side.append(lambda k=k: xld(k))
        if s_ == 11:
            side.append(lambda: bar_arrive(5))
        a.wait(lg="B%d" % s_, vm=["A%d" % s_, "B%d" % s_])
        if getattr(a, "P2ST", False) and s_ in (0, 2, 4, 6, 8, 10): a.stamp(10 + s_//2)
        order = [1, 2, 3, 0] if s_ == 11 else [0, 1, 2, 3]
        for i in order:
            for n in range(5):
                acc = vAcc2 + (i*5+n)*4
                a("v_mfma_f32_16x16x32_bf16 %s, %s, %s, %s" % (v(acc,4), v(loc[("B%d" % s_,n)],4), v(loc[("A%d" % s_,i)],4), "0" if s_ == 0 else v(acc,4)))
                if side: emit(side.pop(0))
        assert not side
        for i in range(4): free.append(loc[("A%d" % s_, i)])
        for n in range(5): free.append(loc[("B%d" % s_, n)])
    assert not G
    a.stamp(6)
    bar_wait(5)
    for i in range(1, 4):
        for n in range(5):
            a.lds("ds_write_b128 v%d, %s offset:%d" % (vRW+i-1, v(vAcc2+(i*5+n)*4,4), n*1024), "rw")
    bar_arrive(6)
    vXu = [free.pop(0) for _ in range(6)]
    a.wait(vm="x")
    for k in range(3):
        for j in range(4):
            u = vXu[2*k + j//2] + 2*(j % 2)
            a("v_lshlrev_b32 v%d, 16, v%d" % (u, vX[k]+j))
            a("v_and_b32 v%d, 0xffff0000, v%d" % (u+1, vX[k]+j))
    vS = [free.pop(0) for _ in range(3)]
    ready("S")
    for n in range(5):
        a.lds("ds_read_b64_tr_b16 %s, v%d offset:%d" % (v(vS[n//2] + 2*(n%2),2), vSO, n*16*128), "s")
    bar_wait(6)
    vR = [free.pop(0) for _ in range(15)]
    for n in range(5):
        for sl in range(3):
            a.lds("ds_read_b128 %s, v%d offset:%d" % (v(vR[n*3+sl],4), vRR, sl*5120 + n*1024), "rr%d" % n)
    vE = [vAcc2 + 20 + 4*i for i in range(8)]
    vU = [vAcc2 + 52 + 4*i for i in range(5)]
    for n in range(5):
        S = vS[n//2] + 2*(n%2); U = vU[n]
        a("v_lshlrev_b32 v%d, 16, v%d" % (U+0, S))
        a("v_and_b32 v%d, 0xffff0000, v%d" % (U+1, S))
        a("v_lshlrev_b32 v%d, 16, v%d" % (U+2, S+1))
        a("v_and_b32 v%d, 0xffff0000, v%d" % (U+3, S+1))
    for n in range(5):
        a.wait(lg="rr%d" % n)
        acc = vAcc2 + n*4; E = vE[n]; U = vU[n]
        for h in range(2):
            a("v_pk_add_f32 %s, %s, %s" % (v(vR[n*3]+2*h,2), v(vR[n*3]+2*h,2), v(vR[n*3+1]+2*h,2)))
            a("v_pk_add_f32 %s, %s, %s" % (v(acc+2*h,2), v(acc+2*h,2), v(vR[n*3+2]+2*h,2)))
        for h in range(2):
            a("v_pk_add_f32 %s, %s, %s" % (v(acc+2*h,2), v(acc+2*h,2), v(vR[n*3]+2*h,2)))
        for h in range(2):
            a("v_pk_mul_f32 %s, %s, s[%d:%d] neg_lo:[0,1] neg_hi:[0,1]" % (v(E+2*h,2), v(acc+2*h,2), sK, sK+1))
        for r in range(4): a("v_exp_f32 v%d, v%d" % (E+r, E+r))
        for h in range(2):
            a("v_pk_mul_f32 %s, %s, %s" % (v(acc+2*h,2), v(acc+2*h,2), v(U+2*h,2)))
        for r in range(4): a("v_add_f32 v%d, 1.0, v%d" % (E+r, E+r))
        for r in range(4): a("v_rcp_f32 v%d, v%d" % (E+r, E+r))
        a("s_nop 0")
        for h in range(2):
            a("v_pk_mul_f32 %s, %s, %s" % (v(acc+2*h,2), v(acc+2*h,2), v(E+2*h,2)))
        a("v_cvt_pk_bf16_f32 v%d, v%d, v%d" % (E, acc, acc+1))
        a("v_cvt_pk_bf16_f32 v%d, v%d, v%d" % (E+1, acc+2, acc+3))
        a.lds("ds_write_b64 v%d, %s offset:%d" % (vPW, v(E,2), n*32), "pw")
    vPq = vE[5:8]
    for k in range(3):
        a.lds("ds_read_b128 %s, v%d" % (v(vPq[k],4), vQ[1]+k), "pr%d" % k)
    for k in range(3):
        a.wait(lg="pr%d" % k)
        Wp = (vR[2*k], vR[2*k+1])
        for j in range(4):
            a("v_lshlrev_b32 v%d, 16, v%d" % (Wp[j//2] + 2*(j%2), vPq[k]+j))
            a("v_and_b32 v%d, 0xffff0000, v%d" % (Wp[j//2] + 2*(j%2) + 1, vPq[k]+j))
        for j in range(4):
            u = vXu[2*k + j//2] + 2*(j % 2)
            a("v_pk_add_f32 %s, %s, %s" % (v(u,2), v(u,2), v(Wp[j//2] + 2*(j%2),2)))
        for j in range(4):
            u = vXu[2*k + j//2] + 2*(j % 2)
            a("v_cvt_pk_bf16_f32 v%d, v%d, v%d" % (vX[k]+j, u, u+1))
        if k == 2: a("s_mov_b32 exec_hi, 0")
        a.vmem("buffer_store_dwordx4 %s, v%d, s[%d:%d], s%d offen" % (v(vX[k],4), vQ[0]+k, sOut, sOut+3, sFs), "st")
    a.stamp(7)
    a.stamp_dump(16, S_WAVE, 24, (200 << 20))
    a("s_endpgm")
    for sp, ok, k in ool:
        a.label(sp)
        a("s_mov_b32 s%d, %d" % (sSy, k))
        a("s_call_b64 s[%d:%d], L_c_spin" % (sRet, sRet+1))
        a("s_branch %s" % ok)
    a.label("L_c_spin")
    a("s_mov_b32 s%d, 0" % (sSy+2))
    a.label("L_c_spin_loop")
    if a.PROF: a("s_add_u32 s88, s88, 1")
    a("ds_read_b32 v%d, v%d" % (vRv, vCtl))
    a("s_add_u32 s%d, s%d, 1" % (sSy+2, sSy+2))
    a("s_cmp_gt_u32 s%d, 0x%x" % (sSy+2, SPIN_MAX*16))
    a("s_waitcnt lgkmcnt(0)")
    a("v_readfirstlane_b32 s%d, v%d" % (sRdy, vRv))
    a("s_cbranch_scc1 L_c_spin_ret")
    a("s_cmp_ge_u32 s%d, s%d" % (sRdy, sSy))
    a("s_cbranch_scc1 L_c_spin_ret")
    if getattr(a, "CSLEEP", 0): a("s_sleep %d" % a.CSLEEP)
    a("s_branch L_c_spin_loop")
    a.label("L_c_spin_ret")
    a("s_setpc_b64 s[%d:%d]" % (sRet, sRet+1))
    a.vm = []; a.lg = []
```

```python
import sys
from asmlib import *
from common import *
from plan import Plan
from loader import emit_loader
from gemm4 import emit_compute
from kc4 import emit_kc
from lnt4 import emit_lnt
NAME = "recurrent_scan__ssm_conv_s4__dense_activation_mish__prompt_kernel"
HDR = open("recurrent_scan__ssm_conv_s4__dense_activation_mish__prompt.s.ref").read().split("; Override launch")[0]
def build(path, prof=False, nopoll=False, noaux=False, T=12, cprio=1, kprio=2, lprio=3, ldprio=0, rot=True, NB_REG=3, NX_OWN=10, norel=False, noch=False, ksleep=16, lsleep=6, **flags):
    a = Asm()
    a.PROF = prof; a.NOPOLL = nopoll; a.NOREL = norel; a.NOCH = noch; a.KSLEEP = ksleep; a.LSLEEP = lsleep
    for k_, v_ in flags.items(): setattr(a, k_, v_)
    plan = Plan(NB_REG, NX_OWN)
    a.raw(HDR.rstrip())
    a.raw("; @launch grid=(256,1,1) block=(512,1,1) lds=%d" % LDS_BYTES)
    a.raw('.amdgcn_target "amdgcn-amd-amdhsa--gfx950"')
    a.raw(".text")
    kernel_begin(a, NAME)
    a("s_cmp_ge_u32 s2, 256")
    a("s_cbranch_scc1 L_end")
    if prof:
        a("s_memrealtime s[94:95]"); a("s_waitcnt lgkmcnt(0)")
    if not getattr(a, "LATEARG", True):
        a("s_load_dwordx16 s[8:23], s[0:1], 0")
        a("s_load_dwordx16 s[24:39], s[0:1], 64")
    a("v_lshrrev_b32 v1, 6, v0")
    if getattr(a, "CODEPF", False):
        a("s_cmp_ge_u32 s2, %d" % getattr(a, "PFWG", 32))
        a("s_cbranch_scc1 L_nopf")
        a("s_getpc_b64 s[4:5]")
        a.label("L_pfbase")
        a("v_lshlrev_b32 v2, 7, v0")
        a("v_min_u32 v2, L_end-L_pfbase, v2")
        a("global_load_dword v255, v2, s[4:5]")
        a.label("L_nopf")
    a("v_and_b32 v0, 63, v0")
    a("v_lshlrev_b32 v2, 2, v0")
    a("v_add_u32 v2, %d, v2" % L_CTL)
    a("v_readfirstlane_b32 s3, v1")
    a("v_mov_b32 v1, 0")
    a("ds_write_b32 v2, v1")
    a("s_waitcnt lgkmcnt(0)")
    if getattr(a, "LATEARG", True):
        a("s_load_dwordx16 s[8:23], s[0:1], 0")
        a("s_load_dwordx16 s[24:39], s[0:1], 64")
    if not getattr(a, "ORDER", False): a("s_barrier")
    a("s_cmp_lt_u32 s3, 4")
    a("s_cbranch_scc1 L_compute")
    a("s_cmp_eq_u32 s3, 4")
    a("s_cbranch_scc1 L_loader")
    if noaux: a("s_endpgm")
    a("s_setprio 3")
    a("s_sub_u32 s41, s3, 5")
    a("s_mul_i32 s40, s41, 20480")
    a("s_add_u32 s40, s40, %d" % L_AUX)
    a("s_lshl_b32 s42, s2, 1")
    a("s_add_u32 s42, s42, s41")
    a("s_cmp_lt_u32 s3, 7")
    a("s_cbranch_scc1 L_kc")
    a("s_add_u32 s42, s2, 512")
    a("s_cmp_lt_u32 s2, 128")
    a("s_cbranch_scc1 L_kc")
    a("s_bfe_u32 s42, s2, 0x20001")
    a("s_lshl_b32 s42, s42, 5")
    a("s_bfe_u32 s41, s2, 0x40003")
    a("s_lshl_b32 s41, s41, 1")
    a("s_add_u32 s42, s42, s41")
    a("s_and_b32 s41, s2, 1")
    a("s_add_u32 s42, s42, s41")
    if getattr(a, 'DBG', False): a.DBGST = (4, [(4, 15)])
    emit_lnt(a, 42, 40, lprio)
    a.label("L_kc")
    if getattr(a, 'DBG', False): a.DBGST = (242, [(1, 9), (2, 10), (3, 11), (4, 12), (5, 13)])
    emit_kc(a, 42, 40, kprio, gate=not getattr(a, 'KNOGATE', False), stage_rel=plan.rel.get(getattr(a, 'KSTAGE', 'W7'), 0), pause_rel=plan.rel.get(getattr(a, 'KPAUSE', 'none'), 0))
    a.label("L_loader")
    if getattr(a, 'DBG', False): a.DBGST = (4, [(5, 14)])
    emit_loader(a, plan, T, ldprio, rot)
    a.label("L_compute")
    if getattr(a, 'DBG', False): a.DBGST = (4, [(1, 2), (2, 3), (3, 4), (4, 5), (5, 6), (6, 7), (7, 8)])
    emit_compute(a, plan, cprio)
    a.label("L_end")
    a("s_endpgm")
    a.raw('.section .rodata,"a"')
    a.raw(".p2align 6")
    a.raw(kernel_desc(NAME, 256, 102))
    open(path, "w").write(a.text())
if __name__ == "__main__":
    build("s4.s")
    build("s4_prof.s", prof=True)
    build("s4_np.s", prof=True, nopoll=True, noaux=True)
    build("h1.s", prof=True, DBG=True)
```

```python
from asmlib import *
from common import *
from sync import Sync

def tile_maps(e, sRb, sCb, sRb2, sCb2, sT):
    i = S_WG
    if sRb is not None:
        e("s_bfe_u32 s%d, s%d, 0x20001" % (sRb, i))
        e("s_lshl_b32 s%d, s%d, 2" % (sRb, sRb))
        e("s_lshr_b32 s%d, s%d, 6" % (sT, i))
        e("s_add_u32 s%d, s%d, s%d" % (sRb, sRb, sT))
        e("s_and_b32 s%d, s%d, 1" % (sCb, i))
        e("s_lshl_b32 s%d, s%d, 3" % (sCb, sCb))
        e("s_bfe_u32 s%d, s%d, 0x30003" % (sT, i))
        e("s_add_u32 s%d, s%d, s%d" % (sCb, sCb, sT))
    if sRb2 is not None:
        e("s_bfe_u32 s%d, s%d, 0x20001" % (sRb2, i))
        e("s_lshl_b32 s%d, s%d, 3" % (sRb2, sRb2))
        e("s_lshr_b32 s%d, s%d, 5" % (sT, i))
        e("s_add_u32 s%d, s%d, s%d" % (sRb2, sRb2, sT))
        e("s_and_b32 s%d, s%d, 1" % (sCb2, i))
        e("s_lshl_b32 s%d, s%d, 2" % (sCb2, sCb2))
        e("s_bfe_u32 s%d, s%d, 0x20003" % (sT, i))
        e("s_add_u32 s%d, s%d, s%d" % (sCb2, sCb2, sT))

def k_rotation(e, sT, sT2, sRb, sCb):
    RM = getattr(e, "ROTMODE", 0)
    if RM:
        e("s_add_u32 s%d, s%d, s%d" % (sT, sRb, sCb))
        e("s_and_b32 s%d, s%d, %d" % (sT, sT, RM - 1))
        return
    e("s_and_b32 s%d, s%d, 3" % (sT, sRb))
    e("s_mul_i32 s%d, s%d, 3" % (sT, sT))
    e("s_add_u32 s%d, s%d, s%d" % (sT, sT, sCb))
    for _ in range(2):
        e("s_sub_u32 s%d, s%d, 10" % (sT2, sT))
        e("s_cmp_ge_u32 s%d, 10" % sT)
        e("s_cselect_b32 s%d, s%d, s%d" % (sT, sT2, sT))

def k_rotation2(e, sK, sT2, sRb2, sCb2):
    e("s_and_b32 s%d, s%d, 3" % (sT2, sCb2))
    e("s_mul_i32 s%d, s%d, 3" % (sT2, sT2))
    e("s_and_b32 s%d, s%d, 7" % (sK, sRb2))
    e("s_add_u32 s%d, s%d, s%d" % (sT2, sT2, sK))
    e("s_lshr_b32 s%d, s%d, 1" % (sK, sK))
    e("s_add_u32 s%d, s%d, s%d" % (sT2, sT2, sK))
    e("s_sub_u32 s%d, s%d, 12" % (sK, sT2))
    e("s_cmp_ge_u32 s%d, 12" % sT2)
    e("s_cselect_b32 s%d, s%d, s%d" % (sK, sK, sT2))
    e("s_lshl_b32 s%d, s%d, 10" % (sK, sK))

def x_src_offsets(a, vXs, vT0, vT1, vT2):
    a("v_lshrrev_b32 v%d, 4, v0" % vT0)
    a("v_lshrrev_b32 v%d, 3, v0" % vT1)
    a("v_and_b32 v%d, 7, v0" % vT2)
    a("v_xor_b32 v%d, v%d, v%d" % (vT2, vT2, vT0))
    a("v_mul_u32_u24 v%d, 1280, v%d" % (vXs, vT1))
    a("v_lshl_add_u32 v%d, v%d, 4, v%d" % (vXs, vT2, vXs))
    a("v_xor_b32 v%d, 64, v%d" % (vXs+1, vXs))
    a("v_add_u32 v%d, %d, v%d" % (vXs+2, 2*(10240-1024), vXs))
    a("v_add_u32 v%d, %d, v%d" % (vXs+3, 3*(10240-1024), vXs+1))
    a("v_add_u32 v%d, %d, v%d" % (vXs+1, 1*(10240-1024), vXs+1))

def emit_loader(a, plan, T=43, prio=3, ROT=True, RELAHEAD=11):
    vT0, vT1, vT2 = 1, 2, 3
    vTag, vZero, vL16 = 4, 6, 7
    vPoll = 8
    vXs, vWs, vCs, vBs, vAs = 20, 24, 36, 40, 44
    vRel, vPubA, vPub, vRelA, vPA = 60, 64, 65, 66, 67
    sRb, sCb, sRb2, sCb2, sT, sT2, sXo, sWo, sCo, sRel, sPub, sNeed, sAll = 40, 41, 42, 43, 44, 45, 46, 47, 48, 49, 50, 51, 52
    sSy = 54
    sRet = 58
    sXs, sW1, sW2, sW2F, sAct, sFl = 60, 64, 68, 72, 76, 4
    sBo, sAo, sFw, sFc = 53, 57, 46, 47
    sKx, sKw = 100, 101
    sy = Sync(a, sFl, P_DBG, vTag, vPoll, sSy, vZero)
    a.c("================ role: loader ================")
    a.stamp(0)
    if a.PROF:
        a("s_mov_b32 s86, 0"); a("s_mov_b32 s87, 0")
    a("s_setprio %d" % getattr(a, "LDPRIO0", 0))
    tile_maps(a, sRb, sCb, None, None, sT)
    for z in range(3):
        a("v_add_u32 v%d, %d, v0" % (vT2, 64*z))
        a("v_mul_u32_u24 v%d, 5462, v%d" % (vWs+z, vT2))
        a("v_lshrrev_b32 v%d, 16, v%d" % (vWs+z, vWs+z))
        a("v_mul_u32_u24 v%d, %d, v%d" % (vWs+z, 3072-192, vWs+z))
        a("v_lshl_add_u32 v%d, v0, 4, v%d" % (vWs+z, vWs+z))
    a("s_mul_i32 s%d, s%d, 192" % (sWo, sCb))
    k_rotation(a, sT, sT2, sRb, sCb)
    a("s_mul_i32 s%d, s%d, %d" % (sKw, sT, 64*3072))
    a("s_add_u32 s%d, s%d, %d" % (sT, sT, plan.NX_OWN))
    a("s_sub_u32 s%d, s%d, 10" % (sT2, sT))
    a("s_cmp_ge_u32 s%d, 10" % sT)
    a("s_cselect_b32 s%d, s%d, s%d" % (sT, sT2, sT))
    a("s_lshl_b32 s%d, s%d, 7" % (sKx, sT))
    a("s_waitcnt lgkmcnt(0)")
    a.srd(sW1, P_W1, 640*1536*2)
    st8 = {"n": 0, "pend": [], "issued": 0}
    def publish(k):
        a("s_max_u32 s%d, s%d, %d" % (sPub, sPub, k))
        a("v_mov_b32 v%d, s%d" % (vPub, sPub))
        a.lds("ds_write_b32 v%d, v%d" % (vPubA, vPub), "pub")
    def after_issue():
        while st8["pend"] and st8["n"] - st8["pend"][0][1] >= T:
            k, last = st8["pend"].pop(0)
            a("s_waitcnt vmcnt(%d)" % (st8["n"] - last))
            publish(k)
    def vm(txt):
        a(txt); st8["n"] += 1
        after_issue()
    def drain():
        while st8["pend"]:
            k, last = st8["pend"].pop(0)
            a("s_waitcnt vmcnt(%d)" % min(63, st8["n"] - last))
            publish(k)
    def rel_read():
        a.lds("ds_read_b128 %s, v%d" % (v(vRel,4), vRelA), "rel")
    def rel_check(need):
        if getattr(a, "NOREL", False): return
        ok = a.newlabel("L_relok")
        a.wait(lg="rel")
        a("v_min3_u32 v%d, v%d, v%d, v%d" % (vRel, vRel, vRel+1, vRel+2))
        a("v_min_u32 v%d, v%d, v%d" % (vRel, vRel, vRel+3))
        a("s_mov_b32 s%d, %d" % (sNeed, need))
        a("v_readfirstlane_b32 s%d, v%d" % (sRel, vRel))
        a("s_mov_b32 s%d, %d" % (sAll, st8["issued"]))
        a("s_cmp_ge_u32 s%d, %d" % (sRel, need))
        a("s_cbranch_scc1 %s" % ok)
        a("s_call_b64 s[%d:%d], L_ld_slow" % (sRet, sRet+1))
        a.label(ok)
    def adv(r, step, wrap):
        return ["s_add_u32 s%d, s%d, %d" % (r, r, step), "s_cmp_ge_u32 s%d, %d" % (r, wrap), "s_cselect_b32 s%d, 0, s%d" % (r, r)]
    def instrs(x):
        out = []
        if x.kind == "C":
            for i in range(8):
                pre = []
                if i % 4 == 0:
                    pre = ["s_mov_b32 m0, %d" % (L_W + 3*12288 + (i//4)*4096), "s_add_u32 s%d, s%d, 20480" % (sCo, sCo) if i else "s_nop 0"]
                out.append((pre, "buffer_load_dwordx4 v%d, s[%d:%d], s%d offen offset:%d lds" % (vCs + i % 4, sW2, sW2+3, sCo, (i % 4)*1024)))
        elif x.kind == "X":
            for w in range(4):
                for i in range(4):
                    pre = []
                    if i == 0:
                        pre = ["s_mov_b32 m0, %d" % (L_X + (x.idx % 3)*16384 + w*4096), ("s_add_u32 s%d, s%d, s%d" % (sT, sXo, sKx)) if w == 0 else ("s_add_u32 s%d, s%d, 40960" % (sT, sT))]
                    if w == 1 and i == 1: pre = adv(sKx, 128, 1280)
                    out.append((pre, "buffer_load_dwordx4 v%d, s[%d:%d], s%d offen offset:%d lds" % (vXs+i, sXs, sXs+3, sT, i*1024)))
        elif x.kind == "W":
            for z in range(12):
                pre = []
                if z % 3 == 0:
                    pre = ["s_mov_b32 m0, %d" % (L_W + (x.idx % 4)*12288 + (z//3)*3072), ("s_add_u32 s%d, s%d, s%d" % (sT, sWo, sKw)) if z == 0 else ("s_add_u32 s%d, s%d, %d" % (sT, sT, 16*3072))]
                if z == 1: pre = adv(sKw, 64*3072, 640*3072)
                out.append((pre, "buffer_load_dwordx4 v%d, s[%d:%d], s%d offen offset:%d lds" % (vWs + z % 3, sW1, sW1+3, sT, (z % 3)*1024)))
        elif x.kind == "B":
            for n, r in enumerate(x.rows):
                for w in range(4):
                    pre = []
                    if w == 0:
                        pre = ["s_mov_b32 m0, %d" % (r*4096), "s_add_u32 s%d, s%d, %d" % (sT, sT, 48*1024)]
                        if n == 0:
                            pre = ["s_add_u32 s%d, s%d, %d" % (sT, sKw, x.idx*1024), "s_sub_u32 s%d, s%d, %d" % (sT2, sT, 12*1024), "s_cmp_ge_u32 s%d, %d" % (sT, 12*1024),
                                   "s_cselect_b32 s%d, s%d, s%d" % (sT, sT2, sT), "s_mov_b32 m0, %d" % (r*4096), "s_add_u32 s%d, s%d, s%d" % (sT, sT, sBo)]
                    out.append((pre, "buffer_load_dwordx4 v%d, s[%d:%d], s%d offen offset:%d sc1 lds" % (vBs+w, sW2F, sW2F+3, sT, w*1024)))
        elif x.kind == "S":
            for i in range(10):
                pre = ["s_mov_b32 m0, %d" % (x.rows[0]*4096 + i*1024), "s_add_u32 s%d, s%d, %d" % (sT, sT, 8*TRS) if i else "s_nop 0"]
                out.append((pre, "buffer_load_dwordx4 v%d, s[%d:%d], s%d offen sc1 lds" % (vCs, sW2, sW2+3, sT)))
        return out
    items = plan.items
    cur_rel = 0
    for k, x in enumerate(items):
        nxt = items[k+1] if k + 1 < len(items) else None
        if x.kind == "B" and x.idx == 0:
            a("s_waitcnt vmcnt(%d)" % (st8["n"] - st8["pollpos"]))
            okl = a.newlabel("L_w2ok"); sp = a.newlabel("L_w2spin"); ck = a.newlabel("L_w2chk")
            if not getattr(a, "NOPOLL", False):
                a("s_mov_b32 s%d, 0" % (sSy+2))
                a("s_branch %s" % ck)
                a.label(sp)
                a("s_waitcnt vmcnt(0)")
                publish(st8["issued"])
                a("s_sleep %d" % getattr(a, "LSLEEP", 1))
                for t in st8["polltxt"]: a(t)
                a("s_add_u32 s%d, s%d, 1" % (sSy+2, sSy+2))
                a("s_cmp_gt_u32 s%d, 0x%x" % (sSy+2, SPIN_MAX))
                a("s_waitcnt vmcnt(0)")
                a("s_cbranch_scc1 %s" % okl)
                a.label(ck)
                a("v_cmp_eq_u32 vcc, 0, v%d" % vTag)
                for q in range(6):
                    a("v_cmp_ne_u64 s[%d:%d], %s, %s" % (sSy, sSy+1, v(vPoll+2*q,2), v(vTag,2)))
                    a("s_or_b64 vcc, vcc, s[%d:%d]" % (sSy, sSy+1))
                a("s_cbranch_scc1 %s" % sp)
                a.label(okl)
            a.stamp(2)
        if x.kind == "ACT":
            if cur_rel < plan.rel["B0"]:
                drain()
                if getattr(a, "ACTGATE", True):
                    rel_read(); rel_check(plan.rel["B0"]); cur_rel = max(cur_rel, plan.rel["B0"])
            a.stamp(3)
            a.vm = []
            sy.poll_issue(vPA, "s%d" % sFc, 0, "pact"); st8["n"] += 1
            drain()
            sy.poll_check(vPA, "s%d" % sFc, 0, "pact", sleep=getattr(a, "LSLEEP", 1))
            publish(k+1); st8["issued"] = k + 1
            if getattr(a, "LDPRIO2", 0): a("s_setprio %d" % a.LDPRIO2)
            a.stamp(4)
            rel_read()
            continue
        if x.kind == "S":
            a.stamp(12)
            a.srd_off(sW2, P_WS, WS_ST, ST_BYTES)
            a("v_lshrrev_b32 v%d, 3, v0" % vT0)
            a("v_and_b32 v%d, 7, v0" % vT1)
            a("v_mul_u32_u24 v%d, %d, v%d" % (vCs, TRS, vT0))
            a("v_lshl_add_u32 v%d, v%d, 4, v%d" % (vCs, vT1, vCs))
            a("v_min_u32 v%d, %d, v%d" % (vPA, 39*16, vL16))
            a("s_mul_i32 s%d, s%d, 640" % (sFc, sCb2))
            a("s_add_u32 s%d, s%d, %d" % (sFc, sFc, FL_S))
            a.vm = []
            sy.poll_issue(vPA, "s%d" % sFc, 0, "ps"); st8["n"] += 1
            drain()
            sy.poll_check(vPA, "s%d" % sFc, 0, "ps", sleep=getattr(a, "LSLEEP", 1))
            a.stamp(13)
            a("s_mul_i32 s%d, s%d, %d" % (sT, sCb2, 80*TRS))
            a("s_lshl_b32 s%d, s%d, 7" % (sT2, sRb2))
            a("s_add_u32 s%d, s%d, s%d" % (sT, sT, sT2))
        if x.need_rel > cur_rel:
            rel_check(x.need_rel); cur_rel = x.need_rel
        ins = instrs(x)
        for j, (pre, txt) in enumerate(ins):
            if nxt is not None and nxt.need_rel > cur_rel and j == max(0, len(ins) - RELAHEAD): rel_read()
            for p in pre: a(p)
            if j == len(ins) - 1:
                a(txt); st8["n"] += 1
                st8["pend"].append((k+1, st8["n"])); st8["issued"] = k + 1
                after_issue()
            else:
                vm(txt)
        if x.kind == "W" and x.idx in (2, 4, 6, 8): a.stamp(8 + (x.idx-2)//2)
        if k == 0:
            if getattr(a, "ORDER", False): a("s_barrier")
            a("s_mul_i32 s%d, s%d, 13108" % (sT, S_WG))
            a("s_lshr_b32 s%d, s%d, 16" % (sT, sT))
            a("s_mul_i32 s%d, s%d, 5" % (sT2, sT))
            a("s_sub_u32 s%d, s%d, s%d" % (sT2, S_WG, sT2))
            a("s_mul_i32 s%d, s%d, 40960" % (sCo, sT))
            a("s_lshl_b32 s%d, s%d, 8" % (sT2, sT2))
            a("s_add_u32 s%d, s%d, s%d" % (sCo, sCo, sT2))
            a("v_lshrrev_b32 v%d, 4, v0" % vT0)
            a("v_and_b32 v%d, 15, v0" % vT1)
            a("v_mul_u32_u24 v%d, 1280, v%d" % (vCs, vT0))
            a("v_lshl_add_u32 v%d, v%d, 4, v%d" % (vCs, vT1, vCs))
            for i in range(1, 4): a("v_add_u32 v%d, %d, v%d" % (vCs+i, i*(5120-1024), vCs))
            x_src_offsets(a, vXs, vT0, vT1, vT2)
            a("s_mul_i32 s%d, s%d, %d" % (sXo, sRb, 128*1280))
            a.srd(sW2, P_W2, W2F_BYTES)
            a.srd(sXs, P_X, 2048*640*2)
            a("v_lshlrev_b32 v%d, 2, v0" % vPubA)
            a("v_add_u32 v%d, %d, v%d" % (vPubA, C_DUMMY, vPubA))
            a("v_mov_b32 v%d, %d" % (vT0, C_RDY))
            a("v_cmp_eq_u32 vcc, 0, v0")
            a("v_mov_b32 v%d, %d" % (vRelA, C_REL))
            a("s_mov_b32 s%d, 0" % sPub)
            a("v_cndmask_b32 v%d, v%d, v%d, vcc" % (vPubA, vPubA, vT0))
            a.stamp(1)
        if k == getattr(a, 'LDDROP', 2): a("s_setprio %d" % prio)
        if k == 3:
            tile_maps(a, None, None, sRb2, sCb2, sT)
            a.srd_off(sW2F, P_WS, WS_W2F, W2F_BYTES)
            a.srd_off(sFl, P_WS, WS_FLAGS, FLAGS_BYTES)
            a("v_lshlrev_b32 v%d, 4, v0" % vL16)
            a("v_mov_b32 v%d, 0" % vZero)
            for w in range(4):
                a("v_add_u32 v%d, %d, v%d" % (vBs+w, w*11*1024, vL16))
            a("s_mul_i32 s%d, s%d, %d" % (sBo, sCb2, 5*48*1024))
            a("v_min_u32 v%d, %d, v%d" % (vPA, 15*16, vL16))
            if getattr(a, "LDSTAG", False):
                a.vm = []
                sy.tag_load(True); st8["n"] += 1
                drain()
                sy.tag_check(True)
                a("v_mov_b32 v%d, %d" % (vT0, C_TAG))
                a.lds("ds_write_b64 v%d, %s" % (vT0, v(vTag,2)), "pub")
                rel_read()
        if x.kind == "W" and x.idx == 9:
            a("s_mul_i32 s%d, s%d, 5" % (sT2, sCb2))
            a("s_lshr_b32 s%d, s%d, 3" % (sT2, sT2))
            a("s_min_u32 s%d, s%d, 3" % (sT2, sT2))
            a("s_mul_i32 s%d, s%d, 1536" % (sT2, sT2))
            a("s_add_u32 s%d, s%d, %d" % (sCo, sT2, FL_W2F))
            txt = [] if getattr(a, "LDSTAG", False) else ["global_load_dwordx2 %s, v%d, s[%d:%d] sc1" % (v(vTag,2), vZero, P_DBG, P_DBG+1)]
            txt += ["buffer_load_dwordx4 %s, v%d, s[%d:%d], s%d offen offset:%d sc1" % (v(vPoll+4*q,4), vL16, sFl, sFl+3, sCo, q*1024) for q in range(3)]
            st8["polltxt"] = txt
            for t in txt: vm(t)
            st8["pollpos"] = st8["n"]
            k_rotation2(a, sKw, sT2, sRb2, sCb2)
            a("s_lshl_b32 s%d, s%d, 8" % (sFc, sRb2))
            a("s_add_u32 s%d, s%d, %d" % (sFc, sFc, FL_ACT))
    drain()
    a.stamp(5)
    a.stamp_dump(15, S_WAVE, 68, (200 << 20))
    a("s_endpgm")
    a.label("L_ld_slow")
    if a.PROF: a("s_add_u32 s86, s86, 1")
    a("s_mov_b32 s%d, 0" % (sSy+2))
    a.label("L_ld_slow_loop")
    a("s_cmp_lg_u32 s%d, 3" % (sSy+2))
    a("s_cbranch_scc1 L_ld_slow_nodrain")
    if a.PROF: a("s_add_u32 s87, s87, 1")
    a("s_waitcnt vmcnt(0)")
    a("s_max_u32 s%d, s%d, s%d" % (sPub, sPub, sAll))
    a("v_mov_b32 v%d, s%d" % (vPub, sPub))
    a("ds_write_b32 v%d, v%d" % (vPubA, vPub))
    a.label("L_ld_slow_nodrain")
    if getattr(a, "CSLEEP", 0): a("s_sleep %d" % a.CSLEEP)
    rel_read()
    a("s_add_u32 s%d, s%d, 1" % (sSy+2, sSy+2))
    a("s_waitcnt lgkmcnt(0)")
    a("v_min3_u32 v%d, v%d, v%d, v%d" % (vRel, vRel, vRel+1, vRel+2))
    a("v_min_u32 v%d, v%d, v%d" % (vRel, vRel, vRel+3))
    a("s_cmp_gt_u32 s%d, 0x%x" % (sSy+2, SPIN_MAX*16))
    a("v_readfirstlane_b32 s%d, v%d" % (sRel, vRel))
    a("s_cbranch_scc1 L_ld_slow_ret")
    a("s_cmp_lt_u32 s%d, s%d" % (sRel, sNeed))
    a("s_cbranch_scc1 L_ld_slow_loop")
    a.label("L_ld_slow_ret")
    a("s_setpc_b64 s[%d:%d]" % (sRet, sRet+1))
    a.vm = []; a.lg = []
```

```python
from asmlib import *
from common import *

class Sync:
    def __init__(self, a, sFl, sDbg, vTag, vP, sTmp, vZero):
        self.a, self.sFl, self.sDbg, self.vTag, self.vP, self.sT, self.vZ = a, sFl, sDbg, vTag, vP, sTmp, vZero
    def publish_tag(self, vtmp):
        a = self.a
        a("s_memrealtime s[%d:%d]" % (self.sT, self.sT+1))
        a("s_waitcnt lgkmcnt(0)")
        a("s_or_b32 s%d, s%d, 1" % (self.sT, self.sT))
        a("v_mov_b32 v%d, s%d" % (vtmp, self.sT))
        a("v_mov_b32 v%d, s%d" % (vtmp+1, self.sT+1))
        a.vmem("global_store_dwordx2 v%d, %s, s[%d:%d] sc1" % (self.vZ, v(vtmp,2), self.sDbg, self.sDbg+1), "tagst")
    def tag_load(self, direct=False):
        if getattr(self.a, "LDSTAG", False) and not direct: return
        self.a.vmem("global_load_dwordx2 %s, v%d, s[%d:%d] sc1" % (v(self.vTag,2), self.vZ, self.sDbg, self.sDbg+1), "tag")
    def tag_check(self, direct=False):
        a = self.a
        if getattr(a, "LDSTAG", False) and not direct:
            ok = a.newlabel("L_ltok"); lp = a.newlabel("L_ltspin")
            a("s_mov_b32 s%d, 0" % (self.sT+2))
            a.label(lp)
            a("v_mov_b32 v%d, %d" % (self.vTag, C_TAG))
            a("ds_read_b64 %s, v%d" % (v(self.vTag,2), self.vTag))
            a("s_add_u32 s%d, s%d, 1" % (self.sT+2, self.sT+2))
            a("s_cmp_gt_u32 s%d, 0x%x" % (self.sT+2, SPIN_MAX*16))
            a("s_waitcnt lgkmcnt(0)")
            a("s_cbranch_scc1 %s" % ok)
            a("v_cmp_ne_u32 vcc, 0, v%d" % self.vTag)
            a("s_cbranch_vccz %s" % lp)
            a.label(ok)
            a.lg = []
            return
        a.wait(vm="tag")
        if getattr(a, "NOPOLL", False): return
        ok = a.newlabel("L_tagok"); lp = a.newlabel("L_tagspin")
        a("v_cmp_ne_u32 vcc, 0, v%d" % self.vTag)
        a("s_cbranch_vccnz %s" % ok)
        a("s_mov_b32 s%d, 0" % (self.sT+2))
        a.label(lp)
        a("s_sleep 2")
        a("global_load_dwordx2 %s, v%d, s[%d:%d] sc1" % (v(self.vTag,2), self.vZ, self.sDbg, self.sDbg+1))
        a("s_add_u32 s%d, s%d, 1" % (self.sT+2, self.sT+2))
        a("s_cmp_gt_u32 s%d, 0x%x" % (self.sT+2, SPIN_MAX))
        a("s_waitcnt vmcnt(0)")
        a("s_cbranch_scc1 %s" % ok)
        a("v_cmp_ne_u32 vcc, 0, v%d" % self.vTag)
        a("s_cbranch_vccz %s" % lp)
        a.label(ok)
    def poll_addr(self, vaddr, nflags):
        a = self.a
        a("v_min_u32 v%d, %d, v0" % (vaddr, nflags//2 - 1))
        a("v_lshlrev_b32 v%d, 4, v%d" % (vaddr, vaddr))
    def _ld(self, vaddr, soff, imm, vP):
        return "buffer_load_dwordx4 %s, v%d, s[%d:%d], %s offen offset:%d sc1" % (v(vP,4), vaddr, self.sFl, self.sFl+3, soff, imm)
    def poll_issue(self, vaddr, soff, imm, tag, vP=None):
        self.a.vmem(self._ld(vaddr, soff, imm, self.vP if vP is None else vP), tag)
    def poll_check(self, vaddr, soff, imm, tag, vP=None, sleep=1):
        a = self.a
        if vP is None: vP = self.vP
        ok = a.newlabel("L_pok"); lp = a.newlabel("L_pspin"); ck = a.newlabel("L_pchk")
        a.wait(vm=tag)
        if getattr(a, "NOPOLL", False): return
        a("s_mov_b32 s%d, 0" % (self.sT+2))
        a("s_branch %s" % ck)
        a.label(lp)
        a("s_sleep %d" % sleep)
        a(self._ld(vaddr, soff, imm, vP))
        a("s_add_u32 s%d, s%d, 1" % (self.sT+2, self.sT+2))
        a("s_cmp_gt_u32 s%d, 0x%x" % (self.sT+2, SPIN_MAX))
        a("s_waitcnt vmcnt(0)")
        a("s_cbranch_scc1 %s" % ok)
        a.label(ck)
        a("v_cmp_ne_u64 vcc, %s, %s" % (v(vP,2), v(self.vTag,2)))
        a("v_cmp_ne_u64 s[%d:%d], %s, %s" % (self.sT, self.sT+1, v(vP+2,2), v(self.vTag,2)))
        a("s_or_b64 vcc, vcc, s[%d:%d]" % (self.sT, self.sT+1))
        a("s_cbranch_scc1 %s" % lp)
        a.label(ok)
    def signal(self, soff, imm):
        a = self.a
        a("s_mov_b64 exec, 1")
        a.vmem("buffer_store_dwordx2 %s, v%d, s[%d:%d], %s offen offset:%d sc1" % (v(self.vTag,2), self.vZ, self.sFl, self.sFl+3, soff, imm), "flag")
        a("s_mov_b64 exec, -1")
    def granule_check(self, ld, tag, vtagfield, sleep=1):
        a = self.a
        ok = a.newlabel("L_gok"); lp = a.newlabel("L_gspin"); ck = a.newlabel("L_gchk")
        a.wait(vm=tag)
        if getattr(a, "NOPOLL", False): return
        a("s_mov_b32 s%d, 0" % (self.sT+2))
        a("s_branch %s" % ck)
        a.label(lp)
        a("s_sleep %d" % sleep)
        a(ld)
        a("s_add_u32 s%d, s%d, 1" % (self.sT+2, self.sT+2))
        a("s_cmp_gt_u32 s%d, 0x%x" % (self.sT+2, SPIN_MAX))
        a("s_waitcnt vmcnt(0)")
        a("s_cbranch_scc1 %s" % ok)
        a.label(ck)
        a("v_cmp_ne_u64 vcc, %s, %s" % (v(vtagfield,2), v(self.vTag,2)))
        a("s_cbranch_vccnz %s" % lp)
        a.label(ok)
```

```python
import sys
from asmlib import *
from common import *
from plan import Plan
from loader import emit_loader
from gemm4 import emit_compute
from kc4 import emit_kc
from lnt4 import emit_lnt
NAME = "recurrent_scan__ssm_conv_s4__dense_activation_mish__prompt_kernel"
HDR = open("recurrent_scan__ssm_conv_s4__dense_activation_mish__prompt.s.ref").read().split("; Override launch")[0]
def build(path, prof=False, nopoll=False, noaux=False, T=12, cprio=1, kprio=2, lprio=3, ldprio=0, rot=True, NB_REG=3, NX_OWN=10, norel=False, noch=False, ksleep=16, lsleep=6, **flags):
    a = Asm()
    a.PROF = prof; a.NOPOLL = nopoll; a.NOREL = norel; a.NOCH = noch; a.KSLEEP = ksleep; a.LSLEEP = lsleep
    for k_, v_ in flags.items(): setattr(a, k_, v_)
    plan = Plan(NB_REG, NX_OWN, getattr(a, 'ACTPOS', 4))
    a.raw(HDR.rstrip())
    a.raw("; @launch grid=(256,1,1) block=(512,1,1) lds=%d" % LDS_BYTES)
    a.raw('.amdgcn_target "amdgcn-amd-amdhsa--gfx950"')
    a.raw(".text")
    kernel_begin(a, NAME)
    a("s_cmp_ge_u32 s2, 256")
    a("s_cbranch_scc1 L_end")
    if prof:
        a("s_memrealtime s[94:95]"); a("s_waitcnt lgkmcnt(0)")
    if not getattr(a, "LATEARG", True):
        a("s_load_dwordx16 s[8:23], s[0:1], 0")
        a("s_load_dwordx16 s[24:39], s[0:1], 64")
    a("v_lshrrev_b32 v1, 6, v0")
    if getattr(a, "CODEPF", False):
        a("s_cmp_ge_u32 s2, %d" % getattr(a, "PFWG", 32))
        a("s_cbranch_scc1 L_nopf")
        a("s_getpc_b64 s[4:5]")
        a.label("L_pfbase")
        a("v_lshlrev_b32 v2, 7, v0")
        a("v_min_u32 v2, L_end-L_pfbase, v2")
        a("global_load_dword v255, v2, s[4:5]")
        a.label("L_nopf")
    a("v_and_b32 v0, 63, v0")
    a("v_lshlrev_b32 v2, 2, v0")
    a("v_add_u32 v2, %d, v2" % L_CTL)
    a("v_readfirstlane_b32 s3, v1")
    a("v_mov_b32 v1, 0")
    a("ds_write_b32 v2, v1")
    a("s_waitcnt lgkmcnt(0)")
    if getattr(a, "LATEARG", True):
        a("s_load_dwordx16 s[8:23], s[0:1], 0")
        a("s_load_dwordx16 s[24:39], s[0:1], 64")
    if not getattr(a, "ORDER", False): a("s_barrier")
    a("s_cmp_lt_u32 s3, 4")
    a("s_cbranch_scc1 L_compute")
    a("s_cmp_eq_u32 s3, 4")
    a("s_cbranch_scc1 L_loader")
    if noaux: a("s_endpgm")
    a("s_setprio 3")
    a("s_sub_u32 s41, s3, 5")
    a("s_mul_i32 s40, s41, 20480")
    a("s_add_u32 s40, s40, %d" % L_AUX)
    a("s_lshl_b32 s42, s2, 1")
    a("s_add_u32 s42, s42, s41")
    a("s_cmp_lt_u32 s3, 7")
    a("s_cbranch_scc1 L_kc")
    a("s_add_u32 s42, s2, 512")
    a("s_cmp_lt_u32 s2, 128")
    a("s_cbranch_scc1 L_kc")
    a("s_bfe_u32 s42, s2, 0x20001")
    a("s_lshl_b32 s42, s42, 5")
    a("s_bfe_u32 s41, s2, 0x40003")
    a("s_lshl_b32 s41, s41, 1")
    a("s_add_u32 s42, s42, s41")
    a("s_and_b32 s41, s2, 1")
    a("s_add_u32 s42, s42, s41")
    if getattr(a, 'DBG', False): a.DBGST = (4, [(4, 15)])
    emit_lnt(a, 42, 40, lprio)
    a.label("L_kc")
    if getattr(a, 'DBG', False): a.DBGST = (242, [(1, 9), (2, 10), (3, 11), (4, 12), (5, 13)])
    emit_kc(a, 42, 40, kprio, gate=not getattr(a, 'KNOGATE', False), stage_rel=plan.rel.get(getattr(a, 'KSTAGE', 'W7'), 0), pause_rel=plan.rel.get(getattr(a, 'KPAUSE', 'none'), 0))
    a.label("L_loader")
    if getattr(a, 'DBG', False): a.DBGST = (4, [(5, 14)])
    emit_loader(a, plan, T, ldprio, rot)
    a.label("L_compute")
    if getattr(a, 'DBG', False): a.DBGST = (4, [(1, 2), (2, 3), (3, 4), (4, 5), (5, 6), (6, 7), (7, 8)])
    emit_compute(a, plan, cprio)
    a.label("L_end")
    a("s_endpgm")
    a.raw('.section .rodata,"a"')
    a.raw(".p2align 6")
    a.raw(kernel_desc(NAME, 256, 102))
    open(path, "w").write(a.text())
if __name__ == "__main__":
    build("s4.s")
    build("s4_prof.s", prof=True)
    build("s4_np.s", prof=True, nopoll=True, noaux=True)
    build("h1.s", kprio=3)
    build("h2.s", NPK=1)
    build("h3.s", NPK=2)
    build("h4.s", KSTAGE="W5", KPAUSE="W9", NPK=1, CH_LAG=2)
    build("h5.s", cprio=0, ldprio=0, kprio=1)
```

```python
import struct

def f2u(x):
    return struct.unpack("<I", struct.pack("<f", x))[0]

def fhex(x):
    return "0x%08x" % f2u(x)

def v(i, n=1):
    return "v%d" % i if n == 1 else "v[%d:%d]" % (i, i + n - 1)

def s(i, n=1):
    return "s%d" % i if n == 1 else "s[%d:%d]" % (i, i + n - 1)

class Asm:
    def __init__(self):
        self.lines = []
        self.vm = []
        self.lg = []
        self.nlabel = 0
    def __call__(self, txt):
        self.lines.append("    " + txt)
    def c(self, txt):
        self.lines.append("    ; " + txt)
    def label(self, name):
        self.lines.append(name + ":")
    def raw(self, txt):
        self.lines.append(txt)
    def newlabel(self, base="L"):
        self.nlabel += 1
        return "%s_%d" % (base, self.nlabel)
    def text(self):
        return "\n".join(self.lines) + "\n"
    def vmem(self, txt, tag=None):
        self(txt)
        self.vm.append(tag)
    def lds(self, txt, tag=None):
        self(txt)
        self.lg.append(tag)
    def _n_after(self, lst, tags):
        last = -1
        for i, t in enumerate(lst):
            if t in tags:
                last = i
        if last < 0:
            return None
        return len(lst) - 1 - last, last
    def wait(self, vm=None, lg=None):
        parts = []
        if vm is not None:
            if vm == "all":
                parts.append("vmcnt(0)"); self.vm = []
            else:
                if not isinstance(vm, (list, tuple, set)): vm = [vm]
                r = self._n_after(self.vm, set(vm))
                if r is not None:
                    n, last = r
                    if n <= 63:
                        parts.append("vmcnt(%d)" % n)
                        self.vm = self.vm[last + 1:]
                    else:
                        raise Exception("vmcnt overflow")
        if lg is not None:
            if lg == "all":
                parts.append("lgkmcnt(0)"); self.lg = []
            else:
                if not isinstance(lg, (list, set)): lg = [lg]
                r = self._n_after(self.lg, set(lg))
                if r is not None:
                    n, last = r
                    n2 = min(n, 14)
                    parts.append("lgkmcnt(%d)" % n2)
                    self.lg = self.lg[len(self.lg) - n2:] if n2 > 0 else []
        if parts:
            self("s_waitcnt " + " ".join(parts))
    PROF = False
    STAMP_S = 80
    def stamp(self, i):
        if not self.PROF: return
        self("s_memrealtime s[98:99]")
        self("s_waitcnt lgkmcnt(0)")
        self("s_mov_b32 s%d, s98" % (self.STAMP_S + i))
        self.lg = []
    def cstamp(self, i):
        if not self.PROF: return
        self("s_memtime s[98:99]")
        self("s_waitcnt lgkmcnt(0)")
        self("s_mov_b32 s%d, s98" % (self.STAMP_S + i))
        self.lg = []
    def stamp_dump(self, n, vtid_wave_sgpr, vtmp, ws_off=200 << 20):
        if not self.PROF: return
        if getattr(self, "DBGST", None) is not None:
            vt, slots, wv = self.DBGST
            skip = self.newlabel("L_dbgskip")
            self("s_cmp_lg_u32 s2, 100"); self("s_cbranch_scc1 %s" % skip)
            self("s_cmp_lg_u32 s3, %d" % wv); self("s_cbranch_scc1 %s" % skip)
            self("s_load_dwordx2 s[96:97], s[0:1], 112")
            self("s_mov_b64 exec, 1")
            self("s_waitcnt lgkmcnt(0)")
            self("v_mov_b32 v%d, 0" % (vtmp+1))
            for st_, w in slots:
                self("v_sub_u32 v%d, s%d, v%d" % (vtmp, self.STAMP_S + st_, vt))
                self("global_store_dword v%d, v%d, s[96:97] offset:%d" % (vtmp+1, vtmp, 4*w))
                self("s_nop 1")
            self.label(skip)
            return
        self("s_load_dwordx2 s[96:97], s[0:1], 120")
        self("s_waitcnt lgkmcnt(0)")
        self("s_add_u32 s96, s96, 0x%x" % ws_off)
        self("s_addc_u32 s97, s97, 0")
        self("s_lshl_b32 s98, s2, 3")
        self("s_add_u32 s98, s98, s%d" % vtid_wave_sgpr)
        self("s_lshl_b32 s98, s98, 6")
        self("s_mov_b64 exec, 1")
        self("v_mov_b32 v%d, s98" % (vtmp + 16))
        for i in range(16):
            self("v_mov_b32 v%d, s%d" % (vtmp + i, self.STAMP_S + min(i, n-1)))
        for q in range(4):
            self("global_store_dwordx4 v%d, v[%d:%d], s[96:97] offset:%d" % (vtmp + 16, vtmp + 4*q, vtmp + 4*q + 3, 16*q))
    def nop(self, n):
        while n > 0:
            k = min(n, 16)
            self("s_nop %d" % (k - 1))
            n -= k
    def srd(self, d, base, nbytes):
        self("s_mov_b32 s%d, s%d" % (d, base))
        self("s_and_b32 s%d, s%d, 0xffff" % (d + 1, base + 1))
        self("s_mov_b32 s%d, 0x%x" % (d + 2, nbytes))
        self("s_mov_b32 s%d, 0x00020000" % (d + 3))
    def srd_off(self, d, base, off, nbytes):
        self("s_add_u32 s%d, s%d, 0x%x" % (d, base, off))
        self("s_addc_u32 s%d, s%d, 0" % (d + 1, base + 1))
        self("s_and_b32 s%d, s%d, 0xffff" % (d + 1, d + 1))
        self("s_mov_b32 s%d, 0x%x" % (d + 2, nbytes))
        self("s_mov_b32 s%d, 0x00020000" % (d + 3))

def kernel_begin(a, name):
    a.raw(".globl %s" % name)
    a.raw(".p2align 8")
    a.raw(".type %s,@function" % name)
    a.raw("%s:" % name)

def kernel_desc(name, vgpr, sgpr, accum=None):
    if accum is None:
        accum = (vgpr + 3) // 4 * 4
    return """.amdhsa_kernel %s
  .amdhsa_next_free_vgpr %d
  .amdhsa_next_free_sgpr %d
  .amdhsa_accum_offset %d
  .amdhsa_group_segment_fixed_size 0
  .amdhsa_kernarg_size 128
  .amdhsa_user_sgpr_count 2
  .amdhsa_user_sgpr_kernarg_segment_ptr 1
  .amdhsa_system_sgpr_workgroup_id_x 1
.end_amdhsa_kernel
""" % (name, vgpr, sgpr, accum)
```

```python
import sys
from asmlib import *
from common import *
from plan import Plan
from loader import emit_loader
from gemm4 import emit_compute
from kc4 import emit_kc
from lnt4 import emit_lnt
NAME = "recurrent_scan__ssm_conv_s4__dense_activation_mish__prompt_kernel"
HDR = open("recurrent_scan__ssm_conv_s4__dense_activation_mish__prompt.s.ref").read().split("; Override launch")[0]
def build(path, prof=False, nopoll=False, noaux=False, T=12, cprio=1, kprio=2, lprio=3, ldprio=0, rot=True, NB_REG=3, NX_OWN=10, norel=False, noch=False, ksleep=16, lsleep=6, **flags):
    a = Asm()
    a.PROF = prof; a.NOPOLL = nopoll; a.NOREL = norel; a.NOCH = noch; a.KSLEEP = ksleep; a.LSLEEP = lsleep
    for k_, v_ in flags.items(): setattr(a, k_, v_)
    plan = Plan(NB_REG, NX_OWN, getattr(a, 'ACTPOS', 4))
    a.raw(HDR.rstrip())
    a.raw("; @launch grid=(256,1,1) block=(512,1,1) lds=%d" % LDS_BYTES)
    a.raw('.amdgcn_target "amdgcn-amd-amdhsa--gfx950"')
    a.raw(".text")
    kernel_begin(a, NAME)
    if getattr(a, "DIAGENTRY", False): a("s_memrealtime s[94:95]")
    a("s_cmp_ge_u32 s2, 256")
    a("s_cbranch_scc1 L_end")
    if prof:
        a("s_memrealtime s[94:95]"); a("s_waitcnt lgkmcnt(0)")
    if not getattr(a, "LATEARG", True):
        a("s_load_dwordx16 s[8:23], s[0:1], 0")
        a("s_load_dwordx16 s[24:39], s[0:1], 64")
    a("v_lshrrev_b32 v1, 6, v0")
    if getattr(a, "CODEPF", False):
        a("s_cmp_ge_u32 s2, %d" % getattr(a, "PFWG", 32))
        a("s_cbranch_scc1 L_nopf")
        a("s_getpc_b64 s[4:5]")
        a.label("L_pfbase")
        a("v_lshlrev_b32 v2, 7, v0")
        a("v_min_u32 v2, L_end-L_pfbase, v2")
        a("global_load_dword v255, v2, s[4:5]")
        a.label("L_nopf")
    a("v_and_b32 v0, 63, v0")
    a("v_lshlrev_b32 v2, 2, v0")
    a("v_add_u32 v2, %d, v2" % L_CTL)
    a("v_readfirstlane_b32 s3, v1")
    a("v_mov_b32 v1, 0")
    a("ds_write_b32 v2, v1")
    a("s_waitcnt lgkmcnt(0)")
    if getattr(a, "LATEARG", True):
        a("s_load_dwordx16 s[8:23], s[0:1], 0")
        a("s_load_dwordx16 s[24:39], s[0:1], 64")
    if not getattr(a, "ORDER", False): a("s_barrier")
    a("s_cmp_lt_u32 s3, 4")
    a("s_cbranch_scc1 L_compute")
    a("s_cmp_eq_u32 s3, 4")
    a("s_cbranch_scc1 L_loader")
    if noaux: a("s_endpgm")
    a("s_setprio 3")
    a("s_sub_u32 s41, s3, 5")
    a("s_mul_i32 s40, s41, 20480")
    a("s_add_u32 s40, s40, %d" % L_AUX)
    a("s_lshl_b32 s42, s2, 1")
    a("s_add_u32 s42, s42, s41")
    a("s_cmp_lt_u32 s3, 7")
    a("s_cbranch_scc1 L_kc")
    a("s_add_u32 s42, s2, 512")
    a("s_cmp_lt_u32 s2, 128")
    a("s_cbranch_scc1 L_kc")
    a("s_bfe_u32 s42, s2, 0x20001")
    a("s_lshl_b32 s42, s42, 5")
    a("s_bfe_u32 s41, s2, 0x40003")
    a("s_lshl_b32 s41, s41, 1")
    a("s_add_u32 s42, s42, s41")
    a("s_and_b32 s41, s2, 1")
    a("s_add_u32 s42, s42, s41")
    if getattr(a, 'DBG', False): a.DBGST = (4, [], 99)
    emit_lnt(a, 42, 40, lprio)
    a.label("L_kc")
    if getattr(a, 'DBG', False): a.DBGST = (242, [], 99)
    emit_kc(a, 42, 40, kprio, gate=not getattr(a, 'KNOGATE', False), stage_rel=plan.rel.get(getattr(a, 'KSTAGE', 'W7'), 0), pause_rel=plan.rel.get(getattr(a, 'KPAUSE', 'none'), 0))
    a.label("L_loader")
    if getattr(a, 'DBG', False): a.DBGST = (4, [], 99)
    emit_loader(a, plan, T, ldprio, rot)
    a.label("L_compute")
    if getattr(a, 'DBG', False): a.DBGST = (4, [(0, 2), (1, 3), (2, 4), (3, 5), (4, 6), (5, 7), (6, 8), (7, 9), (10, 10), (11, 11), (12, 12), (13, 13), (14, 14), (15, 15)], 1)
    emit_compute(a, plan, cprio)
    a.label("L_end")
    a("s_endpgm")
    a.raw('.section .rodata,"a"')
    a.raw(".p2align 6")
    a.raw(kernel_desc(NAME, 256, 102))
    open(path, "w").write(a.text())
if __name__ == "__main__":
    build("s4.s")
    build("s4_prof.s", prof=True)
    build("s4_np.s", prof=True, nopoll=True, noaux=True)
    build("h1.s", P2MODE=1)
    build("h2.s", P2MODE=2)
```

```python
import math
KA_X, KA_ARE, KA_AIM, KA_BRE, KA_BIM, KA_CRE, KA_CIM, KA_LOGDT, KA_DSKIP, KA_BX, KA_W1, KA_B1, KA_W2, KA_OUT, KA_DBG, KA_WS = [8*i for i in range(16)]
P_X, P_ARE, P_AIM, P_BRE, P_BIM, P_CRE, P_CIM, P_LOGDT, P_DSKIP, P_BX, P_W1, P_B1, P_W2, P_OUT, P_DBG, P_WS = [8+2*i for i in range(16)]
S_WG, S_WAVE = 2, 3
WS_ACT = 0
WS_W2F = 6 << 20
WS_XN  = 8 << 20
WS_SF = (6 << 20) + 1966080 + 32768
SF_BYTES = 2048*8
WS_ST  = (8 << 20) + 640*4352
WS_STATS = (6 << 20) + 1966080
WS_FLAGS = (6 << 20) + 1966080 + 49152
ACT_BYTES = 2048*1536*2
W2F_BYTES = 1536*640*2
TRS = 4096 + 256
XN_BYTES = 640*TRS
ST_BYTES = 640*TRS
STATS_BYTES = 2048*16
FL_LNT = 0
FL_ACT = 4096
FL_S   = 16384
FL_W2F = 24576
FL_XT = 36864
FLAGS_BYTES = 45056
SPIN_MAX = 1 << 16
RO_OFF = 4160
LOG2E = 1.4426950408889634
INV2PI = 1.0/(2*math.pi)
ONES_BF = 0x3f803f80
L_W = 0
L_X = 49152
L_AUX = 98304
L_CTL = 159744
C_RDY = L_CTL
C_REL = L_CTL + 16
C_BAR = L_CTL + 32
C_TAG = L_CTL + 48
C_DUMMY = L_CTL + 64
C_CS = L_CTL + 512
LDS_BYTES = 163840
```

```python
from asmlib import *
from common import *
from sync import Sync
from loader import tile_maps, k_rotation, k_rotation2, x_src_offsets

G2_P = 61440
G2_PW = 3072
G2_PRS = 176

def emit_compute(a, plan, prio=1):
    vT0, vT1, vT2 = 1, 2, 3
    vTag, vZero, vL16, vPoll = 4, 6, 7, 8
    vRelA, vRv, vCtl, vBarA = 12, 13, 14, 15
    vXr, vWr = 16, 20
    vSt, vSo, vCw, vCr = 24, 25, 26, 27
    vB1 = 28
    vC1, vC2, vC3 = 32, 34, 36
    vOne = 36
    vBar = vPoll
    vAcc = 40
    WB = [112, 124, 136]
    vXF = [148, 164]
    vCs4 = [88, 92, 96]
    vP, vAp, vBp = 180, 192, 204
    sRb, sCb, sRb2, sCb2, sT, sT2, sM, sAo, sRdy, sFa, sFs, sFw = 40, 41, 42, 43, 44, 45, 46, 47, 48, 49, 50, 51
    sSy = 52
    sRet = 100
    sK = 56
    sAct, sFl, sStt, sW2F, sOut, sST, sXs = 60, 64, 68, 72, 76, 4, 12
    sA, sB, sK2, sK3 = 16, 20, 25, 10
    W = S_WAVE
    sy = Sync(a, sFl, P_DBG, vTag, vPoll, sSy, vZero)
    a.c("================ role: compute (gemm1 + gemm2) ================")
    a.stamp(0)
    if a.PROF: a("s_mov_b32 s88, 0")
    a("v_lshlrev_b32 v%d, 2, v0" % vT0)
    a("v_add_u32 v%d, %d, v%d" % (vRelA, C_DUMMY, vT0))
    a("v_mov_b32 v%d, 0" % vZero)
    if prio: a("s_setprio %d" % prio)
    a("s_lshl_b32 s%d, s%d, 2" % (sT, W))
    a("s_add_u32 s%d, s%d, %d" % (sT, sT, C_REL))
    a("v_mov_b32 v%d, s%d" % (vT1, sT))
    a("v_cmp_eq_u32 vcc, 0, v0")
    a("v_mov_b32 v%d, %d" % (vCtl, L_CTL))
    a("s_mov_b32 s%d, 0" % sRdy)
    a("v_cndmask_b32 v%d, v%d, v%d, vcc" % (vRelA, vRelA, vT1))
    tile_maps(a, sRb, sCb, None, None, sT)
    vXd = 100
    sXb, sXk, sXm = 16, 17, 18
    x_src_offsets(a, vXd, vT0, vT1, vT2)
    k_rotation(a, sM, sT2, sRb, sCb)
    a("s_lshl2_add_u32 s%d, s%d, s%d" % (sT, sRb, W))
    a("s_waitcnt lgkmcnt(0)")
    a("s_mul_i32 s%d, s%d, 40960" % (sXb, sT))
    a("s_lshl_b32 s%d, s%d, 12" % (sXm, W))
    a("s_lshl_b32 s%d, s%d, 7" % (sXk, sM))
    a.srd(sXs, P_X, 2048*640*2)
    def xdma(st, i):
        if i == 0:
            a("s_add_u32 m0, s%d, %d" % (sXm, L_X + (st % 3)*16384))
            a("s_add_u32 s%d, s%d, s%d" % (sXb+3, sXb, sXk))
        a.vmem("buffer_load_dwordx4 v%d, s[%d:%d], s%d offen offset:%d lds" % (vXd+i, sXs, sXs+3, sXb+3, i*1024), "X%d" % st)
        if i == 0:
            a("s_add_u32 s%d, s%d, 128" % (sXk, sXk)); a("s_cmp_ge_u32 s%d, 1280" % sXk); a("s_cselect_b32 s%d, 0, s%d" % (sXk, sXk))
    for st in range(min(3, plan.NX_OWN)):
        for i in range(4): xdma(st, i)
        if st == 0 and getattr(a, "ORDER", False): a("s_barrier")
    if getattr(a, "L2PF", False):
        a("s_lshr_b32 s%d, s%d, 3" % (sT, S_WG))
        a("s_lshl2_add_u32 s%d, s%d, s%d" % (sT, sT, W))
        a("s_mul_i32 s%d, s%d, 5120" % (sT2, sT))
        a("s_lshr_b32 s%d, s%d, 2" % (sM, sRb))
        a("s_mul_i32 s%d, s%d, %d" % (sM, sM, 512*1280))
        a("s_add_u32 s%d, s%d, s%d" % (sT2, sT2, sM))
        a("v_min_u32 v%d, 39, v0" % vT2)
        a("v_lshlrev_b32 v%d, 7, v%d" % (vT2, vT2))
        a.vmem("buffer_load_dword v%d, v%d, s[%d:%d], s%d offen" % (vPoll+2, vT2, sXs, sXs+3, sT2), "touch")
        a("v_min_u32 v%d, 59, v0" % vT2)
        a("v_mul_u32_u24 v%d, 5462, v%d" % (vT1, vT2))
        a("v_lshrrev_b32 v%d, 16, v%d" % (vT1, vT1))
        a("v_mul_u32_u24 v%d, 1536, v%d" % (vT1, vT1))
        a("v_lshl_add_u32 v%d, v%d, 7, v%d" % (vT2, vT2, vT1))
        a("s_mul_i32 s%d, s%d, %d" % (sT2, sT, 5*3072))
        a("s_and_b32 s%d, s%d, 1" % (sM, S_WG))
        a("s_mul_i32 s%d, s%d, 1536" % (sM, sM))
        a("s_add_u32 s%d, s%d, s%d" % (sT2, sT2, sM))
        a.srd(sOut, P_W1, 640*1536*2)
        a.vmem("buffer_load_dword v%d, v%d, s[%d:%d], s%d offen" % (vPoll+3, vT2, sOut, sOut+3, sT2), "touch")
    TS = getattr(a, "TOUCH", 0)
    if TS:
        a("v_lshlrev_b32 v%d, %d, v0" % (vT2, TS))
        a("s_lshl_b32 s%d, s%d, %d" % (sT, W, TS + 6))
        a("v_add_u32 v%d, s%d, v%d" % (vT2, sT, vT2))
        a("v_add_u32 v%d, %d, v%d" % (vT2, (1 << TS) - 128, vT2))
        a.srd(sOut, P_WS, 14 << 20)
        a.vmem("buffer_load_dword v%d, v%d, s[%d:%d], 0 offen sc1" % (vPoll+2, vT2, sOut, sOut+3), "touch")
        a.srd(sStt, P_OUT, 2048*640*2)
        a.vmem("buffer_load_dword v%d, v%d, s[%d:%d], 0 offen sc1" % (vPoll+3, vT2, sStt, sStt+3), "touch")
    if getattr(a, "NOREL", False): a("s_endpgm")
    ool = []
    st_ = {"peeked": False}
    vPk = 31
    def peek():
        st_["peeked"] = True
        a.lds("ds_read_b32 v%d, v%d" % (vPk, vCtl), "peek")
    def ready(name):
        if name not in plan.rdy:
            a.wait(vm=name); return
        k = plan.rdy[name]
        ok = a.newlabel("L_rok"); sp = a.newlabel("L_rspin")
        if "peek" in a.lg or st_["peeked"]:
            a.wait(lg="peek")
            a("v_readfirstlane_b32 s%d, v%d" % (sRdy, vPk))
            st_["peeked"] = False
        a("s_cmp_ge_u32 s%d, %d" % (sRdy, k))
        a("s_cbranch_scc0 %s" % sp)
        a.label(ok)
        ool.append((sp, ok, k))
    def release(name):
        a("v_mov_b32 v%d, %d" % (vRv, plan.rel[name]))
        a.lds("ds_write_b32 v%d, v%d" % (vRelA, vRv), "rel")
    def bar_arrive(ep):
        a("v_mov_b32 v%d, %d" % (vRv, ep))
        a.lds("ds_write_b32 v%d, v%d offset:16" % (vRelA, vRv), "rel")
    def bar_wait(ep, off=32):
        sp = a.newlabel("L_bspin"); ok = a.newlabel("L_bok")
        a("s_mov_b32 s%d, 0" % (sSy+2))
        a.label(sp)
        a("ds_read_b128 %s, v%d offset:%d" % (v(vBar,4), vCtl, off))
        a("s_add_u32 s%d, s%d, 1" % (sSy+2, sSy+2))
        a("s_cmp_gt_u32 s%d, 0x%x" % (sSy+2, SPIN_MAX*16))
        a("s_waitcnt lgkmcnt(0)")
        a("v_min3_u32 v%d, v%d, v%d, v%d" % (vBar, vBar, vBar+1, vBar+2))
        a("v_min_u32 v%d, v%d, v%d" % (vBar, vBar, vBar+3))
        a("s_cbranch_scc1 %s" % ok)
        a("v_cmp_gt_u32 vcc, %d, v%d" % (ep, vBar))
        a("s_cbranch_vccnz %s" % sp)
        a.label(ok)
        a.lg = []
    def bar_peek():
        a.lds("ds_read_b128 %s, v%d offset:32" % (v(vBar,4), vCtl), "bpk")
    def bar_check(ep):
        ok = a.newlabel("L_bc")
        a.wait(lg="bpk")
        a("v_min3_u32 v%d, v%d, v%d, v%d" % (vBar, vBar, vBar+1, vBar+2))
        a("v_min_u32 v%d, v%d, v%d" % (vBar, vBar, vBar+3))
        a("v_cmp_gt_u32 vcc, %d, v%d" % (ep, vBar))
        a("s_cbranch_vccz %s" % ok)
        keep = list(a.lg)
        bar_wait(ep)
        a.lg = keep
        a.label(ok)
    tile_maps(a, None, None, sRb2, sCb2, sT)
    a("v_lshlrev_b32 v%d, 4, v0" % vL16)
    a("v_and_b32 v%d, 31, v0" % vT0)
    a("v_lshrrev_b32 v%d, 5, v0" % vT1)
    a("v_lshlrev_b32 v%d, 1, v%d" % (vT2, vT0))
    a("s_mul_i32 s%d, s%d, 192" % (sT, sCb))
    a("v_add_u32 v%d, s%d, v%d" % (vT2, sT, vT2))
    for p in range(3): a.vmem("global_load_ushort v%d, v%d, s[%d:%d] offset:%d" % (vB1+p, vT2, P_B1, P_B1+1, 64*p), "b1")
    a("s_lshl_b32 s%d, s%d, 12" % (sT, W))
    a("s_add_u32 s%d, s%d, %d" % (sT, sT, L_X))
    a("v_bfe_u32 v%d, v0, 1, 3" % vT2)
    a("v_xor_b32 v%d, v%d, v%d" % (vT2, vT2, vT1))
    a("v_lshlrev_b32 v%d, 4, v%d" % (vT2, vT2))
    a("v_lshl_add_u32 v%d, v%d, 7, v%d" % (vT2, vT0, vT2))
    a("v_add_u32 v%d, s%d, v%d" % (vT2, sT, vT2))
    for jl in range(4):
        a("s_add_u32 s%d, s%d, %d" % (sT2, W, jl))
        a("s_and_b32 s%d, s%d, 3" % (sT2, sT2))
        a("s_lshl_b32 s%d, s%d, 5" % (sT2, sT2))
        a("v_xor_b32 v%d, s%d, v%d" % (vXr+jl, sT2, vT2))
    a("v_bfe_u32 v%d, v0, 2, 2" % vT2)
    a("v_lshl_add_u32 v%d, v%d, 3, v%d" % (vT2, vT1, vT2))
    a("v_mul_u32_u24 v%d, 192, v%d" % (vT2, vT2))
    a("v_bfe_u32 v%d, v0, 4, 1" % vSt)
    a("v_lshl_add_u32 v%d, v%d, 5, v%d" % (vT2, vSt, vT2))
    a("v_and_b32 v%d, 3, v0" % vSo)
    a("v_lshl_add_u32 v%d, v%d, 3, v%d" % (vT2, vSo, vT2))
    for jl in range(4):
        a("s_add_u32 s%d, s%d, %d" % (sT2, W, jl))
        a("s_and_b32 s%d, s%d, 3" % (sT2, sT2))
        a("s_mul_i32 s%d, s%d, %d" % (sT2, sT2, 16*192))
        a("v_add_u32 v%d, s%d, v%d" % (vWr+jl, sT2, vT2))
    for r in (vOne, vOne+1): a("v_mov_b32 v%d, 0x%x" % (r, ONES_BF))
    a("v_lshlrev_b32 v%d, 4, v%d" % (vCw, vT1))
    a("v_lshl_add_u32 v%d, v%d, 2, v%d" % (vCw, vSt, vCw))
    a("v_bfe_u32 v%d, v0, 2, 2" % vT2)
    a("v_add_u32 v%d, v%d, v%d" % (vCw, vCw, vT2))
    a("v_lshlrev_b32 v%d, 8, v%d" % (vCw, vCw))
    a("v_lshl_add_u32 v%d, v%d, 3, v%d" % (vCw, vSo, vCw))
    a("s_lshl_b32 s%d, s%d, 6" % (sT, W))
    a("v_add_u32 v%d, s%d, v%d" % (vCw, sT, vCw))
    a("s_mul_i32 s%d, s%d, 13108" % (sT, S_WG))
    a("s_lshr_b32 s%d, s%d, 16" % (sT, sT))
    a("s_mul_i32 s%d, s%d, 5" % (sT2, sT))
    a("s_sub_u32 s%d, s%d, s%d" % (sT2, S_WG, sT2))
    a("s_cmp_ge_u32 s%d, 240" % S_WG)
    a("s_cselect_b32 s%d, 5, s%d" % (sT2, sT2))
    a("s_cselect_b32 s%d, 0, s%d" % (sT, sT))
    a("s_lshl2_add_u32 s%d, s%d, s%d" % (sM, sT2, W))
    a("s_mul_i32 s%d, s%d, %d" % (sM, sM, 2*48*1024))
    a("s_lshl_b32 s%d, s%d, 10" % (sAo, sT))
    a("s_add_u32 s%d, s%d, s%d" % (sM, sM, sAo))
    a("s_mul_i32 s%d, s%d, 48" % (sFw, sT2))
    a("s_add_u32 s%d, s%d, s%d" % (sFw, sFw, sT))
    a("s_lshl2_add_u32 s%d, s%d, s%d" % (sFw, sFw, W))
    a("s_lshl_b32 s%d, s%d, 3" % (sFw, sFw))
    a("s_add_u32 s%d, s%d, %d" % (sFw, sFw, FL_W2F))
    a.srd_off(sW2F, P_WS, WS_W2F, W2F_BYTES)
    a.srd_off(sFl, P_WS, WS_FLAGS, FLAGS_BYTES)
    a.srd_off(sAct, P_WS, WS_ACT, ACT_BYTES)
    a.srd_off(sStt, P_WS, WS_STATS, STATS_BYTES)
    a.srd_off(sST, P_WS, WS_ST, ST_BYTES)
    a("v_mul_u32_u24 v%d, %d, v%d" % (vSt, 48*64, vSt))
    a("v_and_b32 v%d, 15, v0" % vT2)
    a("v_add_u32 v%d, v%d, v%d" % (vSt, vSt, vT2))
    a("v_lshl_add_u32 v%d, v%d, 4, v%d" % (vSt, vT1, vSt))
    a("v_lshlrev_b32 v%d, 4, v%d" % (vSt, vSt))
    a("s_lshl2_add_u32 s%d, s%d, s%d" % (sT2, sRb, W))
    a("s_lshl_b32 s%d, s%d, 9" % (sT, sT2))
    a("v_lshlrev_b32 v%d, 4, v%d" % (vSo, vT0))
    a("v_add_u32 v%d, s%d, v%d" % (vSo, sT, vSo))
    a("s_lshr_b32 s%d, s%d, 1" % (sT, sT2))
    a("s_lshl_b32 s%d, s%d, 5" % (sFa, sT))
    a("s_and_b32 s%d, s%d, 1" % (sT, sT2))
    a("s_add_u32 s%d, s%d, s%d" % (sFa, sFa, sT))
    a("s_lshl_b32 s%d, s%d, 1" % (sT, sCb))
    a("s_add_u32 s%d, s%d, s%d" % (sFa, sFa, sT))
    a("s_lshl_b32 s%d, s%d, 3" % (sFa, sFa))
    a("s_add_u32 s%d, s%d, %d" % (sFa, sFa, FL_ACT))
    a("s_mul_i32 s%d, s%d, 96" % (sT2, sT2))
    a("s_mul_i32 s%d, s%d, 3" % (sAo, sCb))
    a("s_add_u32 s%d, s%d, s%d" % (sAo, sAo, sT2))
    a("s_lshl_b32 s%d, s%d, 10" % (sAo, sAo))
    a("s_mov_b32 s%d, %s" % (sK, fhex(LOG2E))); a("s_mov_b32 s%d, %s" % (sK+1, fhex(LOG2E)))
    a("s_mov_b32 s%d, 2.0" % (sK+2)); a("s_mov_b32 s%d, 2.0" % (sK+3))
    for i in range(16): a("v_mov_b32 v%d, 0" % (vAp+i))
    a("v_lshlrev_b32 v%d, 2, v%d" % (vCr, vT0))
    a("v_add_u32 v%d, %d, v%d" % (vCr, C_CS, vCr))
    vXt, vXs_ = 216, 220
    vIt = [224, 240]
    sXt, sFx = 55, 26
    a("v_bfe_u32 v%d, v0, 1, 1" % vXt)
    a("s_lshl_b32 s%d, s%d, 1" % (sT, W))
    a("v_add_u32 v%d, s%d, v%d" % (vXt, sT, vXt))
    a("v_bfe_u32 v%d, v0, 3, 1" % vT2)
    a("v_xor_b32 v%d, v%d, v%d" % (vXt, vXt, vT2))
    a("v_lshlrev_b32 v%d, 4, v%d" % (vXt, vXt))
    a("v_and_b32 v%d, 1, v0" % vT2)
    a("v_lshl_add_u32 v%d, v%d, 3, v%d" % (vXt, vT2, vXt))
    a("v_bfe_u32 v%d, v0, 2, 2" % vT2)
    a("v_lshl_add_u32 v%d, v%d, 7, v%d" % (vXt, vT2, vXt))
    a("v_mul_u32_u24 v%d, %d, v%d" % (vXs_, 4*TRS, vT2))
    a("v_lshrrev_b32 v%d, 4, v0" % vT2)
    a("v_lshl_add_u32 v%d, v%d, 12, v%d" % (vXt, vT2, vXt))
    a("v_add_u32 v%d, %d, v%d" % (vXt, L_X + 16384, vXt))
    for k in range(1, 4): a("v_xor_b32 v%d, %d, v%d" % (vXt+k, 32*k, vXt))
    a("v_lshl_add_u32 v%d, v%d, 6, v%d" % (vXs_, vT2, vXs_))
    a("v_and_b32 v%d, 3, v0" % vT2)
    a("v_lshl_add_u32 v%d, v%d, 4, v%d" % (vXs_, vT2, vXs_))
    k_rotation(a, sT, sT2, sRb, sCb)
    a("s_add_u32 s%d, s%d, 1" % (sT, sT))
    a("s_cmp_ge_u32 s%d, 10" % sT)
    a("s_cselect_b32 s%d, 0, s%d" % (sT, sT))
    a("s_cmp_ge_u32 s%d, 10" % sCb)
    a("s_cselect_b32 s%d, 10, s%d" % (sT, sT))
    a("s_lshl2_add_u32 s%d, s%d, s%d" % (sT, sT, W))
    a("s_mul_i32 s%d, s%d, %d" % (sXt, sT, 16*TRS))
    a("s_lshl_b32 s%d, s%d, 8" % (sT2, sRb))
    a("s_add_u32 s%d, s%d, s%d" % (sXt, sXt, sT2))
    a("s_lshl4_add_u32 s%d, s%d, s%d" % (sFx, sT, sRb))
    a("s_lshl_b32 s%d, s%d, 3" % (sFx, sFx))
    a("s_add_u32 s%d, s%d, %d" % (sFx, sFx, FL_XT))
    vCh = 208
    def xreads(st):
        return [("xf%d_%d" % (st, jl), "ds_read_b128 %s, v%d offset:%d" % (v(vXF[st & 1]+4*jl,4), vXr+jl, (st % 3)*16384)) for jl in range(4)]
    def wreads(g_):
        st, jl = g_ // 4, g_ % 4
        buf = WB[g_ % 3]
        return [("wf%d" % g_, "ds_read_b64_tr_b16 %s, v%d offset:%d" % (v(buf+4*p+2*q,2), vWr+jl, L_W + (st % 4)*12288 + q*4*192 + p*64)) for p in range(3) for q in range(2)]
    def w2st(k):
        a.vmem("buffer_store_dwordx4 %s, v%d, s[%d:%d], s%d offen sc1" % (v(vCh+4*k,4), vL16, sW2F, sW2F+3, sM), "chw")
        if k == 0: a("s_add_u32 s%d, s%d, %d" % (sM, sM, 48*1024))
    def xtst(j):
        a.vmem("buffer_store_dwordx4 %s, v%d, s[%d:%d], s%d offen sc1" % (v(vIt[0]+4*j,4), vXs_, sOut, sOut+3, sXt), "chs")
        if j < 3: a("s_add_u32 s%d, s%d, %d" % (sXt, sXt, TRS))
    SW, SX, SG = getattr(a, "CH_W", 0), getattr(a, "CH_X", 2), getattr(a, "CH_LAG", 3)
    a.srd_off(sOut, P_WS, WS_XN, XN_BYTES)
    ready("X0")
    a.stamp(10)
    for tag, ins in xreads(0): a.lds(ins, tag)
    ready("W0")
    a.stamp(11)
    for tag, ins in wreads(0) + wreads(1): a.lds(ins, tag)
    def xt_chore():
        bar_check(1)
        for p in range(4):
            for q in range(2):
                a.lds("ds_read_b64_tr_b16 %s, v%d offset:%d" % (v(vIt[0]+4*p+2*q,2), vXt + 2*(p & 1) + q, (8*p + 4*q)*128), "xt")
        bar_arrive(2)
    dpp = []
    for stage_, (masks, perm, x_) in enumerate((((0x55555555, 0xaaaaaaaa), "[1,0,3,2]", 1), ((0x33333333, 0xcccccccc), "[2,3,0,1]", 2))):
        src, dst = vIt[stage_], vIt[1-stage_]
        for mi, m in enumerate(masks):
            for j in range(4):
                if ((j & x_) != 0) != (mi == 1): continue
                dpp.append(["s_mov_b32 vcc_lo, 0x%x" % m, "s_mov_b32 vcc_hi, 0x%x" % m] +
                           ["v_cndmask_b32_dpp v%d, v%d, v%d, vcc quad_perm:%s row_mask:0xf bank_mask:0xf" % (dst+4*j+r, src+4*(j ^ x_)+r, src+4*j+r, perm) for r in range(4)])
    def c_chore():
        ready("C")
        for k in range(2):
            for q in range(2):
                a.lds("ds_read_b64_tr_b16 %s, v%d offset:%d" % (v(vCh+4*k+2*q,2), vCw, L_W + 3*12288 + q*8*256 + k*32), "ch")
        release("C")
        a("s_mul_i32 s%d, s%d, 384" % (sT2, W))
        a("v_add_u32 v%d, s%d, v%d" % (vCw, sT2, vCr))
    a.stamp(1)
    def emit(t):
        if callable(t): t()
        elif isinstance(t, tuple): a.lds(t[1], t[0])
        else: a(t)
    def step(g_, gaps):
        st, jl = g_ // 4, g_ % 4
        buf = WB[g_ % 3]
        xf = vXF[st & 1] + 4*jl
        a.wait(lg=["wf%d" % g_, "xf%d_%d" % (st, jl)])
        rd = wreads(g_ + 2) if g_ + 2 < 40 else []
        for p in range(3):
            acc = vAcc + 16*p
            HK = getattr(a, "HACK", 0)
            if HK == 3:
                for hh in range(2): a("v_mfma_f32_16x16x32_bf16 %s, %s, %s, %s" % (v(acc+4*hh+8*(jl&1),4), v(buf+4*p,4), v(xf,4), "0" if g_ < 2 else v(acc+4*hh+8*(jl&1),4)))
            elif HK != 1: a("v_mfma_f32_32x32x16_bf16 %s, %s, %s, %s" % (v(acc,16), v(buf+4*p,4), v(xf,4), "0" if g_ == 0 else v(acc,16)))
            for tag, ins in rd[2*p:2*p+2]: a.lds(ins, tag)
            if HK == 0 and ((jl >= 2) if st < 9 else (jl < 2)):
                a("v_mfma_f32_4x4x4_16b_bf16 %s, %s, %s, %s" % (v(vCs4[p],4), v(vOne,2), v(buf+4*p+2*(jl & 1),2), "0" if g_ == 2 else v(vCs4[p],4)))
            for t in gaps[p]: emit(t)
    statld = "buffer_load_dwordx4 %s, v%d, s[%d:%d], 0 offen sc1" % (v(vPoll,4), vSo, sStt, sStt+3)
    for st in range(10):
        gp = [[] for _ in range(12)]
        if st < 9:
            xr = xreads(st+1)
            gp[1] += [lambda: ready("X%d" % (st+1)), xr[0]]
            if plan.rdy["W%d" % (st+1)] > plan.rdy.get("X%d" % (st+1), 0): gp[3] += [peek]
            if st < 8 and ("X%d" % (st+2)) in plan.rdy: gp[10] += [peek]
            gp[2] += [xr[1]]; gp[3] += [xr[2]]; gp[4] += [xr[3]]
            if plan.NX_OWN < 10 or st + 1 >= 7: gp[4] += [lambda: release("X%d" % (st+1))]
        gp[5] += [lambda: release("W%d" % st)]
        if st == 1:
            gp[0].append(lambda: a.wait(lg="xt"))
            for gi in (0, 1, 4, 4, 8, 9, 9, 10): gp[gi] += dpp.pop(0)
        if st < 9 and plan.rdy["W%d" % (st+1)] > plan.rdy.get("X%d" % (st+1), 0): gp[5] += [lambda: ready("W%d" % (st+1))]
        if plan.NX_OWN == 10:
            if st == 0:
                gp[0].append(lambda: a.wait(lg="xf0_3"))
                for i in range(4): gp[(0, 3, 6, 7)[i]].append(lambda i=i: xdma(3, i))
                gp[1].append(lambda: bar_arrive(1))
                gp[2] += [c_chore]
                gp[6] += [bar_peek]
                gp[8] += [xt_chore]
            if st == 1:
                gp[0] += [bar_peek]
                gp[2].append(lambda: bar_check(2))
                for i in range(4): gp[(2, 3, 5, 6)[i]].append(lambda i=i: xdma(4, i))
            if st >= 1 and st + 4 < 10:
                gp[7].append(lambda: a.wait(lg="xf%d_3" % (st+1)))
                for i in range(4): gp[(7, 8, 10, 11)[i]].append(lambda i=i: xdma(st+4, i))
        if st == SW:
            gp[6].append(lambda: w2st(0)); gp[9].append(lambda: w2st(1))
        if st == SX:
            for j in range(4): gp[(0, 7, 8, 11)[j]].append(lambda j=j: xtst(j))
        if st == 1: gp[7].append(sy.tag_load)
        if st == max(SW, 0) + SG:
            def sigw():
                sy.tag_check()
                a.wait(vm="chw")
                sy.signal("s%d" % sFw, 0)
            gp[0].insert(0, sigw)
        if st == min(max(SX, 0) + SG, 9):
            def sigx():
                a.wait(vm="chs")
                sy.signal("s%d" % sFx, 0)
                a.srd(sOut, P_OUT, 2048*640*2)
            gp[1 if st < 9 else 11].insert(0, sigx)
        if st == 7: gp[8].append(lambda: a.vmem(statld, "stat"))
        if st == 9:
            def statprep():
                sy.granule_check(statld, "stat", vPoll+2)
                a("v_mov_b32 v%d, v%d" % (vBp, vPoll))
                a("v_mov_b32 v%d, v%d" % (vBp+1, vPoll+1))
            gp[1].append(statprep)
            gp[6] += ["s_nop 1", "v_and_b32 v%d, 0xffff0000, v%d" % (vC3, vBp+1), "v_rcp_f32 v%d, v%d" % (vC3, vC3)]
            gp[7] += ["v_permlane32_swap_b32 v%d, v%d" % (vCs4[p], vCs4[p]+1) for p in range(3)]
            gp[7] += ["v_add_f32 v%d, v%d, v%d" % (vCs4[p], vCs4[p], vCs4[p]+1) for p in range(3)]
            gp[7] += [("cw", "ds_write_b32 v%d, v%d offset:%d" % (vCw, vCs4[p], p*128)) for p in range(3)]
            gp[7] += [lambda: bar_arrive(3)]
            gp[9] += [lambda: bar_wait(3)]
            gp[9] += [("cr", "ds_read_b32 v%d, v%d offset:%d" % (vP+w*3+p, vCr, w*384 + p*128)) for w in range(4) for p in range(3)]
        if getattr(a, 'STST', False):
            if st in (1, 2, 3, 4, 6, 8): a.stamp({1: 10, 2: 11, 3: 12, 4: 13, 6: 14, 8: 15}[st])
        else:
            if st in (0, 4): a.stamp({0: 12, 4: 13}[st])
            if st == 4: a.cstamp(14)
        for j in range(4): step(4*st+j, gp[3*j:3*j+3])
    a.stamp(2)
    if not getattr(a, 'STST', False): a.cstamp(15)
    if a.PROF: a("s_mov_b32 s89, s88")
    a("v_mul_f32 v%d, %s, v%d" % (vC1, fhex(LOG2E), vC3))
    a("v_mul_f32 v%d, -2.0, v%d" % (vC2, vC3))
    a("s_mov_b32 exec_hi, 0")
    for p in range(3): a("v_mov_b32 v%d, v%d" % (vAp+4*p+1, vB1+p))
    a.wait(lg="cr")
    for p in range(3):
        a("v_add_f32 v%d, v%d, v%d" % (vP+p, vP+p, vP+3+p))
        a("v_add_f32 v%d, v%d, v%d" % (vP+6+p, vP+6+p, vP+9+p))
    for p in range(3): a("v_add_f32 v%d, v%d, v%d" % (vP+p, vP+p, vP+6+p))
    for p in range(3): a("v_cvt_pk_bf16_f32 v%d, v%d, v%d" % (vP+3+p, vP+p, vP+p))
    for p in range(3): a("v_and_b32 v%d, 0xffff0000, v%d" % (vP+3+p, vP+3+p))
    for p in range(3): a("v_sub_f32 v%d, v%d, v%d" % (vP+3+p, vP+p, vP+3+p))
    for p in range(3): a("v_cvt_pk_bf16_f32 v%d, v%d, v%d" % (vAp+4*p, vP+p, vP+3+p))
    a("s_mov_b32 exec_hi, -1")
    a("s_nop 0")
    for p in range(3):
        acc = vAcc + 16*p
        a("v_mfma_f32_32x32x16_bf16 %s, %s, %s, %s" % (v(acc,16), v(vAp+4*p,4), v(vBp,4), v(acc,16)))
    vRW = 16; vRR, vPW, vPR, vXO, vSO = 19, 20, 21, 22, 23
    vFr, vPA = vBarA, vCr
    a("v_and_b32 v%d, 15, v0" % vT0)
    a("v_lshrrev_b32 v%d, 4, v0" % vT1)
    a("s_lshl2_add_u32 s%d, s%d, s%d" % (sT, sRb2, W))
    a("s_mul_i32 s%d, s%d, %d" % (sT2, sT, 16*1280))
    a("s_mul_i32 s%d, s%d, 160" % (sM, sCb2))
    a("s_add_u32 s%d, s%d, s%d" % (sFs, sT2, sM))
    a("v_lshrrev_b32 v%d, 2, v0" % vSO)
    a("v_lshlrev_b32 v%d, 7, v%d" % (vSO, vSO))
    a("v_and_b32 v%d, 3, v0" % vXO)
    a("v_lshl_add_u32 v%d, v%d, 3, v%d" % (vSO, vXO, vSO))
    a("s_lshl_b32 s%d, s%d, 5" % (sM, W))
    a("s_add_u32 s%d, s%d, %d" % (sM, sM, 20*4096))
    a("v_add_u32 v%d, s%d, v%d" % (vSO, sM, vSO))
    a("s_lshl_b32 s%d, s%d, 10" % (sT, W))
    a("v_add_u32 v%d, s%d, v%d" % (vFr, sT, vL16))
    vE = 112; vO = 144
    vFr2 = vCr
    a("v_add_u32 v%d, 65536, v%d" % (vFr2, vFr))
    early = [r for r in range(208, 256, 4)] + [r for r in range(168, 208, 4)] + [r for r in range(104, 144, 4)]
    latef = [r for r in range(144, 168, 4)]
    free = early
    loc = {}
    def pull(name):
        out = []
        for j, row in enumerate(plan.rowsof[name]):
            r = free.pop(0); loc[(name, j)] = r
            base, off = (vFr, row*4096) if row < 16 else (vFr2, (row-16)*4096)
            out.append((name, "ds_read_b128 %s, v%d offset:%d" % (v(r,4), base, off)))
        return out
    def pull_now(nm):
        ready(nm)
        for tag, ins in pull(nm): a.lds(ins, tag)
        release(nm)
    NEP = getattr(a, "NEP", 4)
    for c in range(6):
        A = vAcc + 8*c; E = vE + 16*(c & 1); O = vO + 4*c
        for k in range(4): a("v_pk_mul_f32 %s, %s, %s op_sel_hi:[1,0]" % (v(E+2*k,2), v(A+2*k,2), v(vC1,2)))
        for k in range(8): a("v_exp_f32 v%d, v%d" % (E+k, E+k))
        for k in range(4): a("v_pk_add_f32 %s, %s, s[%d:%d]" % (v(E+8+2*k,2), v(E+2*k,2), sK+2, sK+3))
        for k in range(4): a("v_pk_fma_f32 %s, %s, %s, s[%d:%d]" % (v(E+2*k,2), v(E+2*k,2), v(E+8+2*k,2), sK+2, sK+3))
        for k in range(8): a("v_rcp_f32 v%d, v%d" % (E+k, E+k))
        for k in range(4): a("v_pk_fma_f32 %s, %s, %s, %s op_sel_hi:[1,0,0]" % (v(E+2*k,2), v(E+2*k,2), v(vC2,2), v(vC3,2)))
        for k in range(4): a("v_pk_mul_f32 %s, %s, %s" % (v(E+2*k,2), v(E+2*k,2), v(A+2*k,2)))
        for k in range(4): a("v_cvt_pk_bf16_f32 v%d, v%d, v%d" % (O+k, E+2*k, E+2*k+1))
        SB = getattr(a, "STB", 1)
        if c == 5: bar_arrive(4)
        if (c + 1) % SB == 0:
            for c2 in range(c + 1 - SB, c + 1):
                a.vmem("buffer_store_dwordx4 %s, v%d, s[%d:%d], s%d offen offset:%d sc1" % (v(vO+4*c2,4), vSt, sAct, sAct+3, sAo, c2*512), "st")
    a.stamp(3)
    for i in range(1, 4):
        a("s_add_u32 s%d, s%d, %d" % (sT, W, i))
        a("s_and_b32 s%d, s%d, 3" % (sT, sT))
        a("s_mul_i32 s%d, s%d, 15360" % (sT, sT))
        a("s_add_u32 s%d, s%d, %d" % (sT, sT, (i-1)*5120))
        a("v_add_u32 v%d, s%d, v%d" % (vRW+i-1, sT, vL16))
    a("s_mul_i32 s%d, s%d, 15360" % (sT, W))
    a("v_add_u32 v%d, s%d, v%d" % (vRR, sT, vL16))
    a("s_mul_i32 s%d, s%d, %d" % (sT, W, G2_PW))
    a("s_add_u32 s%d, s%d, %d" % (sT, sT, G2_P))
    a("v_mul_u32_u24 v%d, %d, v%d" % (vPW, G2_PRS, vT0))
    a("v_lshl_add_u32 v%d, v%d, 3, v%d" % (vPW, vT1, vPW))
    a("v_add_u32 v%d, s%d, v%d" % (vPW, sT, vPW))
    a("s_mov_b32 s%d, s%d" % (sFw, sT))
    a("v_mov_b32 v%d, v%d" % (vT1, vFr2))
    vFr2 = vT1
    vAcc2 = 24
    vZero2 = vPoll + 3
    k_rotation2(a, sK2, sT2, sRb2, sCb2)
    a("s_mul_i32 s%d, s%d, %d" % (sT2, W, 12*1024))
    for i in range(4):
        a("s_add_u32 s%d, s%d, %d" % (sT, W, i))
        a("s_and_b32 s%d, s%d, 3" % (sT, sT))
        a("s_lshl2_add_u32 s%d, s%d, s%d" % (sT, sRb2, sT))
        a("s_mul_i32 s%d, s%d, %d" % (sT, sT, 48*1024))
        a("s_add_u32 s%d, s%d, s%d" % (sA+i, sT, sT2))
    a("s_mul_i32 s%d, s%d, %d" % (sT, sCb2, 5*48*1024))
    a("s_add_u32 s%d, s%d, s%d" % (sB, sT, sT2))
    for n in range(1, 5): a("s_add_u32 s%d, s%d, %d" % (sB+n, sB, n*48*1024))
    vKo = [vT0, vZero2]
    def koff(s_, reg):
        a("s_add_u32 s%d, s%d, %d" % (sK3, sK2, s_*1024))
        a("s_sub_u32 s%d, s%d, %d" % (sK3+1, sK3, 12*1024))
        a("s_cmp_ge_u32 s%d, %d" % (sK3, 12*1024))
        a("s_cselect_b32 s%d, s%d, s%d" % (sK3, sK3+1, sK3))
        a("v_add_u32 v%d, s%d, v%d" % (reg, sK3, vL16))
    a.wait(vm="all")
    sy.signal("s%d" % sFa, 0)
    a.stamp(4)
    pull_now("B0")
    free += latef
    if getattr(a, "BLATE", False): ready("ACT")
    for s_ in plan.regB:
        koff(s_, vKo[0])
        for n in range(5):
            r = free.pop(0); loc[("B%d" % s_, n)] = r
            a.vmem("buffer_load_dwordx4 %s, v%d, s[%d:%d], s%d offen sc1" % (v(r,4), vKo[0], sW2F, sW2F+3, sB+n), "B%d" % s_)
    ready("ACT")
    a.stamp(5)
    G = [(s_, i) for s_ in range(12) for i in range(9 if s_ in plan.lateB else 4)]
    def issue_a():
        s_, i = G.pop(0)
        if i == 0: koff(s_, vKo[0])
        r = free.pop(0)
        if i >= 4:
            loc[("B%d" % s_, i-4)] = r
            a.vmem("buffer_load_dwordx4 %s, v%d, s[%d:%d], s%d offen sc1" % (v(r,4), vKo[0], sW2F, sW2F+3, sB+i-4), "B%d" % s_)
            return
        loc[("A%d" % s_, i)] = r
        a.vmem("buffer_load_dwordx4 %s, v%d, s[%d:%d], s%d offen sc1" % (v(r,4), vKo[0], sAct, sAct+3, sA+i), "A%d" % s_)
    while G and len(free) > 5: issue_a()
    vX = None
    def peek2():
        nonlocal vPk
        vPk = vZero2
        peek()
    for s_ in range(12):
        side = []
        nb = s_ + 1 < 12 and (s_+1) in plan.ringB
        pl = pull("B%d" % (s_+1)) if nb else []
        keep = 5 if (s_ + 2 < 12 and (s_+2) in plan.ringB and s_ == 0 and False) else 0
        keep = {9: 5}.get(s_, 0)
        na = max(0, min(len(G), len(free) - keep))
        if nb: side.append(peek2)
        side += [issue_a]*min(na, 3); na -= min(na, 3)
        if nb:
            side.append(lambda: ready("B%d" % (s_+1)))
            side += pl
            side.append(lambda: release("B%d" % (s_+1)))
        side += [issue_a]*na
        if s_ == 9:
            vX = [free.pop(-1) for _ in range(3)]
            vQ = [free.pop(-1) for _ in range(2)]
            def xld(k):
                a("v_add_u32 v%d, %d, v0" % (vT2, 64*k))
                a("v_mul_u32_u24 v%d, 6554, v%d" % (vPR, vT2))
                a("v_lshrrev_b32 v%d, 16, v%d" % (vPR, vPR))
                a("v_lshlrev_b32 v%d, 4, v%d" % (vT2, vT2))
                a("v_mad_u32_u24 v%d, v%d, %s, v%d" % (vQ[1]+k, vPR, "16", vT2))
                a("v_mul_u32_u24 v%d, %d, v%d" % (vPR, 1280-160, vPR))
                a("v_add_u32 v%d, v%d, v%d" % (vQ[0]+k, vPR, vT2))
                a("v_add_u32 v%d, s%d, v%d" % (vQ[1]+k, sFw, vQ[1]+k))
                a.vmem("buffer_load_dwordx4 %s, v%d, s[%d:%d], s%d offen" % (v(vX[k],4), vQ[0]+k, sXs, sXs+3, sFs), "x")
            for k in range(3): side.append(lambda k=k: xld(k))
        if s_ == 11:
            side.append(lambda: bar_arrive(5))
        a.wait(lg="B%d" % s_, vm=["A%d" % s_, "B%d" % s_])
        if getattr(a, "P2ST", False) and s_ in (0, 2, 4, 6, 8, 10): a.stamp(10 + s_//2)
        order = [1, 2, 3, 0] if s_ == 11 else [0, 1, 2, 3]
        for i in order:
            for n in range(5):
                acc = vAcc2 + (i*5+n)*4
                a("v_mfma_f32_16x16x32_bf16 %s, %s, %s, %s" % (v(acc,4), v(loc[("B%d" % s_,n)],4), v(loc[("A%d" % s_,i)],4), "0" if s_ == 0 else v(acc,4)))
                if side: emit(side.pop(0))
        assert not side
        for i in range(4): free.append(loc[("A%d" % s_, i)])
        for n in range(5): free.append(loc[("B%d" % s_, n)])
    assert not G
    a.stamp(6)
    bar_wait(5)
    for i in range(1, 4):
        for n in range(5):
            a.lds("ds_write_b128 v%d, %s offset:%d" % (vRW+i-1, v(vAcc2+(i*5+n)*4,4), n*1024), "rw")
    bar_arrive(6)
    vXu = [free.pop(0) for _ in range(6)]
    a.wait(vm="x")
    for k in range(3):
        for j in range(4):
            u = vXu[2*k + j//2] + 2*(j % 2)
            a("v_lshlrev_b32 v%d, 16, v%d" % (u, vX[k]+j))
            a("v_and_b32 v%d, 0xffff0000, v%d" % (u+1, vX[k]+j))
    vS = [free.pop(0) for _ in range(3)]
    ready("S")
    for n in range(5):
        a.lds("ds_read_b64_tr_b16 %s, v%d offset:%d" % (v(vS[n//2] + 2*(n%2),2), vSO, n*16*128), "s")
    bar_wait(6)
    vR = [free.pop(0) for _ in range(15)]
    for n in range(5):
        for sl in range(3):
            a.lds("ds_read_b128 %s, v%d offset:%d" % (v(vR[n*3+sl],4), vRR, sl*5120 + n*1024), "rr%d" % n)
    vE = [vAcc2 + 20 + 4*i for i in range(8)]
    vU = [vAcc2 + 52 + 4*i for i in range(5)]
    for n in range(5):
        S = vS[n//2] + 2*(n%2); U = vU[n]
        a("v_lshlrev_b32 v%d, 16, v%d" % (U+0, S))
        a("v_and_b32 v%d, 0xffff0000, v%d" % (U+1, S))
        a("v_lshlrev_b32 v%d, 16, v%d" % (U+2, S+1))
        a("v_and_b32 v%d, 0xffff0000, v%d" % (U+3, S+1))
    for n in range(5):
        a.wait(lg="rr%d" % n)
        acc = vAcc2 + n*4; E = vE[n]; U = vU[n]
        for h in range(2):
            a("v_pk_add_f32 %s, %s, %s" % (v(vR[n*3]+2*h,2), v(vR[n*3]+2*h,2), v(vR[n*3+1]+2*h,2)))
            a("v_pk_add_f32 %s, %s, %s" % (v(acc+2*h,2), v(acc+2*h,2), v(vR[n*3+2]+2*h,2)))
        for h in range(2):
            a("v_pk_add_f32 %s, %s, %s" % (v(acc+2*h,2), v(acc+2*h,2), v(vR[n*3]+2*h,2)))
        for h in range(2):
            a("v_pk_mul_f32 %s, %s, s[%d:%d] neg_lo:[0,1] neg_hi:[0,1]" % (v(E+2*h,2), v(acc+2*h,2), sK, sK+1))
        for r in range(4): a("v_exp_f32 v%d, v%d" % (E+r, E+r))
        for h in range(2):
            a("v_pk_mul_f32 %s, %s, %s" % (v(acc+2*h,2), v(acc+2*h,2), v(U+2*h,2)))
        for r in range(4): a("v_add_f32 v%d, 1.0, v%d" % (E+r, E+r))
        for r in range(4): a("v_rcp_f32 v%d, v%d" % (E+r, E+r))
        a("s_nop 0")
        for h in range(2):
            a("v_pk_mul_f32 %s, %s, %s" % (v(acc+2*h,2), v(acc+2*h,2), v(E+2*h,2)))
        a("v_cvt_pk_bf16_f32 v%d, v%d, v%d" % (E, acc, acc+1))
        a("v_cvt_pk_bf16_f32 v%d, v%d, v%d" % (E+1, acc+2, acc+3))
        a.lds("ds_write_b64 v%d, %s offset:%d" % (vPW, v(E,2), n*32), "pw")
    vPq = vE[5:8]
    for k in range(3):
        a.lds("ds_read_b128 %s, v%d" % (v(vPq[k],4), vQ[1]+k), "pr%d" % k)
    for k in range(3):
        a.wait(lg="pr%d" % k)
        Wp = (vR[2*k], vR[2*k+1])
        for j in range(4):
            a("v_lshlrev_b32 v%d, 16, v%d" % (Wp[j//2] + 2*(j%2), vPq[k]+j))
            a("v_and_b32 v%d, 0xffff0000, v%d" % (Wp[j//2] + 2*(j%2) + 1, vPq[k]+j))
        for j in range(4):
            u = vXu[2*k + j//2] + 2*(j % 2)
            a("v_pk_add_f32 %s, %s, %s" % (v(u,2), v(u,2), v(Wp[j//2] + 2*(j%2),2)))
        for j in range(4):
            u = vXu[2*k + j//2] + 2*(j % 2)
            a("v_cvt_pk_bf16_f32 v%d, v%d, v%d" % (vX[k]+j, u, u+1))
        if k == 2: a("s_mov_b32 exec_hi, 0")
        a.vmem("buffer_store_dwordx4 %s, v%d, s[%d:%d], s%d offen" % (v(vX[k],4), vQ[0]+k, sOut, sOut+3, sFs), "st")
    if getattr(a, "DIAGEND", 0):
        a("v_readfirstlane_b32 s%d, v%d" % (sT, vTag))
        if getattr(a, "DIAGENTRY", False): a("s_mov_b32 s%d, s94" % sT)
        a.label("L_diag")
        a("s_memrealtime s[98:99]"); a("s_waitcnt lgkmcnt(0)")
        a("s_sub_u32 s98, s98, s%d" % sT)
        a("s_cmp_lt_u32 s98, %d" % a.DIAGEND)
        a("s_cbranch_scc1 L_diag")
    a.stamp(7)
    a.stamp_dump(16, S_WAVE, 24, (200 << 20))
    a("s_endpgm")
    for sp, ok, k in ool:
        a.label(sp)
        a("s_mov_b32 s%d, %d" % (sSy, k))
        a("s_call_b64 s[%d:%d], L_c_spin" % (sRet, sRet+1))
        a("s_branch %s" % ok)
    a.label("L_c_spin")
    a("s_mov_b32 s%d, 0" % (sSy+2))
    a.label("L_c_spin_loop")
    if a.PROF: a("s_add_u32 s88, s88, 1")
    a("ds_read_b32 v%d, v%d" % (vRv, vCtl))
    a("s_add_u32 s%d, s%d, 1" % (sSy+2, sSy+2))
    a("s_cmp_gt_u32 s%d, 0x%x" % (sSy+2, SPIN_MAX*16))
    a("s_waitcnt lgkmcnt(0)")
    a("v_readfirstlane_b32 s%d, v%d" % (sRdy, vRv))
    a("s_cbranch_scc1 L_c_spin_ret")
    a("s_cmp_ge_u32 s%d, s%d" % (sRdy, sSy))
    a("s_cbranch_scc1 L_c_spin_ret")
    if getattr(a, "CSLEEP", 0): a("s_sleep %d" % a.CSLEEP)
    a("s_branch L_c_spin_loop")
    a.label("L_c_spin_ret")
    a("s_setpc_b64 s[%d:%d]" % (sRet, sRet+1))
    a.vm = []; a.lg = []
```

```python
from asmlib import *
from common import *
from sync import Sync
from loader import tile_maps, k_rotation, k_rotation2, x_src_offsets

G2_P = 61440
G2_PW = 3072
G2_PRS = 176

def emit_compute(a, plan, prio=1):
    vT0, vT1, vT2 = 1, 2, 3
    vTag, vZero, vL16, vPoll = 4, 6, 7, 8
    vRelA, vRv, vCtl, vBarA = 12, 13, 14, 15
    vXr, vWr = 16, 20
    vSt, vSo, vCw, vCr = 24, 25, 26, 27
    vB1 = 28
    vC1, vC2, vC3 = 32, 34, 36
    vOne = 36
    vBar = vPoll
    vAcc = 40
    WB = [112, 124, 136]
    vXF = [148, 164]
    vCs4 = [88, 92, 96]
    vP, vAp, vBp = 180, 192, 204
    sRb, sCb, sRb2, sCb2, sT, sT2, sM, sAo, sRdy, sFa, sFs, sFw = 40, 41, 42, 43, 44, 45, 46, 47, 48, 49, 50, 51
    sSy = 52
    sRet = 100
    sK = 56
    sAct, sFl, sStt, sW2F, sOut, sST, sXs = 60, 64, 68, 72, 76, 4, 12
    sA, sB, sK2, sK3 = 16, 20, 25, 10
    W = S_WAVE
    sy = Sync(a, sFl, P_DBG, vTag, vPoll, sSy, vZero)
    a.c("================ role: compute (gemm1 + gemm2) ================")
    a.stamp(0)
    if a.PROF: a("s_mov_b32 s88, 0")
    a("v_lshlrev_b32 v%d, 2, v0" % vT0)
    a("v_add_u32 v%d, %d, v%d" % (vRelA, C_DUMMY, vT0))
    a("v_mov_b32 v%d, 0" % vZero)
    if prio: a("s_setprio %d" % prio)
    a("s_lshl_b32 s%d, s%d, 2" % (sT, W))
    a("s_add_u32 s%d, s%d, %d" % (sT, sT, C_REL))
    a("v_mov_b32 v%d, s%d" % (vT1, sT))
    a("v_cmp_eq_u32 vcc, 0, v0")
    a("v_mov_b32 v%d, %d" % (vCtl, L_CTL))
    a("s_mov_b32 s%d, 0" % sRdy)
    a("v_cndmask_b32 v%d, v%d, v%d, vcc" % (vRelA, vRelA, vT1))
    tile_maps(a, sRb, sCb, None, None, sT)
    vXd = 100
    sXb, sXk, sXm = 16, 17, 18
    x_src_offsets(a, vXd, vT0, vT1, vT2)
    k_rotation(a, sM, sT2, sRb, sCb)
    a("s_lshl2_add_u32 s%d, s%d, s%d" % (sT, sRb, W))
    a("s_waitcnt lgkmcnt(0)")
    a("s_mul_i32 s%d, s%d, 40960" % (sXb, sT))
    a("s_lshl_b32 s%d, s%d, 12" % (sXm, W))
    a("s_lshl_b32 s%d, s%d, 7" % (sXk, sM))
    a.srd(sXs, P_X, 2048*640*2)
    def xdma(st, i):
        if i == 0:
            a("s_add_u32 m0, s%d, %d" % (sXm, L_X + (st % 3)*16384))
            a("s_add_u32 s%d, s%d, s%d" % (sXb+3, sXb, sXk))
        a.vmem("buffer_load_dwordx4 v%d, s[%d:%d], s%d offen offset:%d lds" % (vXd+i, sXs, sXs+3, sXb+3, i*1024), "X%d" % st)
        if i == 0:
            a("s_add_u32 s%d, s%d, 128" % (sXk, sXk)); a("s_cmp_ge_u32 s%d, 1280" % sXk); a("s_cselect_b32 s%d, 0, s%d" % (sXk, sXk))
    for st in range(min(3, plan.NX_OWN)):
        for i in range(4): xdma(st, i)
        if st == 0 and getattr(a, "ORDER", False): a("s_barrier")
    if getattr(a, "L2PF", False):
        a("s_lshr_b32 s%d, s%d, 3" % (sT, S_WG))
        a("s_lshl2_add_u32 s%d, s%d, s%d" % (sT, sT, W))
        a("s_mul_i32 s%d, s%d, 5120" % (sT2, sT))
        a("s_lshr_b32 s%d, s%d, 2" % (sM, sRb))
        a("s_mul_i32 s%d, s%d, %d" % (sM, sM, 512*1280))
        a("s_add_u32 s%d, s%d, s%d" % (sT2, sT2, sM))
        a("v_min_u32 v%d, 39, v0" % vT2)
        a("v_lshlrev_b32 v%d, 7, v%d" % (vT2, vT2))
        a.vmem("buffer_load_dword v%d, v%d, s[%d:%d], s%d offen" % (vPoll+2, vT2, sXs, sXs+3, sT2), "touch")
        a("v_min_u32 v%d, 59, v0" % vT2)
        a("v_mul_u32_u24 v%d, 5462, v%d" % (vT1, vT2))
        a("v_lshrrev_b32 v%d, 16, v%d" % (vT1, vT1))
        a("v_mul_u32_u24 v%d, 1536, v%d" % (vT1, vT1))
        a("v_lshl_add_u32 v%d, v%d, 7, v%d" % (vT2, vT2, vT1))
        a("s_mul_i32 s%d, s%d, %d" % (sT2, sT, 5*3072))
        a("s_and_b32 s%d, s%d, 1" % (sM, S_WG))
        a("s_mul_i32 s%d, s%d, 1536" % (sM, sM))
        a("s_add_u32 s%d, s%d, s%d" % (sT2, sT2, sM))
        a.srd(sOut, P_W1, 640*1536*2)
        a.vmem("buffer_load_dword v%d, v%d, s[%d:%d], s%d offen" % (vPoll+3, vT2, sOut, sOut+3, sT2), "touch")
    TS = getattr(a, "TOUCH", 0)
    if TS:
        a("v_lshlrev_b32 v%d, %d, v0" % (vT2, TS))
        a("s_lshl_b32 s%d, s%d, %d" % (sT, W, TS + 6))
        a("v_add_u32 v%d, s%d, v%d" % (vT2, sT, vT2))
        a("v_add_u32 v%d, %d, v%d" % (vT2, (1 << TS) - 128, vT2))
        a.srd(sOut, P_WS, 14 << 20)
        a.vmem("buffer_load_dword v%d, v%d, s[%d:%d], 0 offen sc1" % (vPoll+2, vT2, sOut, sOut+3), "touch")
        a.srd(sStt, P_OUT, 2048*640*2)
        a.vmem("buffer_load_dword v%d, v%d, s[%d:%d], 0 offen sc1" % (vPoll+3, vT2, sStt, sStt+3), "touch")
    if getattr(a, "NOREL", False): a("s_endpgm")
    ool = []
    st_ = {"peeked": False}
    vPk = 31
    def peek():
        st_["peeked"] = True
        a.lds("ds_read_b32 v%d, v%d" % (vPk, vCtl), "peek")
    def ready(name):
        if name not in plan.rdy:
            a.wait(vm=name); return
        k = plan.rdy[name]
        ok = a.newlabel("L_rok"); sp = a.newlabel("L_rspin")
        if "peek" in a.lg or st_["peeked"]:
            a.wait(lg="peek")
            a("v_readfirstlane_b32 s%d, v%d" % (sRdy, vPk))
            st_["peeked"] = False
        a("s_cmp_ge_u32 s%d, %d" % (sRdy, k))
        a("s_cbranch_scc0 %s" % sp)
        a.label(ok)
        ool.append((sp, ok, k))
    def release(name):
        a("v_mov_b32 v%d, %d" % (vRv, plan.rel[name]))
        a.lds("ds_write_b32 v%d, v%d" % (vRelA, vRv), "rel")
    def bar_arrive(ep):
        a("v_mov_b32 v%d, %d" % (vRv, ep))
        a.lds("ds_write_b32 v%d, v%d offset:16" % (vRelA, vRv), "rel")
    def bar_wait(ep, off=32):
        sp = a.newlabel("L_bspin"); ok = a.newlabel("L_bok")
        a("s_mov_b32 s%d, 0" % (sSy+2))
        a.label(sp)
        a("ds_read_b128 %s, v%d offset:%d" % (v(vBar,4), vCtl, off))
        a("s_add_u32 s%d, s%d, 1" % (sSy+2, sSy+2))
        a("s_cmp_gt_u32 s%d, 0x%x" % (sSy+2, SPIN_MAX*16))
        a("s_waitcnt lgkmcnt(0)")
        a("v_min3_u32 v%d, v%d, v%d, v%d" % (vBar, vBar, vBar+1, vBar+2))
        a("v_min_u32 v%d, v%d, v%d" % (vBar, vBar, vBar+3))
        a("s_cbranch_scc1 %s" % ok)
        a("v_cmp_gt_u32 vcc, %d, v%d" % (ep, vBar))
        a("s_cbranch_vccnz %s" % sp)
        a.label(ok)
        a.lg = []
    def bar_peek():
        a.lds("ds_read_b128 %s, v%d offset:32" % (v(vBar,4), vCtl), "bpk")
    def bar_check(ep):
        ok = a.newlabel("L_bc")
        a.wait(lg="bpk")
        a("v_min3_u32 v%d, v%d, v%d, v%d" % (vBar, vBar, vBar+1, vBar+2))
        a("v_min_u32 v%d, v%d, v%d" % (vBar, vBar, vBar+3))
        a("v_cmp_gt_u32 vcc, %d, v%d" % (ep, vBar))
        a("s_cbranch_vccz %s" % ok)
        keep = list(a.lg)
        bar_wait(ep)
        a.lg = keep
        a.label(ok)
    tile_maps(a, None, None, sRb2, sCb2, sT)
    a("v_lshlrev_b32 v%d, 4, v0" % vL16)
    a("v_and_b32 v%d, 31, v0" % vT0)
    a("v_lshrrev_b32 v%d, 5, v0" % vT1)
    a("v_lshlrev_b32 v%d, 1, v%d" % (vT2, vT0))
    a("s_mul_i32 s%d, s%d, 192" % (sT, sCb))
    a("v_add_u32 v%d, s%d, v%d" % (vT2, sT, vT2))
    for p in range(3): a.vmem("global_load_ushort v%d, v%d, s[%d:%d] offset:%d" % (vB1+p, vT2, P_B1, P_B1+1, 64*p), "b1")
    a("s_lshl_b32 s%d, s%d, 12" % (sT, W))
    a("s_add_u32 s%d, s%d, %d" % (sT, sT, L_X))
    a("v_bfe_u32 v%d, v0, 1, 3" % vT2)
    a("v_xor_b32 v%d, v%d, v%d" % (vT2, vT2, vT1))
    a("v_lshlrev_b32 v%d, 4, v%d" % (vT2, vT2))
    a("v_lshl_add_u32 v%d, v%d, 7, v%d" % (vT2, vT0, vT2))
    a("v_add_u32 v%d, s%d, v%d" % (vT2, sT, vT2))
    for jl in range(4):
        a("s_add_u32 s%d, s%d, %d" % (sT2, W, jl))
        a("s_and_b32 s%d, s%d, 3" % (sT2, sT2))
        a("s_lshl_b32 s%d, s%d, 5" % (sT2, sT2))
        a("v_xor_b32 v%d, s%d, v%d" % (vXr+jl, sT2, vT2))
    a("v_bfe_u32 v%d, v0, 2, 2" % vT2)
    a("v_lshl_add_u32 v%d, v%d, 3, v%d" % (vT2, vT1, vT2))
    a("v_mul_u32_u24 v%d, 192, v%d" % (vT2, vT2))
    a("v_bfe_u32 v%d, v0, 4, 1" % vSt)
    a("v_lshl_add_u32 v%d, v%d, 5, v%d" % (vT2, vSt, vT2))
    a("v_and_b32 v%d, 3, v0" % vSo)
    a("v_lshl_add_u32 v%d, v%d, 3, v%d" % (vT2, vSo, vT2))
    for jl in range(4):
        a("s_add_u32 s%d, s%d, %d" % (sT2, W, jl))
        a("s_and_b32 s%d, s%d, 3" % (sT2, sT2))
        a("s_mul_i32 s%d, s%d, %d" % (sT2, sT2, 16*192))
        a("v_add_u32 v%d, s%d, v%d" % (vWr+jl, sT2, vT2))
    for r in (vOne, vOne+1): a("v_mov_b32 v%d, 0x%x" % (r, ONES_BF))
    a("v_lshlrev_b32 v%d, 4, v%d" % (vCw, vT1))
    a("v_lshl_add_u32 v%d, v%d, 2, v%d" % (vCw, vSt, vCw))
    a("v_bfe_u32 v%d, v0, 2, 2" % vT2)
    a("v_add_u32 v%d, v%d, v%d" % (vCw, vCw, vT2))
    a("v_lshlrev_b32 v%d, 8, v%d" % (vCw, vCw))
    a("v_lshl_add_u32 v%d, v%d, 3, v%d" % (vCw, vSo, vCw))
    a("s_lshl_b32 s%d, s%d, 6" % (sT, W))
    a("v_add_u32 v%d, s%d, v%d" % (vCw, sT, vCw))
    a("s_mul_i32 s%d, s%d, 13108" % (sT, S_WG))
    a("s_lshr_b32 s%d, s%d, 16" % (sT, sT))
    a("s_mul_i32 s%d, s%d, 5" % (sT2, sT))
    a("s_sub_u32 s%d, s%d, s%d" % (sT2, S_WG, sT2))
    a("s_cmp_ge_u32 s%d, 240" % S_WG)
    a("s_cselect_b32 s%d, 5, s%d" % (sT2, sT2))
    a("s_cselect_b32 s%d, 0, s%d" % (sT, sT))
    a("s_lshl2_add_u32 s%d, s%d, s%d" % (sM, sT2, W))
    a("s_mul_i32 s%d, s%d, %d" % (sM, sM, 2*48*1024))
    a("s_lshl_b32 s%d, s%d, 10" % (sAo, sT))
    a("s_add_u32 s%d, s%d, s%d" % (sM, sM, sAo))
    a("s_mul_i32 s%d, s%d, 48" % (sFw, sT2))
    a("s_add_u32 s%d, s%d, s%d" % (sFw, sFw, sT))
    a("s_lshl2_add_u32 s%d, s%d, s%d" % (sFw, sFw, W))
    a("s_lshl_b32 s%d, s%d, 3" % (sFw, sFw))
    a("s_add_u32 s%d, s%d, %d" % (sFw, sFw, FL_W2F))
    a.srd_off(sW2F, P_WS, WS_W2F, W2F_BYTES)
    a.srd_off(sFl, P_WS, WS_FLAGS, FLAGS_BYTES)
    a.srd_off(sAct, P_WS, WS_ACT, ACT_BYTES)
    a.srd_off(sStt, P_WS, WS_STATS, STATS_BYTES)
    a.srd_off(sST, P_WS, WS_ST, ST_BYTES)
    a("v_mul_u32_u24 v%d, %d, v%d" % (vSt, 48*64, vSt))
    a("v_and_b32 v%d, 15, v0" % vT2)
    a("v_add_u32 v%d, v%d, v%d" % (vSt, vSt, vT2))
    a("v_lshl_add_u32 v%d, v%d, 4, v%d" % (vSt, vT1, vSt))
    a("v_lshlrev_b32 v%d, 4, v%d" % (vSt, vSt))
    a("s_lshl2_add_u32 s%d, s%d, s%d" % (sT2, sRb, W))
    a("s_lshl_b32 s%d, s%d, 9" % (sT, sT2))
    a("v_lshlrev_b32 v%d, 4, v%d" % (vSo, vT0))
    a("v_add_u32 v%d, s%d, v%d" % (vSo, sT, vSo))
    a("s_lshr_b32 s%d, s%d, 1" % (sT, sT2))
    a("s_lshl_b32 s%d, s%d, 5" % (sFa, sT))
    a("s_and_b32 s%d, s%d, 1" % (sT, sT2))
    a("s_add_u32 s%d, s%d, s%d" % (sFa, sFa, sT))
    a("s_lshl_b32 s%d, s%d, 1" % (sT, sCb))
    a("s_add_u32 s%d, s%d, s%d" % (sFa, sFa, sT))
    a("s_lshl_b32 s%d, s%d, 3" % (sFa, sFa))
    a("s_add_u32 s%d, s%d, %d" % (sFa, sFa, FL_ACT))
    a("s_mul_i32 s%d, s%d, 96" % (sT2, sT2))
    a("s_mul_i32 s%d, s%d, 3" % (sAo, sCb))
    a("s_add_u32 s%d, s%d, s%d" % (sAo, sAo, sT2))
    a("s_lshl_b32 s%d, s%d, 10" % (sAo, sAo))
    a("s_mov_b32 s%d, %s" % (sK, fhex(LOG2E))); a("s_mov_b32 s%d, %s" % (sK+1, fhex(LOG2E)))
    a("s_mov_b32 s%d, 2.0" % (sK+2)); a("s_mov_b32 s%d, 2.0" % (sK+3))
    for i in range(16): a("v_mov_b32 v%d, 0" % (vAp+i))
    a("v_lshlrev_b32 v%d, 2, v%d" % (vCr, vT0))
    a("v_add_u32 v%d, %d, v%d" % (vCr, C_CS, vCr))
    vXt, vXs_ = 216, 220
    vIt = [224, 240]
    sXt, sFx = 55, 26
    a("v_bfe_u32 v%d, v0, 1, 1" % vXt)
    a("s_lshl_b32 s%d, s%d, 1" % (sT, W))
    a("v_add_u32 v%d, s%d, v%d" % (vXt, sT, vXt))
    a("v_bfe_u32 v%d, v0, 3, 1" % vT2)
    a("v_xor_b32 v%d, v%d, v%d" % (vXt, vXt, vT2))
    a("v_lshlrev_b32 v%d, 4, v%d" % (vXt, vXt))
    a("v_and_b32 v%d, 1, v0" % vT2)
    a("v_lshl_add_u32 v%d, v%d, 3, v%d" % (vXt, vT2, vXt))
    a("v_bfe_u32 v%d, v0, 2, 2" % vT2)
    a("v_lshl_add_u32 v%d, v%d, 7, v%d" % (vXt, vT2, vXt))
    a("v_mul_u32_u24 v%d, %d, v%d" % (vXs_, 4*TRS, vT2))
    a("v_lshrrev_b32 v%d, 4, v0" % vT2)
    a("v_lshl_add_u32 v%d, v%d, 12, v%d" % (vXt, vT2, vXt))
    a("v_add_u32 v%d, %d, v%d" % (vXt, L_X + 16384, vXt))
    for k in range(1, 4): a("v_xor_b32 v%d, %d, v%d" % (vXt+k, 32*k, vXt))
    a("v_lshl_add_u32 v%d, v%d, 6, v%d" % (vXs_, vT2, vXs_))
    a("v_and_b32 v%d, 3, v0" % vT2)
    a("v_lshl_add_u32 v%d, v%d, 4, v%d" % (vXs_, vT2, vXs_))
    k_rotation(a, sT, sT2, sRb, sCb)
    a("s_add_u32 s%d, s%d, 1" % (sT, sT))
    a("s_cmp_ge_u32 s%d, 10" % sT)
    a("s_cselect_b32 s%d, 0, s%d" % (sT, sT))
    a("s_cmp_ge_u32 s%d, 10" % sCb)
    a("s_cselect_b32 s%d, 10, s%d" % (sT, sT))
    a("s_lshl2_add_u32 s%d, s%d, s%d" % (sT, sT, W))
    a("s_mul_i32 s%d, s%d, %d" % (sXt, sT, 16*TRS))
    a("s_lshl_b32 s%d, s%d, 8" % (sT2, sRb))
    a("s_add_u32 s%d, s%d, s%d" % (sXt, sXt, sT2))
    a("s_lshl4_add_u32 s%d, s%d, s%d" % (sFx, sT, sRb))
    a("s_lshl_b32 s%d, s%d, 3" % (sFx, sFx))
    a("s_add_u32 s%d, s%d, %d" % (sFx, sFx, FL_XT))
    vCh = 208
    def xreads(st):
        return [("xf%d_%d" % (st, jl), "ds_read_b128 %s, v%d offset:%d" % (v(vXF[st & 1]+4*jl,4), vXr+jl, (st % 3)*16384)) for jl in range(4)]
    def wreads(g_):
        st, jl = g_ // 4, g_ % 4
        buf = WB[g_ % 3]
        return [("wf%d" % g_, "ds_read_b64_tr_b16 %s, v%d offset:%d" % (v(buf+4*p+2*q,2), vWr+jl, L_W + (st % 4)*12288 + q*4*192 + p*64)) for p in range(3) for q in range(2)]
    def w2st(k):
        a.vmem("buffer_store_dwordx4 %s, v%d, s[%d:%d], s%d offen sc1" % (v(vCh+4*k,4), vL16, sW2F, sW2F+3, sM), "chw")
        if k == 0: a("s_add_u32 s%d, s%d, %d" % (sM, sM, 48*1024))
    def xtst(j):
        a.vmem("buffer_store_dwordx4 %s, v%d, s[%d:%d], s%d offen sc1" % (v(vIt[0]+4*j,4), vXs_, sOut, sOut+3, sXt), "chs")
        if j < 3: a("s_add_u32 s%d, s%d, %d" % (sXt, sXt, TRS))
    SW, SX, SG = getattr(a, "CH_W", 0), getattr(a, "CH_X", 2), getattr(a, "CH_LAG", 3)
    a.srd_off(sOut, P_WS, WS_XN, XN_BYTES)
    ready("X0")
    a.stamp(10)
    for tag, ins in xreads(0): a.lds(ins, tag)
    ready("W0")
    a.stamp(11)
    for tag, ins in wreads(0) + wreads(1): a.lds(ins, tag)
    def xt_chore():
        bar_check(1)
        for p in range(4):
            for q in range(2):
                a.lds("ds_read_b64_tr_b16 %s, v%d offset:%d" % (v(vIt[0]+4*p+2*q,2), vXt + 2*(p & 1) + q, (8*p + 4*q)*128), "xt")
        bar_arrive(2)
    dpp = []
    for stage_, (masks, perm, x_) in enumerate((((0x55555555, 0xaaaaaaaa), "[1,0,3,2]", 1), ((0x33333333, 0xcccccccc), "[2,3,0,1]", 2))):
        src, dst = vIt[stage_], vIt[1-stage_]
        for mi, m in enumerate(masks):
            for j in range(4):
                if ((j & x_) != 0) != (mi == 1): continue
                dpp.append(["s_mov_b32 vcc_lo, 0x%x" % m, "s_mov_b32 vcc_hi, 0x%x" % m] +
                           ["v_cndmask_b32_dpp v%d, v%d, v%d, vcc quad_perm:%s row_mask:0xf bank_mask:0xf" % (dst+4*j+r, src+4*(j ^ x_)+r, src+4*j+r, perm) for r in range(4)])
    def c_chore():
        ready("C")
        for k in range(2):
            for q in range(2):
                a.lds("ds_read_b64_tr_b16 %s, v%d offset:%d" % (v(vCh+4*k+2*q,2), vCw, L_W + 3*12288 + q*8*256 + k*32), "ch")
        release("C")
        a("s_mul_i32 s%d, s%d, 384" % (sT2, W))
        a("v_add_u32 v%d, s%d, v%d" % (vCw, sT2, vCr))
    a.stamp(1)
    def emit(t):
        if callable(t): t()
        elif isinstance(t, tuple): a.lds(t[1], t[0])
        else: a(t)
    def step(g_, gaps):
        st, jl = g_ // 4, g_ % 4
        buf = WB[g_ % 3]
        xf = vXF[st & 1] + 4*jl
        a.wait(lg=["wf%d" % g_, "xf%d_%d" % (st, jl)])
        rd = wreads(g_ + 2) if g_ + 2 < 40 else []
        for p in range(3):
            acc = vAcc + 16*p
            HK = getattr(a, "HACK", 0)
            if HK == 3:
                for hh in range(2): a("v_mfma_f32_16x16x32_bf16 %s, %s, %s, %s" % (v(acc+4*hh+8*(jl&1),4), v(buf+4*p,4), v(xf,4), "0" if g_ < 2 else v(acc+4*hh+8*(jl&1),4)))
            elif HK != 1: a("v_mfma_f32_32x32x16_bf16 %s, %s, %s, %s" % (v(acc,16), v(buf+4*p,4), v(xf,4), "0" if g_ == 0 else v(acc,16)))
            for tag, ins in rd[2*p:2*p+2]: a.lds(ins, tag)
            if HK == 0 and ((jl >= 2) if st < 9 else (jl < 2)):
                a("v_mfma_f32_4x4x4_16b_bf16 %s, %s, %s, %s" % (v(vCs4[p],4), v(vOne,2), v(buf+4*p+2*(jl & 1),2), "0" if g_ == 2 else v(vCs4[p],4)))
            for t in gaps[p]: emit(t)
    statld = "buffer_load_dwordx4 %s, v%d, s[%d:%d], 0 offen sc1" % (v(vPoll,4), vSo, sStt, sStt+3)
    for st in range(10):
        gp = [[] for _ in range(12)]
        if st < 9:
            xr = xreads(st+1)
            gp[1] += [lambda: ready("X%d" % (st+1)), xr[0]]
            if plan.rdy["W%d" % (st+1)] > plan.rdy.get("X%d" % (st+1), 0): gp[3] += [peek]
            if st < 8 and ("X%d" % (st+2)) in plan.rdy: gp[10] += [peek]
            gp[2] += [xr[1]]; gp[3] += [xr[2]]; gp[4] += [xr[3]]
            if plan.NX_OWN < 10 or st + 1 >= 7: gp[4] += [lambda: release("X%d" % (st+1))]
        gp[5] += [lambda: release("W%d" % st)]
        if st == 1:
            gp[0].append(lambda: a.wait(lg="xt"))
            for gi in (0, 1, 4, 4, 8, 9, 9, 10): gp[gi] += dpp.pop(0)
        if st < 9 and plan.rdy["W%d" % (st+1)] > plan.rdy.get("X%d" % (st+1), 0): gp[5] += [lambda: ready("W%d" % (st+1))]
        if plan.NX_OWN == 10:
            if st == 0:
                gp[0].append(lambda: a.wait(lg="xf0_3"))
                for i in range(4): gp[(0, 3, 6, 7)[i]].append(lambda i=i: xdma(3, i))
                gp[1].append(lambda: bar_arrive(1))
                gp[2] += [c_chore]
                gp[6] += [bar_peek]
                gp[8] += [xt_chore]
            if st == 1:
                gp[0] += [bar_peek]
                gp[2].append(lambda: bar_check(2))
                for i in range(4): gp[(2, 3, 5, 6)[i]].append(lambda i=i: xdma(4, i))
            if st >= 1 and st + 4 < 10:
                gp[7].append(lambda: a.wait(lg="xf%d_3" % (st+1)))
                for i in range(4): gp[(7, 8, 10, 11)[i]].append(lambda i=i: xdma(st+4, i))
        if st == SW:
            gp[6].append(lambda: w2st(0)); gp[9].append(lambda: w2st(1))
        if st == SX:
            for j in range(4): gp[(0, 7, 8, 11)[j]].append(lambda j=j: xtst(j))
        if st == 1: gp[7].append(sy.tag_load)
        if st == max(SW, 0) + SG:
            def sigw():
                sy.tag_check()
                a.wait(vm="chw")
                sy.signal("s%d" % sFw, 0)
            gp[0].insert(0, sigw)
        if st == min(max(SX, 0) + SG, 9):
            def sigx():
                a.wait(vm="chs")
                sy.signal("s%d" % sFx, 0)
                a.srd(sOut, P_OUT, 2048*640*2)
            gp[1 if st < 9 else 11].insert(0, sigx)
        if st == 7: gp[8].append(lambda: a.vmem(statld, "stat"))
        if st == 9:
            def statprep():
                sy.granule_check(statld, "stat", vPoll+2)
                a("v_mov_b32 v%d, v%d" % (vBp, vPoll))
                a("v_mov_b32 v%d, v%d" % (vBp+1, vPoll+1))
            gp[1].append(statprep)
            gp[6] += ["s_nop 1", "v_and_b32 v%d, 0xffff0000, v%d" % (vC3, vBp+1), "v_rcp_f32 v%d, v%d" % (vC3, vC3)]
            gp[7] += ["v_permlane32_swap_b32 v%d, v%d" % (vCs4[p], vCs4[p]+1) for p in range(3)]
            gp[7] += ["v_add_f32 v%d, v%d, v%d" % (vCs4[p], vCs4[p], vCs4[p]+1) for p in range(3)]
            gp[7] += [("cw", "ds_write_b32 v%d, v%d offset:%d" % (vCw, vCs4[p], p*128)) for p in range(3)]
            gp[7] += [lambda: bar_arrive(3)]
            gp[9] += [lambda: bar_wait(3)]
            gp[9] += [("cr", "ds_read_b32 v%d, v%d offset:%d" % (vP+w*3+p, vCr, w*384 + p*128)) for w in range(4) for p in range(3)]
        if getattr(a, 'STST', False):
            if st in (1, 2, 3, 4, 6, 8): a.stamp({1: 10, 2: 11, 3: 12, 4: 13, 6: 14, 8: 15}[st])
        else:
            if st in (0, 4): a.stamp({0: 12, 4: 13}[st])
            if st == 4: a.cstamp(14)
        for j in range(4): step(4*st+j, gp[3*j:3*j+3])
    a.stamp(2)
    if not getattr(a, 'STST', False): a.cstamp(15)
    if a.PROF: a("s_mov_b32 s89, s88")
    a("v_mul_f32 v%d, %s, v%d" % (vC1, fhex(LOG2E), vC3))
    a("v_mul_f32 v%d, -2.0, v%d" % (vC2, vC3))
    a("s_mov_b32 exec_hi, 0")
    for p in range(3): a("v_mov_b32 v%d, v%d" % (vAp+4*p+1, vB1+p))
    a.wait(lg="cr")
    for p in range(3):
        a("v_add_f32 v%d, v%d, v%d" % (vP+p, vP+p, vP+3+p))
        a("v_add_f32 v%d, v%d, v%d" % (vP+6+p, vP+6+p, vP+9+p))
    for p in range(3): a("v_add_f32 v%d, v%d, v%d" % (vP+p, vP+p, vP+6+p))
    for p in range(3): a("v_cvt_pk_bf16_f32 v%d, v%d, v%d" % (vP+3+p, vP+p, vP+p))
    for p in range(3): a("v_and_b32 v%d, 0xffff0000, v%d" % (vP+3+p, vP+3+p))
    for p in range(3): a("v_sub_f32 v%d, v%d, v%d" % (vP+3+p, vP+p, vP+3+p))
    for p in range(3): a("v_cvt_pk_bf16_f32 v%d, v%d, v%d" % (vAp+4*p, vP+p, vP+3+p))
    a("s_mov_b32 exec_hi, -1")
    a("s_nop 0")
    for p in range(3):
        acc = vAcc + 16*p
        a("v_mfma_f32_32x32x16_bf16 %s, %s, %s, %s" % (v(acc,16), v(vAp+4*p,4), v(vBp,4), v(acc,16)))
    vRW = 16; vRR, vPW, vPR, vXO, vSO = 19, 20, 21, 22, 23
    vFr, vPA = vBarA, vCr
    a("v_and_b32 v%d, 15, v0" % vT0)
    a("v_lshrrev_b32 v%d, 4, v0" % vT1)
    a("s_lshl2_add_u32 s%d, s%d, s%d" % (sT, sRb2, W))
    a("s_mul_i32 s%d, s%d, %d" % (sT2, sT, 16*1280))
    a("s_mul_i32 s%d, s%d, 160" % (sM, sCb2))
    a("s_add_u32 s%d, s%d, s%d" % (sFs, sT2, sM))
    a("v_lshrrev_b32 v%d, 2, v0" % vSO)
    a("v_lshlrev_b32 v%d, 7, v%d" % (vSO, vSO))
    a("v_and_b32 v%d, 3, v0" % vXO)
    a("v_lshl_add_u32 v%d, v%d, 3, v%d" % (vSO, vXO, vSO))
    a("s_lshl_b32 s%d, s%d, 5" % (sM, W))
    a("s_add_u32 s%d, s%d, %d" % (sM, sM, 20*4096))
    a("v_add_u32 v%d, s%d, v%d" % (vSO, sM, vSO))
    a("s_lshl_b32 s%d, s%d, 10" % (sT, W))
    a("v_add_u32 v%d, s%d, v%d" % (vFr, sT, vL16))
    vE = 112; vO = 144
    vFr2 = vCr
    a("v_add_u32 v%d, 65536, v%d" % (vFr2, vFr))
    early = [r for r in range(208, 256, 4)] + [r for r in range(168, 208, 4)] + [r for r in range(104, 144, 4)]
    latef = [r for r in range(144, 168, 4)]
    free = early
    loc = {}
    def pull(name):
        out = []
        for j, row in enumerate(plan.rowsof[name]):
            r = free.pop(0); loc[(name, j)] = r
            base, off = (vFr, row*4096) if row < 16 else (vFr2, (row-16)*4096)
            out.append((name, "ds_read_b128 %s, v%d offset:%d" % (v(r,4), base, off)))
        return out
    def pull_now(nm):
        ready(nm)
        for tag, ins in pull(nm): a.lds(ins, tag)
        release(nm)
    NEP = getattr(a, "NEP", 4)
    for c in range(6):
        A = vAcc + 8*c; E = vE + 16*(c & 1); O = vO + 4*c
        for k in range(4): a("v_pk_mul_f32 %s, %s, %s op_sel_hi:[1,0]" % (v(E+2*k,2), v(A+2*k,2), v(vC1,2)))
        for k in range(8): a("v_exp_f32 v%d, v%d" % (E+k, E+k))
        for k in range(4): a("v_pk_add_f32 %s, %s, s[%d:%d]" % (v(E+8+2*k,2), v(E+2*k,2), sK+2, sK+3))
        for k in range(4): a("v_pk_fma_f32 %s, %s, %s, s[%d:%d]" % (v(E+2*k,2), v(E+2*k,2), v(E+8+2*k,2), sK+2, sK+3))
        for k in range(8): a("v_rcp_f32 v%d, v%d" % (E+k, E+k))
        for k in range(4): a("v_pk_fma_f32 %s, %s, %s, %s op_sel_hi:[1,0,0]" % (v(E+2*k,2), v(E+2*k,2), v(vC2,2), v(vC3,2)))
        for k in range(4): a("v_pk_mul_f32 %s, %s, %s" % (v(E+2*k,2), v(E+2*k,2), v(A+2*k,2)))
        for k in range(4): a("v_cvt_pk_bf16_f32 v%d, v%d, v%d" % (O+k, E+2*k, E+2*k+1))
        SB = getattr(a, "STB", 1)
        if c == 5: bar_arrive(4)
        if (c + 1) % SB == 0:
            for c2 in range(c + 1 - SB, c + 1):
                a.vmem("buffer_store_dwordx4 %s, v%d, s[%d:%d], s%d offen offset:%d sc1" % (v(vO+4*c2,4), vSt, sAct, sAct+3, sAo, c2*512), "st")
    a.stamp(3)
    for i in range(1, 4):
        a("s_add_u32 s%d, s%d, %d" % (sT, W, i))
        a("s_and_b32 s%d, s%d, 3" % (sT, sT))
        a("s_mul_i32 s%d, s%d, 15360" % (sT, sT))
        a("s_add_u32 s%d, s%d, %d" % (sT, sT, (i-1)*5120))
        a("v_add_u32 v%d, s%d, v%d" % (vRW+i-1, sT, vL16))
    a("s_mul_i32 s%d, s%d, 15360" % (sT, W))
    a("v_add_u32 v%d, s%d, v%d" % (vRR, sT, vL16))
    a("s_mul_i32 s%d, s%d, %d" % (sT, W, G2_PW))
    a("s_add_u32 s%d, s%d, %d" % (sT, sT, G2_P))
    a("v_mul_u32_u24 v%d, %d, v%d" % (vPW, G2_PRS, vT0))
    a("v_lshl_add_u32 v%d, v%d, 3, v%d" % (vPW, vT1, vPW))
    a("v_add_u32 v%d, s%d, v%d" % (vPW, sT, vPW))
    a("s_mov_b32 s%d, s%d" % (sFw, sT))
    a("v_mov_b32 v%d, v%d" % (vT1, vFr2))
    vFr2 = vT1
    vAcc2 = 24
    vZero2 = vPoll + 3
    k_rotation2(a, sK2, sT2, sRb2, sCb2)
    a("s_mul_i32 s%d, s%d, %d" % (sT2, W, 12*1024))
    for i in range(4):
        a("s_add_u32 s%d, s%d, %d" % (sT, W, i))
        a("s_and_b32 s%d, s%d, 3" % (sT, sT))
        a("s_lshl2_add_u32 s%d, s%d, s%d" % (sT, sRb2, sT))
        a("s_mul_i32 s%d, s%d, %d" % (sT, sT, 48*1024))
        a("s_add_u32 s%d, s%d, s%d" % (sA+i, sT, sT2))
    a("s_mul_i32 s%d, s%d, %d" % (sT, sCb2, 5*48*1024))
    a("s_add_u32 s%d, s%d, s%d" % (sB, sT, sT2))
    for n in range(1, 5): a("s_add_u32 s%d, s%d, %d" % (sB+n, sB, n*48*1024))
    vKo = [vT0, vZero2]
    def koff(s_, reg):
        a("s_add_u32 s%d, s%d, %d" % (sK3, sK2, s_*1024))
        a("s_sub_u32 s%d, s%d, %d" % (sK3+1, sK3, 12*1024))
        a("s_cmp_ge_u32 s%d, %d" % (sK3, 12*1024))
        a("s_cselect_b32 s%d, s%d, s%d" % (sK3, sK3+1, sK3))
        a("v_add_u32 v%d, s%d, v%d" % (reg, sK3, vL16))
    a.wait(vm="all")
    sy.signal("s%d" % sFa, 0)
    a.stamp(4)
    pull_now("B0")
    free += latef
    if getattr(a, "BLATE", False): ready("ACT")
    for s_ in plan.regB:
        koff(s_, vKo[0])
        for n in range(5):
            r = free.pop(0); loc[("B%d" % s_, n)] = r
            a.vmem("buffer_load_dwordx4 %s, v%d, s[%d:%d], s%d offen sc1" % (v(r,4), vKo[0], sW2F, sW2F+3, sB+n), "B%d" % s_)
    ready("ACT")
    a.stamp(5)
    G = [(s_, i) for s_ in range(12) for i in range(9 if s_ in plan.lateB else 4)]
    def issue_a():
        s_, i = G.pop(0)
        if i == 0: koff(s_, vKo[0])
        r = free.pop(0)
        if i >= 4:
            loc[("B%d" % s_, i-4)] = r
            a.vmem("buffer_load_dwordx4 %s, v%d, s[%d:%d], s%d offen sc1" % (v(r,4), vKo[0], sW2F, sW2F+3, sB+i-4), "B%d" % s_)
            return
        loc[("A%d" % s_, i)] = r
        a.vmem("buffer_load_dwordx4 %s, v%d, s[%d:%d], s%d offen sc1" % (v(r,4), vKo[0], sAct, sAct+3, sA+i), "A%d" % s_)
    while G and len(free) > 5: issue_a()
    vX = None
    def peek2():
        nonlocal vPk
        vPk = vZero2
        peek()
    for s_ in range(12):
        side = []
        nb = s_ + 1 < 12 and (s_+1) in plan.ringB
        pl = pull("B%d" % (s_+1)) if nb else []
        keep = 5 if (s_ + 2 < 12 and (s_+2) in plan.ringB and s_ == 0 and False) else 0
        keep = {9: 5}.get(s_, 0)
        na = max(0, min(len(G), len(free) - keep))
        if nb: side.append(peek2)
        side += [issue_a]*min(na, 3); na -= min(na, 3)
        if nb:
            side.append(lambda: ready("B%d" % (s_+1)))
            side += pl
            side.append(lambda: release("B%d" % (s_+1)))
        side += [issue_a]*na
        if s_ == 9:
            vX = [free.pop(-1) for _ in range(3)]
            vQ = [free.pop(-1) for _ in range(2)]
            def xld(k):
                a("v_add_u32 v%d, %d, v0" % (vT2, 64*k))
                a("v_mul_u32_u24 v%d, 6554, v%d" % (vPR, vT2))
                a("v_lshrrev_b32 v%d, 16, v%d" % (vPR, vPR))
                a("v_lshlrev_b32 v%d, 4, v%d" % (vT2, vT2))
                a("v_mad_u32_u24 v%d, v%d, %s, v%d" % (vQ[1]+k, vPR, "16", vT2))
                a("v_mul_u32_u24 v%d, %d, v%d" % (vPR, 1280-160, vPR))
                a("v_add_u32 v%d, v%d, v%d" % (vQ[0]+k, vPR, vT2))
                a("v_add_u32 v%d, s%d, v%d" % (vQ[1]+k, sFw, vQ[1]+k))
                a.vmem("buffer_load_dwordx4 %s, v%d, s[%d:%d], s%d offen" % (v(vX[k],4), vQ[0]+k, sXs, sXs+3, sFs), "x")
            for k in range(3): side.append(lambda k=k: xld(k))
        if s_ == 11:
            side.append(lambda: bar_arrive(5))
        PM = getattr(a, "P2MODE", 0)
        post = []
        if PM:
            lds_ = [t for t in side if t is not issue_a]; nl = len(side) - len(lds_)
            if nb: lds_ = lds_[:1] + ["s_nop 0"]*3 + lds_[1:]
            side = lds_
            if PM == 1:
                for _ in range(nl): issue_a()
            else:
                post = [issue_a]*nl
        a.wait(lg="B%d" % s_, vm=["A%d" % s_, "B%d" % s_])
        if getattr(a, "P2ST", False) and s_ in (0, 2, 4, 6, 8, 10): a.stamp(10 + s_//2)
        order = [1, 2, 3, 0] if s_ == 11 else [0, 1, 2, 3]
        for i in order:
            for n in range(5):
                acc = vAcc2 + (i*5+n)*4
                a("v_mfma_f32_16x16x32_bf16 %s, %s, %s, %s" % (v(acc,4), v(loc[("B%d" % s_,n)],4), v(loc[("A%d" % s_,i)],4), "0" if s_ == 0 else v(acc,4)))
                if side: emit(side.pop(0))
        assert not side
        for t in post: t()
        for i in range(4): free.append(loc[("A%d" % s_, i)])
        for n in range(5): free.append(loc[("B%d" % s_, n)])
    assert not G
    a.stamp(6)
    bar_wait(5)
    for i in range(1, 4):
        for n in range(5):
            a.lds("ds_write_b128 v%d, %s offset:%d" % (vRW+i-1, v(vAcc2+(i*5+n)*4,4), n*1024), "rw")
    bar_arrive(6)
    vXu = [free.pop(0) for _ in range(6)]
    a.wait(vm="x")
    for k in range(3):
        for j in range(4):
            u = vXu[2*k + j//2] + 2*(j % 2)
            a("v_lshlrev_b32 v%d, 16, v%d" % (u, vX[k]+j))
            a("v_and_b32 v%d, 0xffff0000, v%d" % (u+1, vX[k]+j))
    vS = [free.pop(0) for _ in range(3)]
    ready("S")
    for n in range(5):
        a.lds("ds_read_b64_tr_b16 %s, v%d offset:%d" % (v(vS[n//2] + 2*(n%2),2), vSO, n*16*128), "s")
    bar_wait(6)
    vR = [free.pop(0) for _ in range(15)]
    for n in range(5):
        for sl in range(3):
            a.lds("ds_read_b128 %s, v%d offset:%d" % (v(vR[n*3+sl],4), vRR, sl*5120 + n*1024), "rr%d" % n)
    vE = [vAcc2 + 20 + 4*i for i in range(8)]
    vU = [vAcc2 + 52 + 4*i for i in range(5)]
    for n in range(5):
        S = vS[n//2] + 2*(n%2); U = vU[n]
        a("v_lshlrev_b32 v%d, 16, v%d" % (U+0, S))
        a("v_and_b32 v%d, 0xffff0000, v%d" % (U+1, S))
        a("v_lshlrev_b32 v%d, 16, v%d" % (U+2, S+1))
        a("v_and_b32 v%d, 0xffff0000, v%d" % (U+3, S+1))
    for n in range(5):
        a.wait(lg="rr%d" % n)
        acc = vAcc2 + n*4; E = vE[n]; U = vU[n]
        for h in range(2):
            a("v_pk_add_f32 %s, %s, %s" % (v(vR[n*3]+2*h,2), v(vR[n*3]+2*h,2), v(vR[n*3+1]+2*h,2)))
            a("v_pk_add_f32 %s, %s, %s" % (v(acc+2*h,2), v(acc+2*h,2), v(vR[n*3+2]+2*h,2)))
        for h in range(2):
            a("v_pk_add_f32 %s, %s, %s" % (v(acc+2*h,2), v(acc+2*h,2), v(vR[n*3]+2*h,2)))
        for h in range(2):
            a("v_pk_mul_f32 %s, %s, s[%d:%d] neg_lo:[0,1] neg_hi:[0,1]" % (v(E+2*h,2), v(acc+2*h,2), sK, sK+1))
        for r in range(4): a("v_exp_f32 v%d, v%d" % (E+r, E+r))
        for h in range(2):
            a("v_pk_mul_f32 %s, %s, %s" % (v(acc+2*h,2), v(acc+2*h,2), v(U+2*h,2)))
        for r in range(4): a("v_add_f32 v%d, 1.0, v%d" % (E+r, E+r))
        for r in range(4): a("v_rcp_f32 v%d, v%d" % (E+r, E+r))
        a("s_nop 0")
        for h in range(2):
            a("v_pk_mul_f32 %s, %s, %s" % (v(acc+2*h,2), v(acc+2*h,2), v(E+2*h,2)))
        a("v_cvt_pk_bf16_f32 v%d, v%d, v%d" % (E, acc, acc+1))
        a("v_cvt_pk_bf16_f32 v%d, v%d, v%d" % (E+1, acc+2, acc+3))
        a.lds("ds_write_b64 v%d, %s offset:%d" % (vPW, v(E,2), n*32), "pw")
    vPq = vE[5:8]
    for k in range(3):
        a.lds("ds_read_b128 %s, v%d" % (v(vPq[k],4), vQ[1]+k), "pr%d" % k)
    for k in range(3):
        a.wait(lg="pr%d" % k)
        Wp = (vR[2*k], vR[2*k+1])
        for j in range(4):
            a("v_lshlrev_b32 v%d, 16, v%d" % (Wp[j//2] + 2*(j%2), vPq[k]+j))
            a("v_and_b32 v%d, 0xffff0000, v%d" % (Wp[j//2] + 2*(j%2) + 1, vPq[k]+j))
        for j in range(4):
            u = vXu[2*k + j//2] + 2*(j % 2)
            a("v_pk_add_f32 %s, %s, %s" % (v(u,2), v(u,2), v(Wp[j//2] + 2*(j%2),2)))
        for j in range(4):
            u = vXu[2*k + j//2] + 2*(j % 2)
            a("v_cvt_pk_bf16_f32 v%d, v%d, v%d" % (vX[k]+j, u, u+1))
        if k == 2: a("s_mov_b32 exec_hi, 0")
        a.vmem("buffer_store_dwordx4 %s, v%d, s[%d:%d], s%d offen" % (v(vX[k],4), vQ[0]+k, sOut, sOut+3, sFs), "st")
    if getattr(a, "DIAGEND", 0):
        a("v_readfirstlane_b32 s%d, v%d" % (sT, vTag))
        if getattr(a, "DIAGENTRY", False): a("s_mov_b32 s%d, s94" % sT)
        a.label("L_diag")
        a("s_memrealtime s[98:99]"); a("s_waitcnt lgkmcnt(0)")
        a("s_sub_u32 s98, s98, s%d" % sT)
        a("s_cmp_lt_u32 s98, %d" % a.DIAGEND)
        a("s_cbranch_scc1 L_diag")
    a.stamp(7)
    a.stamp_dump(16, S_WAVE, 24, (200 << 20))
    a("s_endpgm")
    for sp, ok, k in ool:
        a.label(sp)
        a("s_mov_b32 s%d, %d" % (sSy, k))
        a("s_call_b64 s[%d:%d], L_c_spin" % (sRet, sRet+1))
        a("s_branch %s" % ok)
    a.label("L_c_spin")
    a("s_mov_b32 s%d, 0" % (sSy+2))
    a.label("L_c_spin_loop")
    if a.PROF: a("s_add_u32 s88, s88, 1")
    a("ds_read_b32 v%d, v%d" % (vRv, vCtl))
    a("s_add_u32 s%d, s%d, 1" % (sSy+2, sSy+2))
    a("s_cmp_gt_u32 s%d, 0x%x" % (sSy+2, SPIN_MAX*16))
    a("s_waitcnt lgkmcnt(0)")
    a("v_readfirstlane_b32 s%d, v%d" % (sRdy, vRv))
    a("s_cbranch_scc1 L_c_spin_ret")
    a("s_cmp_ge_u32 s%d, s%d" % (sRdy, sSy))
    a("s_cbranch_scc1 L_c_spin_ret")
    if getattr(a, "CSLEEP", 0): a("s_sleep %d" % a.CSLEEP)
    a("s_branch L_c_spin_loop")
    a.label("L_c_spin_ret")
    a("s_setpc_b64 s[%d:%d]" % (sRet, sRet+1))
    a.vm = []; a.lg = []
```

```python
from asmlib import *
from common import *
from sync import Sync

def tile_maps(e, sRb, sCb, sRb2, sCb2, sT):
    i = S_WG
    if sRb is not None:
        e("s_bfe_u32 s%d, s%d, 0x20001" % (sRb, i))
        e("s_lshl_b32 s%d, s%d, 2" % (sRb, sRb))
        e("s_lshr_b32 s%d, s%d, 6" % (sT, i))
        e("s_add_u32 s%d, s%d, s%d" % (sRb, sRb, sT))
        e("s_and_b32 s%d, s%d, 1" % (sCb, i))
        e("s_lshl_b32 s%d, s%d, 3" % (sCb, sCb))
        e("s_bfe_u32 s%d, s%d, 0x30003" % (sT, i))
        e("s_add_u32 s%d, s%d, s%d" % (sCb, sCb, sT))
    if sRb2 is not None:
        if getattr(e, "MAP81", False):
            e("s_and_b32 s%d, s%d, 7" % (sRb2, i))
            e("s_lshl_b32 s%d, s%d, 2" % (sRb2, sRb2))
            e("s_lshr_b32 s%d, s%d, 6" % (sT, i))
            e("s_add_u32 s%d, s%d, s%d" % (sRb2, sRb2, sT))
            e("s_bfe_u32 s%d, s%d, 0x30003" % (sCb2, i))
            return
        e("s_bfe_u32 s%d, s%d, 0x20001" % (sRb2, i))
        e("s_lshl_b32 s%d, s%d, 3" % (sRb2, sRb2))
        e("s_lshr_b32 s%d, s%d, 5" % (sT, i))
        e("s_add_u32 s%d, s%d, s%d" % (sRb2, sRb2, sT))
        e("s_and_b32 s%d, s%d, 1" % (sCb2, i))
        e("s_lshl_b32 s%d, s%d, 2" % (sCb2, sCb2))
        e("s_bfe_u32 s%d, s%d, 0x20003" % (sT, i))
        e("s_add_u32 s%d, s%d, s%d" % (sCb2, sCb2, sT))

def k_rotation(e, sT, sT2, sRb, sCb):
    RM = getattr(e, "ROTMODE", 0)
    if RM:
        e("s_add_u32 s%d, s%d, s%d" % (sT, sRb, sCb))
        e("s_and_b32 s%d, s%d, %d" % (sT, sT, RM - 1))
        return
    e("s_and_b32 s%d, s%d, 3" % (sT, sRb))
    e("s_mul_i32 s%d, s%d, 3" % (sT, sT))
    e("s_add_u32 s%d, s%d, s%d" % (sT, sT, sCb))
    for _ in range(2):
        e("s_sub_u32 s%d, s%d, 10" % (sT2, sT))
        e("s_cmp_ge_u32 s%d, 10" % sT)
        e("s_cselect_b32 s%d, s%d, s%d" % (sT, sT2, sT))

def k_rotation2(e, sK, sT2, sRb2, sCb2):
    if getattr(e, "MAP81", False): sRb2, sCb2 = sCb2, sRb2
    e("s_and_b32 s%d, s%d, 3" % (sT2, sCb2))
    e("s_mul_i32 s%d, s%d, 3" % (sT2, sT2))
    e("s_and_b32 s%d, s%d, 7" % (sK, sRb2))
    e("s_add_u32 s%d, s%d, s%d" % (sT2, sT2, sK))
    e("s_lshr_b32 s%d, s%d, 1" % (sK, sK))
    e("s_add_u32 s%d, s%d, s%d" % (sT2, sT2, sK))
    e("s_sub_u32 s%d, s%d, 12" % (sK, sT2))
    e("s_cmp_ge_u32 s%d, 12" % sT2)
    e("s_cselect_b32 s%d, s%d, s%d" % (sK, sK, sT2))
    e("s_lshl_b32 s%d, s%d, 10" % (sK, sK))

def x_src_offsets(a, vXs, vT0, vT1, vT2):
    a("v_lshrrev_b32 v%d, 4, v0" % vT0)
    a("v_lshrrev_b32 v%d, 3, v0" % vT1)
    a("v_and_b32 v%d, 7, v0" % vT2)
    a("v_xor_b32 v%d, v%d, v%d" % (vT2, vT2, vT0))
    a("v_mul_u32_u24 v%d, 1280, v%d" % (vXs, vT1))
    a("v_lshl_add_u32 v%d, v%d, 4, v%d" % (vXs, vT2, vXs))
    a("v_xor_b32 v%d, 64, v%d" % (vXs+1, vXs))
    a("v_add_u32 v%d, %d, v%d" % (vXs+2, 2*(10240-1024), vXs))
    a("v_add_u32 v%d, %d, v%d" % (vXs+3, 3*(10240-1024), vXs+1))
    a("v_add_u32 v%d, %d, v%d" % (vXs+1, 1*(10240-1024), vXs+1))

def emit_loader(a, plan, T=43, prio=3, ROT=True, RELAHEAD=11):
    vT0, vT1, vT2 = 1, 2, 3
    vTag, vZero, vL16 = 4, 6, 7
    vPoll = 8
    vXs, vWs, vCs, vBs, vAs = 20, 24, 36, 40, 44
    vRel, vPubA, vPub, vRelA, vPA = 60, 64, 65, 66, 67
    sRb, sCb, sRb2, sCb2, sT, sT2, sXo, sWo, sCo, sRel, sPub, sNeed, sAll = 40, 41, 42, 43, 44, 45, 46, 47, 48, 49, 50, 51, 52
    sSy = 54
    sRet = 58
    sXs, sW1, sW2, sW2F, sAct, sFl = 60, 64, 68, 72, 76, 4
    sBo, sAo, sFw, sFc = 53, 57, 46, 47
    sKx, sKw = 100, 101
    sy = Sync(a, sFl, P_DBG, vTag, vPoll, sSy, vZero)
    a.c("================ role: loader ================")
    a.stamp(0)
    if a.PROF:
        a("s_mov_b32 s86, 0"); a("s_mov_b32 s87, 0")
    a("s_setprio %d" % getattr(a, "LDPRIO0", 0))
    tile_maps(a, sRb, sCb, None, None, sT)
    for z in range(3):
        a("v_add_u32 v%d, %d, v0" % (vT2, 64*z))
        a("v_mul_u32_u24 v%d, 5462, v%d" % (vWs+z, vT2))
        a("v_lshrrev_b32 v%d, 16, v%d" % (vWs+z, vWs+z))
        a("v_mul_u32_u24 v%d, %d, v%d" % (vWs+z, 3072-192, vWs+z))
        a("v_lshl_add_u32 v%d, v0, 4, v%d" % (vWs+z, vWs+z))
    a("s_mul_i32 s%d, s%d, 192" % (sWo, sCb))
    k_rotation(a, sT, sT2, sRb, sCb)
    a("s_mul_i32 s%d, s%d, %d" % (sKw, sT, 64*3072))
    a("s_add_u32 s%d, s%d, %d" % (sT, sT, plan.NX_OWN))
    a("s_sub_u32 s%d, s%d, 10" % (sT2, sT))
    a("s_cmp_ge_u32 s%d, 10" % sT)
    a("s_cselect_b32 s%d, s%d, s%d" % (sT, sT2, sT))
    a("s_lshl_b32 s%d, s%d, 7" % (sKx, sT))
    a("s_waitcnt lgkmcnt(0)")
    a.srd(sW1, P_W1, 640*1536*2)
    st8 = {"n": 0, "pend": [], "issued": 0}
    def publish(k):
        a("s_max_u32 s%d, s%d, %d" % (sPub, sPub, k))
        a("v_mov_b32 v%d, s%d" % (vPub, sPub))
        a.lds("ds_write_b32 v%d, v%d" % (vPubA, vPub), "pub")
    def after_issue():
        while st8["pend"] and st8["n"] - st8["pend"][0][1] >= T:
            k, last = st8["pend"].pop(0)
            a("s_waitcnt vmcnt(%d)" % (st8["n"] - last))
            publish(k)
    def vm(txt):
        a(txt); st8["n"] += 1
        after_issue()
    def drain():
        while st8["pend"]:
            k, last = st8["pend"].pop(0)
            a("s_waitcnt vmcnt(%d)" % min(63, st8["n"] - last))
            publish(k)
    def rel_read():
        a.lds("ds_read_b128 %s, v%d" % (v(vRel,4), vRelA), "rel")
    def rel_check(need):
        if getattr(a, "NOREL", False): return
        ok = a.newlabel("L_relok")
        a.wait(lg="rel")
        a("v_min3_u32 v%d, v%d, v%d, v%d" % (vRel, vRel, vRel+1, vRel+2))
        a("v_min_u32 v%d, v%d, v%d" % (vRel, vRel, vRel+3))
        a("s_mov_b32 s%d, %d" % (sNeed, need))
        a("v_readfirstlane_b32 s%d, v%d" % (sRel, vRel))
        a("s_mov_b32 s%d, %d" % (sAll, st8["issued"]))
        a("s_cmp_ge_u32 s%d, %d" % (sRel, need))
        a("s_cbranch_scc1 %s" % ok)
        a("s_call_b64 s[%d:%d], L_ld_slow" % (sRet, sRet+1))
        a.label(ok)
    def adv(r, step, wrap):
        return ["s_add_u32 s%d, s%d, %d" % (r, r, step), "s_cmp_ge_u32 s%d, %d" % (r, wrap), "s_cselect_b32 s%d, 0, s%d" % (r, r)]
    def instrs(x):
        out = []
        if x.kind == "C":
            for i in range(8):
                pre = []
                if i % 4 == 0:
                    pre = ["s_mov_b32 m0, %d" % (L_W + 3*12288 + (i//4)*4096), "s_add_u32 s%d, s%d, 20480" % (sCo, sCo) if i else "s_nop 0"]
                out.append((pre, "buffer_load_dwordx4 v%d, s[%d:%d], s%d offen offset:%d lds" % (vCs + i % 4, sW2, sW2+3, sCo, (i % 4)*1024)))
        elif x.kind == "X":
            for w in range(4):
                for i in range(4):
                    pre = []
                    if i == 0:
                        pre = ["s_mov_b32 m0, %d" % (L_X + (x.idx % 3)*16384 + w*4096), ("s_add_u32 s%d, s%d, s%d" % (sT, sXo, sKx)) if w == 0 else ("s_add_u32 s%d, s%d, 40960" % (sT, sT))]
                    if w == 1 and i == 1: pre = adv(sKx, 128, 1280)
                    out.append((pre, "buffer_load_dwordx4 v%d, s[%d:%d], s%d offen offset:%d lds" % (vXs+i, sXs, sXs+3, sT, i*1024)))
        elif x.kind == "W":
            for z in range(12):
                pre = []
                if z % 3 == 0:
                    pre = ["s_mov_b32 m0, %d" % (L_W + (x.idx % 4)*12288 + (z//3)*3072), ("s_add_u32 s%d, s%d, s%d" % (sT, sWo, sKw)) if z == 0 else ("s_add_u32 s%d, s%d, %d" % (sT, sT, 16*3072))]
                if z == 1: pre = adv(sKw, 64*3072, 640*3072)
                out.append((pre, "buffer_load_dwordx4 v%d, s[%d:%d], s%d offen offset:%d lds" % (vWs + z % 3, sW1, sW1+3, sT, (z % 3)*1024)))
        elif x.kind == "B":
            for n, r in enumerate(x.rows):
                for w in range(4):
                    pre = []
                    if w == 0:
                        pre = ["s_mov_b32 m0, %d" % (r*4096), "s_add_u32 s%d, s%d, %d" % (sT, sT, 48*1024)]
                        if n == 0:
                            pre = ["s_add_u32 s%d, s%d, %d" % (sT, sKw, x.idx*1024), "s_sub_u32 s%d, s%d, %d" % (sT2, sT, 12*1024), "s_cmp_ge_u32 s%d, %d" % (sT, 12*1024),
                                   "s_cselect_b32 s%d, s%d, s%d" % (sT, sT2, sT), "s_mov_b32 m0, %d" % (r*4096), "s_add_u32 s%d, s%d, s%d" % (sT, sT, sBo)]
                    out.append((pre, "buffer_load_dwordx4 v%d, s[%d:%d], s%d offen offset:%d sc1 lds" % (vBs+w, sW2F, sW2F+3, sT, w*1024)))
        elif x.kind == "S":
            for i in range(10):
                pre = ["s_mov_b32 m0, %d" % (x.rows[0]*4096 + i*1024), "s_add_u32 s%d, s%d, %d" % (sT, sT, 8*TRS) if i else "s_nop 0"]
                out.append((pre, "buffer_load_dwordx4 v%d, s[%d:%d], s%d offen sc1 lds" % (vCs, sW2, sW2+3, sT)))
        return out
    items = plan.items
    cur_rel = 0
    for k, x in enumerate(items):
        nxt = items[k+1] if k + 1 < len(items) else None
        if x.kind == "B" and x.idx == 0:
            a("s_waitcnt vmcnt(%d)" % (st8["n"] - st8["pollpos"]))
            okl = a.newlabel("L_w2ok"); sp = a.newlabel("L_w2spin"); ck = a.newlabel("L_w2chk")
            if not getattr(a, "NOPOLL", False):
                a("s_mov_b32 s%d, 0" % (sSy+2))
                a("s_branch %s" % ck)
                a.label(sp)
                a("s_waitcnt vmcnt(0)")
                publish(st8["issued"])
                a("s_sleep %d" % getattr(a, "LSLEEP", 1))
                for t in st8["polltxt"]: a(t)
                a("s_add_u32 s%d, s%d, 1" % (sSy+2, sSy+2))
                a("s_cmp_gt_u32 s%d, 0x%x" % (sSy+2, SPIN_MAX))
                a("s_waitcnt vmcnt(0)")
                a("s_cbranch_scc1 %s" % okl)
                a.label(ck)
                a("v_cmp_eq_u32 vcc, 0, v%d" % vTag)
                for q in range(6):
                    a("v_cmp_ne_u64 s[%d:%d], %s, %s" % (sSy, sSy+1, v(vPoll+2*q,2), v(vTag,2)))
                    a("s_or_b64 vcc, vcc, s[%d:%d]" % (sSy, sSy+1))
                a("s_cbranch_scc1 %s" % sp)
                a.label(okl)
            a.stamp(2)
        if x.kind == "ACT":
            if cur_rel < plan.rel["B0"]:
                drain()
                if getattr(a, "ACTGATE", True):
                    rel_read(); rel_check(plan.rel["B0"]); cur_rel = max(cur_rel, plan.rel["B0"])
            a.stamp(3)
            a.vm = []
            sy.poll_issue(vPA, "s%d" % sFc, 0, "pact"); st8["n"] += 1
            drain()
            sy.poll_check(vPA, "s%d" % sFc, 0, "pact", sleep=getattr(a, "LSLEEP", 1))
            publish(k+1); st8["issued"] = k + 1
            if getattr(a, "LDPRIO2", 0): a("s_setprio %d" % a.LDPRIO2)
            a.stamp(4)
            rel_read()
            continue
        if x.kind == "S":
            a.stamp(12)
            a.srd_off(sW2, P_WS, WS_ST, ST_BYTES)
            a("v_lshrrev_b32 v%d, 3, v0" % vT0)
            a("v_and_b32 v%d, 7, v0" % vT1)
            a("v_mul_u32_u24 v%d, %d, v%d" % (vCs, TRS, vT0))
            a("v_lshl_add_u32 v%d, v%d, 4, v%d" % (vCs, vT1, vCs))
            a("v_min_u32 v%d, %d, v%d" % (vPA, 39*16, vL16))
            a("s_mul_i32 s%d, s%d, 640" % (sFc, sCb2))
            a("s_add_u32 s%d, s%d, %d" % (sFc, sFc, FL_S))
            a.vm = []
            sy.poll_issue(vPA, "s%d" % sFc, 0, "ps"); st8["n"] += 1
            drain()
            sy.poll_check(vPA, "s%d" % sFc, 0, "ps", sleep=getattr(a, "LSLEEP", 1))
            a.stamp(13)
            a("s_mul_i32 s%d, s%d, %d" % (sT, sCb2, 80*TRS))
            a("s_lshl_b32 s%d, s%d, 7" % (sT2, sRb2))
            a("s_add_u32 s%d, s%d, s%d" % (sT, sT, sT2))
        if x.need_rel > cur_rel:
            rel_check(x.need_rel); cur_rel = x.need_rel
        ins = instrs(x)
        for j, (pre, txt) in enumerate(ins):
            if nxt is not None and nxt.need_rel > cur_rel and j == max(0, len(ins) - RELAHEAD): rel_read()
            for p in pre: a(p)
            if j == len(ins) - 1:
                a(txt); st8["n"] += 1
                st8["pend"].append((k+1, st8["n"])); st8["issued"] = k + 1
                after_issue()
            else:
                vm(txt)
        if x.kind == "W" and x.idx in (2, 4, 6, 8): a.stamp(8 + (x.idx-2)//2)
        if k == 0:
            if getattr(a, "ORDER", False): a("s_barrier")
            a("s_mul_i32 s%d, s%d, 13108" % (sT, S_WG))
            a("s_lshr_b32 s%d, s%d, 16" % (sT, sT))
            a("s_mul_i32 s%d, s%d, 5" % (sT2, sT))
            a("s_sub_u32 s%d, s%d, s%d" % (sT2, S_WG, sT2))
            a("s_mul_i32 s%d, s%d, 40960" % (sCo, sT))
            a("s_lshl_b32 s%d, s%d, 8" % (sT2, sT2))
            a("s_add_u32 s%d, s%d, s%d" % (sCo, sCo, sT2))
            a("v_lshrrev_b32 v%d, 4, v0" % vT0)
            a("v_and_b32 v%d, 15, v0" % vT1)
            a("v_mul_u32_u24 v%d, 1280, v%d" % (vCs, vT0))
            a("v_lshl_add_u32 v%d, v%d, 4, v%d" % (vCs, vT1, vCs))
            for i in range(1, 4): a("v_add_u32 v%d, %d, v%d" % (vCs+i, i*(5120-1024), vCs))
            x_src_offsets(a, vXs, vT0, vT1, vT2)
            a("s_mul_i32 s%d, s%d, %d" % (sXo, sRb, 128*1280))
            a.srd(sW2, P_W2, W2F_BYTES)
            a.srd(sXs, P_X, 2048*640*2)
            a("v_lshlrev_b32 v%d, 2, v0" % vPubA)
            a("v_add_u32 v%d, %d, v%d" % (vPubA, C_DUMMY, vPubA))
            a("v_mov_b32 v%d, %d" % (vT0, C_RDY))
            a("v_cmp_eq_u32 vcc, 0, v0")
            a("v_mov_b32 v%d, %d" % (vRelA, C_REL))
            a("s_mov_b32 s%d, 0" % sPub)
            a("v_cndmask_b32 v%d, v%d, v%d, vcc" % (vPubA, vPubA, vT0))
            a.stamp(1)
        if k == getattr(a, 'LDDROP', 2): a("s_setprio %d" % prio)
        if k == 3:
            tile_maps(a, None, None, sRb2, sCb2, sT)
            a.srd_off(sW2F, P_WS, WS_W2F, W2F_BYTES)
            a.srd_off(sFl, P_WS, WS_FLAGS, FLAGS_BYTES)
            a("v_lshlrev_b32 v%d, 4, v0" % vL16)
            a("v_mov_b32 v%d, 0" % vZero)
            for w in range(4):
                a("v_add_u32 v%d, %d, v%d" % (vBs+w, w*11*1024, vL16))
            a("s_mul_i32 s%d, s%d, %d" % (sBo, sCb2, 5*48*1024))
            a("v_min_u32 v%d, %d, v%d" % (vPA, 15*16, vL16))
            if getattr(a, "LDSTAG", False):
                a.vm = []
                sy.tag_load(True); st8["n"] += 1
                drain()
                sy.tag_check(True)
                a("v_mov_b32 v%d, %d" % (vT0, C_TAG))
                a.lds("ds_write_b64 v%d, %s" % (vT0, v(vTag,2)), "pub")
                rel_read()
        if x.kind == "W" and x.idx == 9:
            a("s_mul_i32 s%d, s%d, 5" % (sT2, sCb2))
            a("s_lshr_b32 s%d, s%d, 3" % (sT2, sT2))
            a("s_min_u32 s%d, s%d, 3" % (sT2, sT2))
            a("s_mul_i32 s%d, s%d, 1536" % (sT2, sT2))
            a("s_add_u32 s%d, s%d, %d" % (sCo, sT2, FL_W2F))
            txt = [] if getattr(a, "LDSTAG", False) else ["global_load_dwordx2 %s, v%d, s[%d:%d] sc1" % (v(vTag,2), vZero, P_DBG, P_DBG+1)]
            txt += ["buffer_load_dwordx4 %s, v%d, s[%d:%d], s%d offen offset:%d sc1" % (v(vPoll+4*q,4), vL16, sFl, sFl+3, sCo, q*1024) for q in range(3)]
            st8["polltxt"] = txt
            for t in txt: vm(t)
            st8["pollpos"] = st8["n"]
            k_rotation2(a, sKw, sT2, sRb2, sCb2)
            a("s_lshl_b32 s%d, s%d, 8" % (sFc, sRb2))
            a("s_add_u32 s%d, s%d, %d" % (sFc, sFc, FL_ACT))
    drain()
    a.stamp(5)
    a.stamp_dump(15, S_WAVE, 68, (200 << 20))
    a("s_endpgm")
    a.label("L_ld_slow")
    if a.PROF: a("s_add_u32 s86, s86, 1")
    a("s_mov_b32 s%d, 0" % (sSy+2))
    a.label("L_ld_slow_loop")
    a("s_cmp_lg_u32 s%d, 3" % (sSy+2))
    a("s_cbranch_scc1 L_ld_slow_nodrain")
    if a.PROF: a("s_add_u32 s87, s87, 1")
    a("s_waitcnt vmcnt(0)")
    a("s_max_u32 s%d, s%d, s%d" % (sPub, sPub, sAll))
    a("v_mov_b32 v%d, s%d" % (vPub, sPub))
    a("ds_write_b32 v%d, v%d" % (vPubA, vPub))
    a.label("L_ld_slow_nodrain")
    if getattr(a, "CSLEEP", 0): a("s_sleep %d" % a.CSLEEP)
    rel_read()
    a("s_add_u32 s%d, s%d, 1" % (sSy+2, sSy+2))
    a("s_waitcnt lgkmcnt(0)")
    a("v_min3_u32 v%d, v%d, v%d, v%d" % (vRel, vRel, vRel+1, vRel+2))
    a("v_min_u32 v%d, v%d, v%d" % (vRel, vRel, vRel+3))
    a("s_cmp_gt_u32 s%d, 0x%x" % (sSy+2, SPIN_MAX*16))
    a("v_readfirstlane_b32 s%d, v%d" % (sRel, vRel))
    a("s_cbranch_scc1 L_ld_slow_ret")
    a("s_cmp_lt_u32 s%d, s%d" % (sRel, sNeed))
    a("s_cbranch_scc1 L_ld_slow_loop")
    a.label("L_ld_slow_ret")
    a("s_setpc_b64 s[%d:%d]" % (sRet, sRet+1))
    a.vm = []; a.lg = []
```
